```python
import torch

def _softmax(x, axis=-1):
    return torch.softmax(x, dim=axis)
def _gelu(x):
    return torch.nn.functional.gelu(x, approximate="tanh")
def _silu(x):
    return torch.nn.functional.silu(x)
def _sigmoid(x):
    return torch.sigmoid(x)
def _layernorm(x, axis=-1, eps=1e-5):
    m = x.mean(dim=axis, keepdim=True)
    v = x.var(dim=axis, keepdim=True, unbiased=False)
    return (x - m) / torch.sqrt(v + eps)
def _scatter_add(tgt, idx, src, axis=0):
    return tgt.clone().index_add_(axis, idx, src)
def _segment_sum(src, seg, n):
    out = torch.zeros((n,) + src.shape[1:], dtype=src.dtype)
    return out.index_add_(0, seg, src)
def _pad(x, pw):
    flat = tuple(v for pair in reversed(pw) for v in pair)
    return torch.nn.functional.pad(x, flat)

kernel_name = 'gated_mix__sliding_block__mixer_channel_mlp__prompt'

def setup_inputs():

    _w = (lambda a: (lambda t: t.to(torch.bfloat16) if t.is_floating_point() else t)(torch.as_tensor(a)))
    def _A_setup():
        B, S, D = 1, 2048, 512
        return {
            "x": _w((lambda *s: torch.randn(*s, dtype=torch.bfloat16) * 0.05)(B, S, D)),
            "wqkv": _w((lambda *s: torch.randn(*s, dtype=torch.bfloat16) * 0.8)(D, 3 * D)),
            "wo": _w((lambda *s: torch.randn(*s, dtype=torch.bfloat16) * 0.05)(D, D)),
        }
    _A_in = _A_setup()

    def _B_setup():
        B, S, D, F = 1, 2048, 512, 1792
        return {
            "x": _w((lambda *s: torch.randn(*s, dtype=torch.bfloat16) * 0.05)(B, S, D)),
            "w1": _w((lambda *s: torch.randn(*s, dtype=torch.bfloat16) * 3.2)(D, F) * (D ** -0.5)),
            "b1": _w((lambda *s: torch.randn(*s, dtype=torch.bfloat16) * 1.6)(F)),
            "w2": _w((lambda *s: torch.randn(*s, dtype=torch.bfloat16) * 0.1)(F, D) * (F ** -0.5)),
            "b2": _w((lambda *s: torch.randn(*s, dtype=torch.bfloat16) * 0.2)(D)),
        }
    _B_in = _B_setup()

    return {
        "A_x": _A_in["x"],
        "A_wqkv": _A_in["wqkv"],
        "A_wo": _A_in["wo"],
        "B_x": _B_in["x"],
        "B_w1": _B_in["w1"],
        "B_b1": _B_in["b1"],
        "B_w2": _B_in["w2"],
        "B_b2": _B_in["b2"],
        "gate_w": _w((lambda *s: torch.randn(*s, dtype=torch.bfloat16) * 0.05)(512) * 16.0),
    }

def reference(A_x, A_wqkv, A_wo, B_x, B_w1, B_b1, B_w2, B_b2, gate_w):
    def _A_ref(x, wqkv, wo):
        B, S, D = x.shape
        H = 32; Dh = D // H; W = 256
        qkv = (lambda x, *d: x.permute(*d))((x @ wqkv).reshape(B, S, 3, H, Dh), 2, 0, 3, 1, 4)
        q, k, v = qkv[0], qkv[1], qkv[2]
        scores = torch.einsum("bhqd,bhkd->bhqk", q, k) * (Dh ** -0.5)
        idx = torch.arange(S)
        mask = (idx[:, None] - idx[None, :] >= 0) & (idx[:, None] - idx[None, :] < W)
        scores = torch.where(mask[None, None], scores, -1e9)
        p = _softmax(scores, axis=-1)
        o = torch.einsum("bhqk,bhkd->bhqd", p, v)
        return (lambda x, *d: x.permute(*d))(o, 0, 2, 1, 3).reshape(B, S, D) @ wo

    def _B_ref(x, w1, b1, w2, b2):
        y = _layernorm(x, axis=-1)
        h = _gelu(torch.einsum("bsd,df->bsf", y, w1) + b1)
        return torch.einsum("bsf,fd->bsd", h, w2) + b2

    x = A_x
    g = _sigmoid((x * gate_w).sum(-1, keepdims=True))
    a = _A_ref(x, A_wqkv, A_wo)
    b = _B_ref(x, B_w1, B_b1, B_w2, B_b2)
    return g * a + (1 - g) * b
```

```python
import re

def _regs(tok):
    tok = tok.strip()
    tok = re.sub(r'^-', '', tok)
    m = re.match(r'^(?:abs|neg)\((.*)\)$', tok)
    if m: tok = m.group(1)
    tok = tok.strip('|')
    m = re.match(r'^([vsa])(\d+)$', tok)
    if m: return {(m.group(1), int(m.group(2)))}
    m = re.match(r'^([vsa])\[(\d+):(\d+)\]$', tok)
    if m: return {(m.group(1), i) for i in range(int(m.group(2)), int(m.group(3)) + 1)}
    if tok in ('vcc', 'vcc_lo', 'vcc_hi'): return {('s', 'vcc')}
    if tok in ('exec', 'exec_lo', 'exec_hi'): return {('s', 'exec')}
    if tok == 'm0': return {('s', 'm0')}
    return set()

TRANS = ('v_exp_f32', 'v_log_f32', 'v_rcp_f32', 'v_rsq_f32', 'v_sqrt_f32', 'v_sin_f32', 'v_cos_f32', 'v_rcp_iflag_f32')

class Ins:
    def __init__(self, text):
        self.text = text
        t = text.split(';')[0].strip()
        parts = t.split(None, 1)
        self.op = parts[0]
        rest = parts[1] if len(parts) > 1 else ''
        rest = re.sub(r'\s+(op_sel|op_sel_hi|neg_lo|neg_hi):\[[^\]]*\]', '', rest)
        ops = [o.strip() for o in rest.split(',')] if rest else []
        self.mods = ''
        if ops:
            l = ops[-1].split(None, 1)
            ops[-1] = l[0]
            self.mods = l[1] if len(l) > 1 else ''
        self.ops = ops
        op = self.op
        self.is_mfma = op.startswith('v_mfma')
        self.is_valu = op.startswith('v_') and not self.is_mfma
        self.is_salu = op.startswith('s_')
        self.is_ds = op.startswith('ds_')
        self.is_vmem = op.startswith(('buffer_', 'global_', 'flat_'))
        self.is_trans = op.replace('_e32', '').replace('_e64', '') in TRANS
        self.is_perm = op.startswith('v_permlane')
        self.is_dpp = 'row_' in self.mods or 'quad_perm' in self.mods or '_dpp' in op
        self.lds_dma = self.is_vmem and (' lds' in ' ' + self.mods or 'load_lds' in op)
        R = [_regs(o) for o in ops]
        self.w = set(); self.r = set(); self.srcC = set(); self.srcAB = set(); self.stdata = set()
        if self.is_mfma:
            self.w = R[0]; self.srcAB = R[1] | R[2]; self.srcC = R[3]; self.r = self.srcAB | self.srcC
            self.passes = 8 if '32x32' in op else 4
        elif self.is_perm and 'swap' in op:
            self.w = R[0] | R[1]; self.r = R[0] | R[1]
        elif self.is_valu:
            self.w = set(R[0]); rs = R[1:]
            if op.startswith(('v_add_co', 'v_sub_co', 'v_addc_co', 'v_subb_co', 'v_subrev_co', 'v_mad_u64', 'v_div_scale')):
                self.w |= R[1]; rs = R[2:]
            for x in rs: self.r |= x
            if op.startswith(('v_fmac', 'v_dot2c', 'v_writelane')) : self.r |= R[0]
            if op.startswith('v_cmpx'): self.w |= {('s', 'exec')}
        elif self.is_ds:
            if op.startswith(('ds_read', 'ds_bpermute', 'ds_permute', 'ds_swizzle')) or '_rtn' in op:
                self.w = R[0]
                for x in R[1:]: self.r |= x
            else:
                for x in R: self.r |= x
        elif self.is_vmem:
            if 'store' in op or ('atomic' in op):
                for x in R: self.r |= x
                if 'atomic' in op and 'sc0' in self.mods: self.w = R[0]
                if 'x4' in op or 'x3' in op:
                    self.stdata = R[0] if op.startswith('buffer_') else R[1]
            elif self.lds_dma:
                for x in R: self.r |= x
                self.r |= {('s', 'm0')}
            else:
                self.w = R[0]
                for x in R[1:]: self.r |= x
        elif self.is_salu:
            if op.startswith(('s_cmp', 's_cbranch', 's_branch', 's_waitcnt', 's_barrier', 's_nop', 's_endpgm', 's_setprio', 's_sleep', 's_bitcmp')):
                for x in R: self.r |= x
            else:
                if R: self.w = set(R[0])
                for x in R[1:]: self.r |= x
                if 'saveexec' in op: self.w |= {('s', 'exec')}
        self.states = 1
        if op == 's_nop': self.states = int(ops[0], 0) + 1

def V(s): return {x for x in s if x[0] in 'va'}
def S(s): return {x for x in s if x[0] == 's'}

def need(p, c):
    n = 0
    if p.is_mfma:
        hi = p.passes == 8
        D = p.w
        if c.is_mfma:
            if c.srcAB & D: n = max(n, 12 if hi else 8)
            if c.srcC & D and not (c.srcC == D and c.passes == p.passes): n = max(n, 10 if hi else 6)
            if (c.w & D) and not (c.srcC == D and c.w == D): n = max(n, 10 if hi else 6)
        elif c.is_valu:
            if (c.r | c.w) & D: n = max(n, 12 if hi else 8)
            if c.w & p.srcC: n = max(n, 7 if hi else 3)
        elif c.is_ds or c.is_vmem:
            if (c.r | c.w) & D: n = max(n, 12 if hi else 8)
            if c.w & p.srcC: n = max(n, 7 if hi else 3)
    if p.is_valu:
        vw = V(p.w); sw = S(p.w)
        if c.is_mfma and (c.r & vw): n = max(n, 2)
        if c.is_perm and (c.r & vw): n = max(n, 2)
        if c.is_dpp and (c.r & vw): n = max(n, 2)
        if c.op.startswith(('v_readfirstlane', 'v_readlane')) and (c.r & vw): n = max(n, 1)
        if p.is_trans and (c.is_valu or c.is_mfma) and (c.r & vw): n = max(n, 1)
        if p.is_trans and (c.is_ds or c.is_vmem) and (c.r & vw): n = max(n, 1)
        if sw:
            if c.is_valu and (c.r & sw): n = max(n, 2)
            if c.op.startswith(('v_readlane', 'v_writelane')) and (c.r & sw): n = max(n, 4)
            if c.is_vmem and (c.r & sw): n = max(n, 5)
            if c.is_salu and (c.r & sw): n = max(n, 1)
            if ('s', 'vcc') in sw and c.op.startswith('s_cbranch_vcc'): n = max(n, 5)
            if ('s', 'exec') in sw and (c.is_mfma or c.is_perm or c.op.startswith(('v_readf', 'v_readl'))): n = max(n, 4)
    if p.is_salu and ('s', 'm0') in p.w and c.lds_dma: n = max(n, 1)
    if p.stdata and (c.w & p.stdata): n = max(n, 2)
    return n

class Em:
    def __init__(self):
        self.out = []
        self.win = []
        self.vmq = 0
        self.lgq = 0
        self.vm_done = 0
        self.lg_done = 0
        self.uid = 0
        self.nops = 0
    def _push(self, ins):
        self.out.append(ins); self.win.append(ins)
        if len(self.win) > 24: self.win.pop(0)
    def i(self, text):
        ins = Ins(text)
        dist = 0; pad = 0
        for p in reversed(self.win):
            nd = need(p, ins)
            if nd - dist > pad: pad = nd - dist
            dist += p.states
            if dist >= 20: break
        if pad > 0:
            self.nops += pad
            self._push(Ins(f"s_nop {pad-1}"))
        self._push(ins)
        if ins.is_vmem:
            self.vmq += 1; return self.vmq
        if ins.is_ds:
            self.lgq += 1; return self.lgq
        return None
    def __call__(self, text):
        t = None
        for l in text.split('\n'):
            l = l.strip()
            if not l or l.startswith(';'):
                if l: self.out.append('    ' + l)
                continue
            if l.endswith(':'): self.label(l[:-1]); continue
            if l.startswith('.'): self.out.append(l); continue
            t = self.i(l)
        return t
    def flush_haz(self, n=None):
        dist = 0; pad = 0
        for p in reversed(self.win):
            nd = 0
            if p.is_mfma: nd = 12 if p.passes == 8 else 8
            elif p.is_valu: nd = 5 if S(p.w) else 2
            elif p.stdata: nd = 2
            elif p.is_salu and ('s', 'm0') in p.w: nd = 1
            if nd - dist > pad: pad = nd - dist
            dist += p.states
        if pad > 0: self._push(Ins(f"s_nop {pad-1}"))
    def label(self, name):
        self.out.append(name + ':')
    def newlabel(self, b='L'):
        self.uid += 1; return f"{b}_{self.uid}"
    def wait(self, vm=None, lg=None):
        parts = []
        if vm is not None and vm > self.vm_done:
            n = self.vmq - vm
            assert n >= 0
            if n > 63: n = 63
            parts.append(f"vmcnt({n})"); self.vm_done = self.vmq - n
        if lg is not None and lg > self.lg_done:
            n = self.lgq - lg
            if n > 15: n = 15
            parts.append(f"lgkmcnt({n})"); self.lg_done = self.lgq - n
        if parts: self.i("s_waitcnt " + " ".join(parts))
    def wait_all(self, vm=True, lg=True):
        parts = []
        if vm: parts.append("vmcnt(0)"); self.vm_done = self.vmq
        if lg: parts.append("lgkmcnt(0)"); self.lg_done = self.lgq
        self.i("s_waitcnt " + " ".join(parts))
    def state(self): return (self.vmq, self.lgq, self.vm_done, self.lg_done, list(self.win))
    def restore(self, st): self.vmq, self.lgq, self.vm_done, self.lg_done, w = st; self.win = list(w)
    def text(self):
        return "\n".join(('    ' + x.text) if isinstance(x, Ins) else x for x in self.out) + "\n"

class Regs:
    def __init__(self, lo, hi, kind='v'):
        self.lo = lo; self.hi = hi; self.p = lo; self.kind = kind; self.hw = lo
    def alloc(self, n=1, align=1):
        self.p = (self.p + align - 1) // align * align
        r = self.p; self.p += n
        assert self.p <= self.hi, f"out of {self.kind} regs: {self.p}"
        self.hw = max(self.hw, self.p)
        return r
    def mark(self): return self.p
    def release(self, m): self.p = m

def vr(b, n=1): return f"v{b}" if n == 1 else f"v[{b}:{b+n-1}]"
def sr(b, n=1): return f"s{b}" if n == 1 else f"s[{b}:{b+n-1}]"
```

```python
import sys, math, struct
from emit import *

NAME = "gated_mix__sliding_block__mixer_channel_mlp__prompt_kernel"
STAMP = "--stamp" in sys.argv

def f2u(x): return struct.unpack("<I", struct.pack("<f", x))[0]
LOG2E = 1.4426950408889634
QSCALE = f2u(0.25 * LOG2E)
GC0 = -2.0 * math.sqrt(2.0 / math.pi) * LOG2E
GC1 = GC0 * 0.044715

WS_QKV = 0
WS_ACT = 8 << 20
WS_OMG = 20 << 20
WS_FLG = 21 << 20
WS_DBG = 24 << 20
WS_SIZE = 32 << 20
L_X, L_WQ, L_WH, L_MISC = 0, 49152, 98304, 147456
L_GW = L_MISC; L_ONES = L_MISC + 1152; L_STATS = L_MISC + 2304; L_CS = L_MISC + 4352; L_CNT = L_MISC + 4864
L_VSCR = L_MISC + 8192
RING = [4, 5, 10, 11, 16, 17, 0, 1, 6, 7, 12, 13, 2, 3, 8, 9, 14, 15]
NRING = 18
DACT = 8
SPIN = 200000

P_X, P_WQKV, P_WO, P_W1, P_B1, P_W2, P_B2, P_GW, P_OUT, P_DBG, P_WS = 4, 6, 8, 12, 14, 16, 18, 20, 22, 24, 26
R_X, R_WA, R_WS, R_W2, R_WO, R_OUT = 28, 32, 36, 40, 44, 48
S_W, S_TG, S_RB, S_CB, S_R4, S_C4, S_NONCE = 52, 53, 54, 55, 56, 57, 58
S_T0, S_T1, S_T2, S_T3, S_T4 = 59, 60, 61, 62, 63
S_MASK = 64
S_MX, S_MW, S_MG = 96, 97, 98
S_SPIN = 99
S_EX = 100
S_TJ = 64
S_C1, S_C2, S_C3 = 68, 70, 72
S_ST = 10

e = Em()
stamp_n = [0]
def stamp(idx):
    if not STAMP: return
    st = e.state()
    e(f"""s_memrealtime s[{S_ST}:{S_ST+1}]
    s_waitcnt lgkmcnt(0)
    v_mov_b32 v254, s{S_ST}
    s_lshl_b32 s{S_ST}, s2, 3
    s_add_u32 s{S_ST}, s{S_ST}, s{S_W}
    s_lshl_b32 s{S_ST}, s{S_ST}, 7
    s_add_u32 s{S_ST}, s{S_ST}, {WS_DBG + idx*4}
    v_mov_b32 v255, 0
    buffer_store_dword v254, v255, {sr(R_WS,4)}, s{S_ST} offen""")
    e.lg_done = e.lgq

def srd(r, p, size):
    e(f"""s_mov_b32 s{r}, s{p}
    s_mov_b32 s{r+1}, s{p+1}
    s_mov_b32 s{r+2}, {size}
    s_mov_b32 s{r+3}, 0x20000""")

def publish(cnt_idx, total, stage, vt0, vt1):
    L = e.newlabel("L_pub")
    st = e.state()
    e(f"""s_mov_b64 exec, 1
    v_mov_b32 v{vt0}, {L_CNT + 4*cnt_idx}
    v_mov_b32 v{vt1}, 1
    ds_add_rtn_u32 v{vt1}, v{vt0}, v{vt1}
    s_lshl_b32 s{S_T0}, s{S_RB}, 7
    s_lshl_b32 s{S_T1}, s{S_CB}, 2
    s_add_u32 s{S_T0}, s{S_T0}, s{S_T1}
    s_add_u32 s{S_T0}, s{S_T0}, {WS_FLG + stage*4096}
    v_mov_b32 v{vt0}, 0""")
    e.wait_all(vm=False)
    e(f"""v_readfirstlane_b32 s{S_T1}, v{vt1}
    v_mov_b32 v{vt1}, s{S_NONCE}
    s_cmp_lg_u32 s{S_T1}, {total-1}
    s_cbranch_scc1 {L}""")
    vmq = e.vmq
    e(f"buffer_store_dword v{vt1}, v{vt0}, {sr(R_WS,4)}, s{S_T0} offen sc1")
    e.vmq = vmq
    e(f"{L}:")
    e("s_mov_b64 exec, -1")

def poll(vaddr, vtmp, first_ticket=None):
    L = e.newlabel("L_poll"); Lc = e.newlabel("L_pchk"); Lo = e.newlabel("L_pout")
    e(f"s_mov_b32 s{S_SPIN}, {SPIN}")
    if first_ticket is not None:
        e.wait(vm=first_ticket)
        e(f"s_branch {Lc}")
    st = e.state()
    e(f"{L}:")
    e(f"buffer_load_dword v{vtmp}, v{vaddr}, {sr(R_WS,4)}, 0 offen sc1")
    e("s_waitcnt vmcnt(0)")
    e(f"{Lc}:")
    e(f"""v_cmp_ne_u32 vcc, s{S_NONCE}, v{vtmp}
    s_sub_u32 s{S_SPIN}, s{S_SPIN}, 1
    s_cmp_eq_u32 s{S_SPIN}, 0
    s_cbranch_scc1 {Lo}
    s_nop 2
    s_cbranch_vccnz {L}
    {Lo}:""")
    if first_ticket is not None:
        e.vmq, e.vm_done = st[0], st[2]
    else:
        e.vm_done = e.vmq

v = Regs(1, 254 if STAMP else 256)
vL = v.alloc()
vL16 = v.alloc()
vXs = v.alloc(2)
vT = v.alloc(6, 2)
e(f"""s_cmp_ge_u32 s2, 256
s_cbranch_scc1 L_end
s_load_dwordx16 s[4:19], s[0:1], 0
s_load_dwordx8 s[20:27], s[0:1], 64
v_lshrrev_b32 v{vT}, 6, v0
v_and_b32 v{vL}, 63, v0
v_readfirstlane_b32 s{S_W}, v{vT}
v_lshlrev_b32 v{vL16}, 4, v{vL}
s_and_b32 s{S_T0}, s2, 1
s_lshl_b32 s{S_T0}, s{S_T0}, 3
s_lshr_b32 s{S_T1}, s2, 3
s_and_b32 s{S_T2}, s{S_T1}, 7
s_add_u32 s{S_RB}, s{S_T0}, s{S_T2}
s_lshr_b32 s{S_T0}, s2, 1
s_and_b32 s{S_T0}, s{S_T0}, 3
s_lshl_b32 s{S_T0}, s{S_T0}, 2
s_lshr_b32 s{S_T2}, s2, 6
s_add_u32 s{S_CB}, s{S_T0}, s{S_T2}
s_and_b32 s{S_T0}, s2, 7
s_lshl_b32 s{S_T0}, s{S_T0}, 2
s_and_b32 s{S_T2}, s{S_T1}, 3
s_add_u32 s{S_R4}, s{S_T0}, s{S_T2}
s_lshr_b32 s{S_C4}, s{S_T1}, 2
s_and_b32 s{S_TG}, s{S_W}, 3
""")
e(f"""s_lshl_b32 s{S_T0}, s{S_RB}, 7
s_lshl_b32 s{S_T1}, s{S_W}, 4
s_add_u32 s{S_T0}, s{S_T0}, s{S_T1}
v_lshrrev_b32 v{vT}, 3, v{vL}
v_add_u32 v{vT}, s{S_T0}, v{vT}
v_lshlrev_b32 v{vT}, 10, v{vT}
v_lshrrev_b32 v{vT+1}, 4, v{vL}
v_and_b32 v{vT+2}, 7, v{vL}
v_xor_b32 v{vT+2}, v{vT+2}, v{vT+1}
v_lshlrev_b32 v{vT+2}, 4, v{vT+2}
v_add_u32 v{vXs}, v{vT}, v{vT+2}
v_xor_b32 v{vT+2}, 64, v{vT+2}
v_add_u32 v{vXs+1}, v{vT}, v{vT+2}
v_add_u32 v{vXs+1}, {8192-1024}, v{vXs+1}
s_lshl_b32 s{S_MX}, s{S_W}, 11
s_cmp_ge_u32 s{S_W}, 4
s_cbranch_scc1 L_streamA
""")
common_mark = v.mark()
common_state = e.state()

def kperm_code(vrho, vk, vt):
    e(f"""v_and_b32 v{vk}, 0x23, v{vrho}
    v_lshrrev_b32 v{vt}, 2, v{vrho}
    v_and_b32 v{vt}, 3, v{vt}
    v_lshl_add_u32 v{vk}, v{vt}, 3, v{vk}
    v_lshrrev_b32 v{vt}, 4, v{vrho}
    v_and_b32 v{vt}, 1, v{vt}
    v_lshl_add_u32 v{vk}, v{vt}, 2, v{vk}""")

def stage_a(fh):
    NH = 4 if fh == 0 else 3
    NW = 3 if fh == 0 else 4
    g = None
    if fh == 0:
        g = {'w2': v.alloc(2), 'wo': v.alloc(2), 't': {}}
        g['mark'] = v.mark()
    vWs = v.alloc(4)
    for j in range(NW):
        if fh == 0:
            e(f"""s_mul_i32 s{S_T0}, s{S_TG}, 192
            s_add_u32 s{S_T0}, s{S_T0}, {64*j}
            v_add_u32 v{vT}, s{S_T0}, v{vL}
            v_mul_u32_u24 v{vT+1}, 43691, v{vT}
            v_lshrrev_b32 v{vT+1}, 19, v{vT+1}
            v_mul_u32_u24 v{vT+2}, 12, v{vT+1}
            v_sub_u32 v{vT+2}, v{vT}, v{vT+2}""")
            kperm_code(vT+1, vT+3, vT+4)
            e(f"""v_lshrrev_b32 v{vT+4}, 1, v{vT+1}
            v_and_b32 v{vT+4}, 2, v{vT+4}
            v_xor_b32 v{vT+2}, v{vT+2}, v{vT+4}
            v_mul_u32_u24 v{vT+3}, 3072, v{vT+3}
            v_lshl_add_u32 v{vT+3}, v{vT+2}, 4, v{vT+3}
            s_mul_i32 s{S_T0}, s{S_CB}, 192
            s_sub_u32 s{S_T0}, s{S_T0}, {1024*j}
            v_add_u32 v{vWs+j}, s{S_T0}, v{vT+3}""")
        else:
            e(f"""s_lshl_b32 s{S_T0}, s{S_TG}, 8
            s_add_u32 s{S_T0}, s{S_T0}, {64*j}
            v_add_u32 v{vT}, s{S_T0}, v{vL}
            v_mul_u32_u24 v{vT+1}, 4682, v{vT}
            v_lshrrev_b32 v{vT+1}, 16, v{vT+1}
            v_mul_u32_u24 v{vT+2}, 14, v{vT+1}
            v_sub_u32 v{vT+2}, v{vT}, v{vT+2}""")
            kperm_code(vT+1, vT+3, vT+4)
            e(f"""v_mul_u32_u24 v{vT+3}, 3584, v{vT+3}
            v_lshl_add_u32 v{vT+3}, v{vT+2}, 4, v{vT+3}
            v_and_b32 v{vT+4}, 64, v{vT+1}
            v_lshl_add_u32 v{vT+3}, v{vT+4}, 20, v{vT+3}
            s_mul_i32 s{S_T0}, s{S_CB}, 224
            s_sub_u32 s{S_T0}, s{S_T0}, {1024*j}
            v_add_u32 v{vWs+j}, s{S_T0}, v{vT+3}""")
    if fh == 0: e(f"s_mul_i32 s{S_MW}, s{S_TG}, 3072\ns_add_u32 s{S_MW}, s{S_MW}, {L_WQ}")
    else:       e(f"s_lshl_b32 s{S_MW}, s{S_TG}, 12\ns_add_u32 s{S_MW}, s{S_MW}, {L_WH}")
    e("s_waitcnt lgkmcnt(0)")
    srd(R_X, P_X, 2048*512*2)
    if fh == 0: srd(R_WA, P_WQKV, 512*1536*2)
    else:       srd(R_WA, P_W1, 512*1792*2)
    wstride = 3072 if fh == 0 else 3584
    dma_t = {}
    def dma_chunk(c):
        s = c % 3
        e(f"s_movk_i32 s{S_T0}, {128*c}")
        e(f"s_add_u32 m0, s{S_MX}, {L_X + 16384*s}")
        e(f"buffer_load_dwordx4 v{vXs}, {sr(R_X,4)}, s{S_T0} offen lds")
        e(f"buffer_load_dwordx4 v{vXs+1}, {sr(R_X,4)}, s{S_T0} offen offset:1024 lds")
        e(f"s_mov_b32 s{S_T1}, {64*wstride*c}")
        e(f"s_add_u32 m0, s{S_MW}, {16384*s}")
        for j in range(NW):
            t = e(f"buffer_load_dwordx4 v{vWs+j}, {sr(R_WA,4)}, s{S_T1} offen offset:{1024*j} lds")
        dma_t[c] = t
    if fh == 1:
        L1 = e.newlabel()
        e(f"""s_cmp_lg_u32 s{S_W}, 4
        s_cbranch_scc1 {L1}
        s_mov_b32 m0, {L_GW}""")
        q = e.vmq
        e(f"global_load_lds_dwordx4 v{vL16}, {sr(P_GW,2)}")
        e.vmq = q
        e(f"{L1}:")
    dma_chunk(0)
    dma_chunk(1)
    dma_chunk(2)
    srd(R_WS, P_WS, WS_SIZE)
    stamp(0)
    if fh == 1:
        L1 = e.newlabel()
        e(f"""s_cmp_lg_u32 s{S_W}, 5
        s_cbranch_scc1 {L1}
        v_mov_b32 v{vT}, 0x3f803f80
        v_mov_b32 v{vT+1}, 0x3f803f80
        v_lshlrev_b32 v{vT+2}, 3, v{vL}
        v_add_u32 v{vT+2}, {L_ONES}, v{vT+2}""")
        q = e.lgq
        e(f"""ds_write_b64 v{vT+2}, v[{vT}:{vT+1}]
        ds_write_b64 v{vT+2}, v[{vT}:{vT+1}] offset:512
        v_mov_b32 v{vT+3}, 0
        v_lshlrev_b32 v{vT+4}, 2, v{vL}
        v_add_u32 v{vT+4}, {L_CNT}, v{vT+4}
        ds_write_b32 v{vT+4}, v{vT+3}
        s_waitcnt lgkmcnt(0)""")
        e.lgq = q
        e(f"{L1}:")
    else:
        L1 = e.newlabel()
        e(f"""s_or_b32 s{S_T0}, s2, s{S_W}
        s_cmp_lg_u32 s{S_T0}, 0
        s_cbranch_scc1 {L1}
        s_memrealtime s[{S_EX}:{S_EX+1}]
        s_waitcnt lgkmcnt(0)
        s_or_b32 s{S_T0}, s{S_EX}, 1
        v_mov_b32 v{vT}, s{S_T0}
        v_mov_b32 v{vT+1}, 0""")
        q = e.vmq
        e(f"global_store_dword v{vT+1}, v{vT}, {sr(P_DBG,2)} sc1")
        e.vmq = q
        e(f"{L1}:")
    vXr = v.alloc(2); vWq = v.alloc(2); vWh = v.alloc(4); vGw = v.alloc(1)
    vB1 = v.alloc(8, 2)
    vG = v.alloc(1)
    e(f"""v_lshrrev_b32 v{vG}, 4, v{vL}
    v_and_b32 v{vT}, 15, v{vL}
    v_lshrrev_b32 v{vT+1}, 1, v{vT}
    v_xor_b32 v{vT+1}, v{vT+1}, v{vG}
    v_lshlrev_b32 v{vT+1}, 4, v{vT+1}
    v_lshl_add_u32 v{vT+1}, v{vT}, 7, v{vT+1}
    s_lshl_b32 s{S_T0}, s{S_TG}, 12
    v_add_u32 v{vXr}, s{S_T0}, v{vT+1}
    v_xor_b32 v{vXr+1}, 64, v{vXr}
    v_lshrrev_b32 v{vT+2}, 2, v{vL}
    v_and_b32 v{vT+3}, 3, v{vL}
    v_lshlrev_b32 v{vT+3}, 3, v{vT+3}
    v_mul_u32_u24 v{vT+4}, 192, v{vT+2}
    v_add_u32 v{vT+4}, v{vT+4}, v{vT+3}
    v_add_u32 v{vT+4}, {L_WQ}, v{vT+4}
    v_and_b32 v{vT+5}, 1, v{vG}
    v_lshlrev_b32 v{vT+5}, 5, v{vT+5}
    v_add_u32 v{vWq}, v{vT+4}, v{vT+5}
    v_sub_u32 v{vWq+1}, v{vT+4}, v{vT+5}
    v_mul_u32_u24 v{vT+4}, 224, v{vT+2}
    v_add_u32 v{vT+4}, v{vT+4}, v{vT+3}
    v_add_u32 v{vT+4}, {L_WH}, v{vT+4}""")
    b1t = []
    for j in range(NH):
        if fh == 0:
            e(f"s_xor_b32 s{S_TJ+j}, s{S_TG}, {j}")
        else:
            e(f"""s_add_u32 s{S_TJ+j}, s{S_TG}, {j}
            s_cmp_ge_u32 s{S_TJ+j}, 3
            s_cselect_b32 s{S_T0}, 3, 0
            s_sub_u32 s{S_TJ+j}, s{S_TJ+j}, s{S_T0}
            s_add_u32 s{S_TJ+j}, s{S_TJ+j}, 4""")
        e(f"""s_lshl_b32 s{S_T0}, s{S_TJ+j}, 5
        v_add_u32 v{vWh+j}, s{S_T0}, v{vT+4}
        s_mul_i32 s{S_T1}, s{S_CB}, 224
        s_add_u32 s{S_T0}, s{S_T0}, s{S_T1}
        v_lshlrev_b32 v{vT}, 3, v{vG}
        v_add_u32 v{vT}, s{S_T0}, v{vT}""")
        b1t.append(e(f"global_load_dwordx2 v[{vB1+2*j}:{vB1+2*j+1}], v{vT}, {sr(P_B1,2)}"))
    e(f"""v_and_b32 v{vT}, 1, v{vL}
    v_mul_u32_u24 v{vT}, {L_ONES-L_GW}, v{vT}
    v_lshlrev_b32 v{vT+1}, 4, v{vG}
    v_sub_u32 v{vT+1}, v{vT+1}, v{vT}
    v_add_u32 v{vGw}, {L_ONES}, v{vT+1}""")
    aQ = v.alloc(24, 4); aH = v.alloc(8*NH, 4); aCS = v.alloc(4, 4); aGR = v.alloc(4, 4); aSM = v.alloc(4, 4)
    vOnes = v.alloc(4, 4)
    frag_mark = v.mark()
    fX = [v.alloc(8, 4) for _ in range(2)]
    fW = [v.alloc(4*(3+NH), 4) for _ in range(2)]
    fG = [v.alloc(4, 4) for _ in range(2)]
    for i in range(4): e(f"v_mov_b32 v{vOnes+i}, 0x3f803f80")
    if fh == 0:
        srd(R_W2, P_W2, 1792*512*2); srd(R_WO, P_WO, 512*512*2); srd(R_OUT, P_OUT, 2048*512*2)
        g_setup(g)
    def reads(ks):
        c, kk = divmod(ks, 2); s = c % 3; b = ks % 2
        R = []
        R.append(("x0", f"ds_read_b128 {vr(fX[b],4)}, v{vXr+kk} offset:{L_X+16384*s}"))
        R.append(("x1", f"ds_read_b128 {vr(fX[b]+4,4)}, v{vXr+kk} offset:{L_X+16384*s+2048}"))
        for j in range(3):
            t = 3*fh + j
            for h2 in range(2):
                R.append((f"w{j}", f"ds_read_b64_tr_b16 {vr(fW[b]+4*j+2*h2,2)}, v{vWq+(t&1)} offset:{16384*s+6144*kk+3072*h2+32*t}"))
        for j in range(NH):
            for h2 in range(2):
                R.append((f"w{3+j}", f"ds_read_b64_tr_b16 {vr(fW[b]+12+4*j+2*h2,2)}, v{vWh+j} offset:{16384*s+7168*kk+3584*h2}"))
        R.append(("g", f"ds_read_b128 {vr(fG[b],4)}, v{vGw} offset:{64*ks}"))
        return R
    def mfmas(ks):
        b = ks % 2
        c0 = (lambda r: "0") if ks == 0 else (lambda r: vr(r, 4))
        M = []
        xf = fX[b] + 4*fh
        M.append((("x0", "x1"), f"v_mfma_f32_16x16x32_bf16 {vr(aGR,4)}, {vr(xf,4)}, {vr(xf,4)}, {c0(aGR)}"))
        for j in range(3+NH):
            for f in range(2):
                acc = (aQ + 8*j if j < 3 else aH + 8*(j-3)) + 4*f
                M.append(((f"w{j}", "x0", "x1"), f"v_mfma_f32_16x16x32_bf16 {vr(acc,4)}, {vr(fW[b]+4*j,4)}, {vr(fX[b]+4*f,4)}, {c0(acc)}"))
            if j == 3:
                M.append((("w3",), f"v_mfma_f32_16x16x32_bf16 {vr(aCS,4)}, {vr(fW[b]+12,4)}, {vr(vOnes,4)}, {c0(aCS)}"))
        M.append((("g",), f"v_mfma_f32_16x16x32_bf16 {vr(aSM,4)}, {vr(fG[b],4)}, {vr(xf,4)}, {c0(aSM)}"))
        return M
    tick = {}
    def issue_reads(ks):
        for nm, tx in reads(ks): tick[(ks, nm)] = e(tx)
    def block(ks, extra=None):
        R = reads(ks+1) if ks < 15 else []
        M = mfmas(ks)
        extra = list(extra or [])
        for i, (deps, tx) in enumerate(M):
            e.wait(lg=max(tick[(ks, d)] for d in deps))
            e(tx)
            n = 2 if i < 4 else 1
            for _ in range(n):
                if R:
                    nm, rt = R.pop(0); tick[(ks+1, nm)] = e(rt)
            if extra and i >= 2: extra.pop(0)()
        for nm, rt in R: tick[(ks+1, nm)] = e(rt)
        for x in extra: x()
    e.wait(vm=dma_t[0]); e.wait_all(vm=False)
    e("s_barrier")
    stamp(1)
    issue_reads(0)
    for c in range(8):
        block(2*c)
        ex = []
        if c < 7:
            e.wait(vm=dma_t[c+1]); e.wait_all(vm=False)
            e("s_barrier")
            if c + 3 < 8: ex = [lambda c=c: dma_chunk(c+3)]
            elif fh == 0: ex = [(lambda s=s: g_dma(g, s)) for s in range(6*(c-5), 6*(c-5)+6)]
        block(2*c+1, ex)
    stamp(2)
    v.release(frag_mark)
    vN = v.alloc(1); vZ = v.alloc(1)
    e(f"v_mov_b32 v{vZ}, 0")
    tN = e(f"global_load_dword v{vN}, v{vZ}, {sr(P_DBG,2)} sc1")
    w = v.alloc(8, 4)
    e(f"""s_mov_b32 s{S_C1}, 0x22222222
    s_mov_b32 s{S_C1+1}, 0x22222222
    s_mov_b32 s{S_C2}, 0x44444444
    s_mov_b32 s{S_C2+1}, 0x44444444
    s_mov_b32 s{S_C3}, 0x88888888
    s_mov_b32 s{S_C3+1}, 0x88888888
    v_cndmask_b32 v{w+4}, v{aGR}, v{aGR+1}, s[{S_C1}:{S_C1+1}]
    v_cndmask_b32 v{w+4}, v{w+4}, v{aGR+2}, s[{S_C2}:{S_C2+1}]
    v_cndmask_b32 v{w+4}, v{w+4}, v{aGR+3}, s[{S_C3}:{S_C3+1}]
    v_mul_f32 v{w+5}, {f2u(1.0/512)}, v{aSM}
    v_mul_f32 v{w+4}, {f2u(1.0/512)}, v{w+4}
    v_fma_f32 v{w+4}, -v{w+5}, v{w+5}, v{w+4}
    v_max_f32 v{w+4}, 0, v{w+4}
    v_add_f32 v{w+4}, {f2u(1e-5)}, v{w+4}
    v_rsq_f32 v{w}, v{w+4}
    v_mul_f32 v{w+6}, {f2u(LOG2E)}, v{aSM+1}
    v_mul_f32 v{w+1}, v{w+5}, v{w}
    v_exp_f32 v{w+2}, v{w+6}
    v_exp_f32 v{w+3}, -v{w+6}
    v_add_f32 v{w+2}, 1.0, v{w+2}
    v_add_f32 v{w+3}, 1.0, v{w+3}
    v_min_f32 v{w+2}, {f2u(1e30)}, v{w+2}
    v_rcp_f32 v{w+3}, v{w+3}
    v_rcp_f32 v{w+7}, v{w+2}
    v_and_b32 v{w+4}, 15, v{vL}
    s_lshl_b32 s{S_T0}, s{S_TG}, 5
    s_add_u32 s{S_T0}, s{S_T0}, {16*fh}
    v_add_u32 v{w+4}, s{S_T0}, v{w+4}
    v_lshlrev_b32 v{w+5}, 4, v{w+4}
    v_add_u32 v{w+5}, {L_STATS}, v{w+5}
    v_lshlrev_b32 v{w+4}, 2, v{w+4}
    s_mov_b32 exec_lo, 0x00f0000f
    s_mov_b32 exec_hi, 0xf0000f00
    ds_write_b128 v{w+5}, {vr(w,4)}""")
    L = e.newlabel()
    e(f"""s_cmp_lg_u32 s{S_CB}, 0
    s_cbranch_scc1 {L}
    s_lshl_b32 s{S_T0}, s{S_RB}, 9
    s_add_u32 s{S_T0}, s{S_T0}, {WS_OMG}""")
    q = e.vmq
    e(f"buffer_store_dword v{w+7}, v{w+4}, {sr(R_WS,4)}, s{S_T0} offen sc1")
    e.vmq = q
    e(f"{L}:")
    e(f"""s_mov_b64 exec, -1
    s_lshl_b32 s{S_T0}, s{S_TJ}, 6
    s_add_u32 s{S_T0}, s{S_T0}, {L_CS}
    v_lshlrev_b32 v{w+6}, 4, v{vG}
    v_add_u32 v{w+6}, s{S_T0}, v{w+6}
    s_mov_b32 exec_lo, 0x00010001
    s_mov_b32 exec_hi, 0x00010001
    ds_write_b128 v{w+6}, {vr(aCS,4)}
    s_mov_b64 exec, -1""")
    vVw = v.alloc(1); vVr = v.alloc(1)
    e(f"""v_and_b32 v{vVw}, 15, v{vL}
    v_lshlrev_b32 v{vVw}, 5, v{vVw}
    v_lshl_add_u32 v{vVw}, v{vG}, 3, v{vVw}
    s_lshl_b32 s{S_T0}, s{S_W}, 10
    s_add_u32 s{S_T0}, s{S_T0}, {L_VSCR}
    v_add_u32 v{vVw}, s{S_T0}, v{vVw}
    v_lshrrev_b32 v{vVr}, 5, v{vL}
    v_lshlrev_b32 v{vVr}, 9, v{vVr}
    v_and_b32 v{vT}, 31, v{vL}
    v_lshl_add_u32 v{vVr}, v{vT}, 3, v{vVr}
    v_add_u32 v{vVr}, s{S_T0}, v{vVr}""")
    pk = v.alloc(12, 4)
    tq = None
    for j in range(3):
        P = pk + 4*j; A = aQ + 8*j
        e(f"""s_mul_i32 s{S_T2}, s{S_CB}, 6
        s_add_u32 s{S_T2}, s{S_T2}, {3*fh+j}
        s_cmp_lt_u32 s{S_T2}, 32
        s_cselect_b32 s{S_T3}, {QSCALE}, 1.0""")
        for i in range(8): e(f"v_mul_f32 v{A+i}, s{S_T3}, v{A+i}")
        for i in range(4): e(f"v_cvt_pk_bf16_f32 v{P+i}, v{A+2*i}, v{A+2*i+1}")
        Lv = e.newlabel("L_v"); Lj = e.newlabel("L_j")
        e(f"""s_lshl_b32 s{S_T0}, s{S_T2}, 6
        s_lshl_b32 s{S_T1}, s{S_RB}, 2
        s_add_u32 s{S_T0}, s{S_T0}, s{S_T1}
        s_add_u32 s{S_T0}, s{S_T0}, s{S_TG}
        s_lshl_b32 s{S_T0}, s{S_T0}, 10
        s_cmp_ge_u32 s{S_T2}, 64
        s_cbranch_scc1 {Lv}
        v_permlane16_swap_b32 v{P}, v{P+2}
        v_permlane16_swap_b32 v{P+1}, v{P+3}
        s_branch {Lj}
        {Lv}:""")
        st = e.state()
        e(f"""ds_write_b64 v{vVw}, {vr(P,2)}
        ds_write_b64 v{vVw}, {vr(P+2,2)} offset:512
        s_waitcnt lgkmcnt(0)
        ds_read_b64_tr_b16 {vr(P,2)}, v{vVr}
        ds_read_b64_tr_b16 {vr(P+2,2)}, v{vVr} offset:256
        s_waitcnt lgkmcnt(0)
        {Lj}:""")
        e.lgq, e.lg_done = st[1], st[3]
        tq = e(f"buffer_store_dwordx4 {vr(P,4)}, v{vL16}, {sr(R_WS,4)}, s{S_T0} offen sc1")
    e.wait_all(vm=False)
    e("s_barrier")
    stamp(3)
    stt = v.alloc(8, 4); cs = v.alloc(16, 4)
    e(f"""v_and_b32 v{vT}, 15, v{vL}
    s_lshl_b32 s{S_T0}, s{S_TG}, 9
    s_add_u32 s{S_T0}, s{S_T0}, {L_STATS}
    v_lshlrev_b32 v{vT}, 4, v{vT}
    v_add_u32 v{vT}, s{S_T0}, v{vT}
    ds_read_b128 {vr(stt,4)}, v{vT}
    ds_read_b128 {vr(stt+4,4)}, v{vT} offset:256""")
    for j in range(NH):
        e(f"""s_lshl_b32 s{S_T0}, s{S_TJ+j}, 6
        s_add_u32 s{S_T0}, s{S_T0}, {L_CS}
        v_lshlrev_b32 v{vT+1}, 4, v{vG}
        v_add_u32 v{vT+1}, s{S_T0}, v{vT+1}
        ds_read_b128 {vr(cs+4*j,4)}, v{vT+1}""")
    if fh == 0:
        for s in range(12, 18): g_dma(g, s)
    cC0 = v.alloc(1); cC1 = v.alloc(1); bb = v.alloc(4); tm = v.alloc(8); hp = v.alloc(16, 4)
    e(f"v_mov_b32 v{cC0}, {f2u(GC0)}\nv_mov_b32 v{cC1}, {f2u(GC1)}")
    e.wait(vm=b1t[-1])
    e.wait_all(vm=False)
    th = None
    for j in range(NH):
        A = aH + 8*j
        e(f"""v_lshlrev_b32 v{bb}, 16, v{vB1+2*j}
        v_and_b32 v{bb+1}, 0xffff0000, v{vB1+2*j}
        v_lshlrev_b32 v{bb+2}, 16, v{vB1+2*j+1}
        v_and_b32 v{bb+3}, 0xffff0000, v{vB1+2*j+1}""")
        ids = range(8)
        S4 = lambda i: stt + 4*(i//4)
        for i in ids: e(f"v_fma_f32 v{tm+i}, -v{S4(i)+1}, v{cs+4*j+i%4}, v{bb+i%4}")
        for i in ids: e(f"v_fma_f32 v{A+i}, v{A+i}, v{S4(i)}, v{tm+i}")
        for i in ids: e(f"v_mul_f32 v{tm+i}, v{A+i}, v{A+i}")
        for i in ids: e(f"v_fma_f32 v{tm+i}, v{tm+i}, v{cC1}, v{cC0}")
        for i in ids: e(f"v_mul_f32 v{tm+i}, v{tm+i}, v{A+i}")
        for i in ids: e(f"v_exp_f32 v{tm+i}, v{tm+i}")
        for i in ids: e(f"v_fma_f32 v{tm+i}, v{tm+i}, v{S4(i)+2}, v{S4(i)+2}")
        for i in ids: e(f"v_rcp_f32 v{tm+i}, v{tm+i}")
        for i in ids: e(f"v_mul_f32 v{A+i}, v{A+i}, v{tm+i}")
        P = hp + 4*j
        for i in range(4): e(f"v_cvt_pk_bf16_f32 v{P+i}, v{A+2*i}, v{A+2*i+1}")
        e(f"""s_lshl_b32 s{S_T0}, s{S_RB}, 2
        s_add_u32 s{S_T0}, s{S_T0}, s{S_TG}
        s_mul_i32 s{S_T0}, s{S_T0}, 144
        s_mul_i32 s{S_T1}, s{S_CB}, 7
        s_add_u32 s{S_T0}, s{S_T0}, s{S_T1}
        s_add_u32 s{S_T0}, s{S_T0}, s{S_TJ+j}
        s_lshl_b32 s{S_T0}, s{S_T0}, 10
        s_add_u32 s{S_T0}, s{S_T0}, {WS_ACT}
        v_permlane16_swap_b32 v{P}, v{P+2}
        v_permlane16_swap_b32 v{P+1}, v{P+3}""")
        th = e(f"buffer_store_dwordx4 {vr(P,4)}, v{vL16}, {sr(R_WS,4)}, s{S_T0} offen sc1")
        if j == 1:
            e.wait(vm=tq)
            Ln = e.newlabel("L_n"); Lk = e.newlabel("L_nk")
            st = e.state()
            e(f"""s_mov_b32 s{S_SPIN}, {SPIN}
            {Ln}:
            v_readfirstlane_b32 s{S_NONCE}, v{vN}
            s_sub_u32 s{S_SPIN}, s{S_SPIN}, 1
            s_cmp_eq_u32 s{S_SPIN}, 0
            s_cbranch_scc1 {Lk}
            s_cmp_lg_u32 s{S_NONCE}, 0
            s_cbranch_scc1 {Lk}
            global_load_dword v{vN}, v{vZ}, {sr(P_DBG,2)} sc1
            s_waitcnt vmcnt(0)
            s_branch {Ln}
            {Lk}:""")
            e.vmq, e.vm_done = st[0], st[2]
            publish(0, 8, 0, vT, vT+1)
            stamp(4)
    stamp(5)
    e.wait_all(lg=False)
    publish(1, 8, 1, vT, vT+1)
    stamp(6)
    return g if fh == 0 else None

def g_setup(g):
    e(f"""v_lshrrev_b32 v{vT}, 2, v{vL}
    v_and_b32 v{vT}, 4, v{vT}
    v_and_b32 v{vT+1}, 7, v{vL}
    v_xor_b32 v{vT}, v{vT}, v{vT+1}
    v_lshlrev_b32 v{vT}, 4, v{vT}
    s_lshl_b32 s{S_T0}, s{S_C4}, 7
    v_add_u32 v{vT}, s{S_T0}, v{vT}
    v_lshrrev_b32 v{vT+1}, 3, v{vL}
    s_mul_i32 s{S_T0}, s{S_W}, 448
    v_add_u32 v{vT+2}, s{S_T0}, v{vT+1}
    v_lshl_add_u32 v{g['w2']}, v{vT+2}, 10, v{vT}
    v_add_u32 v{g['w2']+1}, {8192-1024}, v{g['w2']}
    v_and_b32 v{vT+1}, 3, v{vT+1}
    v_lshrrev_b32 v{vT+2}, 5, v{vL}
    v_lshl_add_u32 v{vT+1}, v{vT+2}, 3, v{vT+1}
    s_lshl_b32 s{S_T0}, s{S_W}, 7
    v_add_u32 v{vT+1}, s{S_T0}, v{vT+1}
    v_lshl_add_u32 v{g['wo']}, v{vT+1}, 10, v{vT}
    v_add_u32 v{g['wo']+1}, {4096-1024}, v{g['wo']}
    s_lshl_b32 s{S_MG}, s{S_W}, 11""")

def g_dma(g, s):
    gam = RING[s % NRING]
    if s < 28: vv, R, k = g['w2'], R_W2, s
    else:      vv, R, k = g['wo'], R_WO, s - 28
    e(f"s_mov_b32 s{S_T4}, {16384*k}")
    e(f"s_add_u32 m0, s{S_MG}, {8192*gam}")
    e(f"buffer_load_dwordx4 v{vv}, {sr(R,4)}, s{S_T4} offen lds")
    g['t'][s] = e(f"buffer_load_dwordx4 v{vv+1}, {sr(R,4)}, s{S_T4} offen offset:1024 lds")

def g_main(g):
    keep = [g['w2'], g['w2']+1, g['wo'], g['wo']+1]
    v.release(g['mark'])
    vF = v.alloc(1); vFt = v.alloc(1)
    vA = v.alloc(2); vR = v.alloc(6)
    acc = v.alloc(64, 4); fa = [v.alloc(8, 4) for _ in range(2)]; ab = v.alloc(8*DACT, 4)
    vB2 = v.alloc(8, 2); vOm = v.alloc(1)
    e(f"""v_and_b32 v{vF}, 15, v{vL}
    v_lshlrev_b32 v{vF}, 2, v{vF}
    s_lshr_b32 s{S_T0}, s{S_R4}, 1
    s_lshl_b32 s{S_T0}, s{S_T0}, 7
    s_add_u32 s{S_T0}, s{S_T0}, {WS_FLG + 4096}
    v_add_u32 v{vF}, s{S_T0}, v{vF}""")
    e(f"""s_mul_i32 s{S_T0}, s{S_R4}, 288
    s_mul_i32 s{S_T1}, s{S_W}, 28
    s_add_u32 s{S_T0}, s{S_T0}, s{S_T1}
    s_lshl_b32 s{S_T0}, s{S_T0}, 10
    s_add_u32 s{S_T0}, s{S_T0}, {WS_ACT}
    v_add_u32 v{vA}, s{S_T0}, v{vL16}
    v_add_u32 v{vA+1}, {144*1024}, v{vA}""")
    e(f"""v_lshrrev_b32 v{vT}, 5, v{vL}
    v_lshlrev_b32 v{vT}, 10, v{vT}
    v_lshrrev_b32 v{vT+1}, 2, v{vL}
    v_and_b32 v{vT+1}, 3, v{vT+1}
    v_lshl_add_u32 v{vT}, v{vT+1}, 7, v{vT}
    v_and_b32 v{vT+1}, 2, v{vT+1}
    v_lshl_add_u32 v{vT}, v{vT+1}, 5, v{vT}
    v_and_b32 v{vT+1}, 16, v{vL}
    v_lshl_add_u32 v{vT}, v{vT+1}, 1, v{vT}
    v_and_b32 v{vT+1}, 3, v{vL}
    v_lshl_add_u32 v{vT}, v{vT+1}, 3, v{vT}
    v_add_u32 v{vR}, s{S_MG}, v{vT}
    v_xor_b32 v{vR+1}, 64, v{vR}
    v_add_u32 v{vR+2}, 49152, v{vR}
    v_add_u32 v{vR+3}, 49152, v{vR+1}
    v_add_u32 v{vR+4}, 98304, v{vR}
    v_add_u32 v{vR+5}, 98304, v{vR+1}""")
    e(f"""s_and_b32 s{S_T0}, s{S_W}, 1
    s_lshl_b32 s{S_T0}, s{S_T0}, 6
    s_lshl_b32 s{S_T1}, s{S_C4}, 7
    s_add_u32 s{S_T0}, s{S_T0}, s{S_T1}
    v_lshrrev_b32 v{vT}, 5, v{vL}
    v_lshlrev_b32 v{vT}, 3, v{vT}
    v_add_u32 v{vT}, s{S_T0}, v{vT}""")
    for gi in range(4): e(f"global_load_dwordx2 {vr(vB2+2*gi,2)}, v{vT}, {sr(P_B2,2)} offset:{16*gi}")
    poll(vF, vFt)
    stamp(7)
    at = {}
    def act_load(s):
        sl = ab + 8*(s % DACT)
        k = s
        if s == 28:
            e(f"""s_mul_i32 s{S_T0}, s{S_W}, {-20*1024}
            s_add_u32 s{S_T0}, s{S_T0}, {(112-28)*1024}
            v_add_u32 v{vA}, s{S_T0}, v{vA}
            v_add_u32 v{vA+1}, s{S_T0}, v{vA+1}""")
        if s % 4 == 0: e(f"s_mov_b32 s{S_T3}, {4096*(s//4)}")
        e(f"buffer_load_dwordx4 {vr(sl,4)}, v{vA}, {sr(R_WS,4)}, s{S_T3} offen offset:{1024*(s%4)} sc1")
        at[s] = e(f"buffer_load_dwordx4 {vr(sl+4,4)}, v{vA+1}, {sr(R_WS,4)}, s{S_T3} offen offset:{1024*(s%4)} sc1")
    rt = {}
    def tr_reads(s):
        gam = RING[s % NRING]; win = gam // 6; off = 8192*gam - 49152*win
        e.wait(vm=g['t'][s])
        for ch in range(2):
            for h2 in range(2):
                rt[s] = e(f"ds_read_b64_tr_b16 {vr(fa[s%2]+4*ch+2*h2,2)}, v{vR+2*win+ch} offset:{off+512*h2}")
    for s in range(DACT): act_load(s)
    e(f"""s_lshr_b32 s{S_T0}, s{S_W}, 1
    s_lshl_b32 s{S_T0}, s{S_T0}, 7
    s_lshl_b32 s{S_T1}, s{S_R4}, 8
    s_add_u32 s{S_T0}, s{S_T0}, s{S_T1}
    s_add_u32 s{S_T0}, s{S_T0}, {WS_OMG}
    v_and_b32 v{vT}, 31, v{vL}
    v_lshlrev_b32 v{vT}, 2, v{vT}
    v_add_u32 v{vF}, 4096, v{vF}""")
    e(f"buffer_load_dword v{vOm}, v{vT}, {sr(R_WS,4)}, s{S_T0} offen sc1")
    tr_reads(0)
    tf = None
    for s in range(36):
        if s + 1 < 36: tr_reads(s+1)
        e.wait(vm=at[s], lg=rt[s])
        sl = ab + 8*(s % DACT)
        for ch in range(2):
            for th in range(2):
                a = acc + 16*(2*th + ch)
                e(f"v_mfma_f32_32x32x16_bf16 {vr(a,16)}, {vr(fa[s%2]+4*ch,4)}, {vr(sl+4*th,4)}, {'0' if s == 0 else vr(a,16)}")
        if s == 28 - 2*DACT:
            tf = e(f"buffer_load_dword v{vFt}, v{vF}, {sr(R_WS,4)}, 0 offen sc1")
        if s + DACT == 28:
            stamp(8)
            poll(vF, vFt, tf)
            stamp(9)
        if s + DACT < 36: act_load(s + DACT)
        if s + NRING < 36: g_dma(g, s + NRING)
    stamp(10)
    vW = v.alloc(1); red = v.alloc(48, 4)
    e(f"""s_lshl_b32 s{S_T0}, s{S_W}, 14
    v_add_u32 v{vW}, s{S_T0}, v{vL16}""")
    e.wait_all()
    e("s_barrier")
    for q in range(4):
        for gi in range(4):
            e(f"ds_write_b128 v{vW}, {vr(acc+16*q+4*gi,4)} offset:{4096*q+1024*gi}")
    e.wait_all(vm=False)
    e("s_barrier")
    e(f"""s_lshl_b32 s{S_T0}, s{S_W}, 12
    v_add_u32 v{vW}, s{S_T0}, v{vL16}""")
    fin = acc
    tks = []
    for p in range(4):
        dst = fin if p == 0 else red + 16*(p-1)
        for gi in range(4):
            tks.append(e(f"ds_read_b128 {vr(dst+4*gi,4)}, v{vW} offset:{16384*p+1024*gi}"))
    bb = v.alloc(4)
    for p in range(1, 4):
        e.wait(lg=tks[4*p+3])
        for i in range(16): e(f"v_add_f32 v{fin+i}, v{fin+i}, v{red+16*(p-1)+i}")
    for gi in range(4):
        e(f"""v_lshlrev_b32 v{bb}, 16, v{vB2+2*gi}
        v_and_b32 v{bb+1}, 0xffff0000, v{vB2+2*gi}
        v_lshlrev_b32 v{bb+2}, 16, v{vB2+2*gi+1}
        v_and_b32 v{bb+3}, 0xffff0000, v{vB2+2*gi+1}""")
        for c in range(4): e(f"v_fma_f32 v{fin+4*gi+c}, v{vOm}, v{bb+c}, v{fin+4*gi+c}")
    P = red
    for i in range(8): e(f"v_cvt_pk_bf16_f32 v{P+i}, v{fin+2*i}, v{fin+2*i+1}")
    e(f"""s_lshr_b32 s{S_T0}, s{S_W}, 1
    s_lshl_b32 s{S_T0}, s{S_T0}, 5
    s_lshl_b32 s{S_T1}, s{S_R4}, 6
    s_add_u32 s{S_T0}, s{S_T0}, s{S_T1}
    s_lshl_b32 s{S_T0}, s{S_T0}, 10
    s_lshl_b32 s{S_T1}, s{S_C4}, 7
    s_add_u32 s{S_T0}, s{S_T0}, s{S_T1}
    s_and_b32 s{S_T1}, s{S_W}, 1
    s_lshl_b32 s{S_T1}, s{S_T1}, 6
    s_add_u32 s{S_T0}, s{S_T0}, s{S_T1}
    v_and_b32 v{vT}, 31, v{vL}
    v_lshlrev_b32 v{vT}, 10, v{vT}
    v_lshrrev_b32 v{vT+1}, 5, v{vL}
    v_lshl_add_u32 v{vT}, v{vT+1}, 4, v{vT}
    v_permlane32_swap_b32 v{P}, v{P+2}
    v_permlane32_swap_b32 v{P+1}, v{P+3}
    v_permlane32_swap_b32 v{P+4}, v{P+6}
    v_permlane32_swap_b32 v{P+5}, v{P+7}
    buffer_store_dwordx4 {vr(P,4)}, v{vT}, {sr(R_OUT,4)}, s{S_T0} offen
    buffer_store_dwordx4 {vr(P+4,4)}, v{vT}, {sr(R_OUT,4)}, s{S_T0} offen offset:32""")
    stamp(11)
    e("s_endpgm")

def a_main():
    v.release(common_mark)
    S_HEAD, S_TQ, S_KB, S_NV = S_R4, S_C4, S_MX, S_MW
    vF = v.alloc(1); vFt = v.alloc(1); vVo = v.alloc(1); vGt = v.alloc(2); vM = v.alloc(2); vPM = v.alloc(8)
    K = v.alloc(40, 4); Vv = v.alloc(80, 4); Q = v.alloc(8, 4)
    D = [v.alloc(16, 4) for _ in range(2)]; Mg = v.alloc(16, 4); C = v.alloc(16, 4); O = v.alloc(16, 4)
    Pb = [v.alloc(8, 4) for _ in range(2)]
    e(f"""s_and_b32 s{S_T0}, s{S_TG}, 1
    s_lshl_b32 s{S_HEAD}, s{S_CB}, 1
    s_add_u32 s{S_HEAD}, s{S_HEAD}, s{S_T0}
    s_and_b32 s{S_T0}, s{S_TG}, 2
    s_lshl_b32 s{S_TQ}, s{S_RB}, 2
    s_add_u32 s{S_TQ}, s{S_TQ}, s{S_T0}""")
    for kind in range(3):
        e(f"""s_add_u32 s{S_T0}, s{S_HEAD}, {32*kind}
        s_mul_i32 s{S_T0}, s{S_T0}, 43
        s_lshr_b32 s{S_T0}, s{S_T0}, 8
        s_lshl_b32 s{S_T0}, s{S_T0}, 2
        s_add_u32 s{S_T0}, s{S_T0}, {WS_FLG}""")
        for d in range(1 if kind == 0 else 3):
            e(f"""s_sub_i32 s{S_T1}, s{S_RB}, {d}
            s_max_i32 s{S_T1}, s{S_T1}, 0
            s_lshl_b32 s{S_T1}, s{S_T1}, 7
            s_add_u32 s{S_T1}, s{S_T1}, s{S_T0}""")
            if kind == 0: e(f"v_mov_b32 v{vF}, s{S_T1}")
            else: e(f"v_writelane_b32 v{vF}, s{S_T1}, {1 + 3*(kind-1) + d}")
    tf = e(f"buffer_load_dword v{vFt}, v{vF}, {sr(R_WS,4)}, 0 offen sc1")
    e(f"""v_and_b32 v{vT}, 31, v{vL}
    s_and_b32 s{S_T0}, s{S_TG}, 2
    s_lshl_b32 s{S_T0}, s{S_T0}, 9
    s_add_u32 s{S_T0}, s{S_T0}, {L_STATS + 12}
    v_lshlrev_b32 v{vT+1}, 4, v{vT}
    v_add_u32 v{vT+1}, s{S_T0}, v{vT+1}
    ds_read_b32 v{vGt}, v{vT+1}
    ds_read_b32 v{vGt+1}, v{vT+1} offset:512""")
    e(f"""v_lshrrev_b32 v{vT+2}, 5, v{vL}
    v_lshlrev_b32 v{vT+3}, 2, v{vT+2}
    v_sub_u32 v{vT+3}, v{vT}, v{vT+3}""")
    for r in range(16):
        e(f"v_cmp_le_i32 s[{S_MASK+2*r}:{S_MASK+2*r+1}], {8*(r//4) + r%4}, v{vT+3}")
    e(f"v_mov_b32 v{vT+4}, 0xffff\nv_mov_b32 v{vT+5}, 0xffff0000")
    for i in range(8):
        e(f"""v_cndmask_b32 v{vPM+i}, 0, v{vT+4}, s[{S_MASK+4*i}:{S_MASK+4*i+1}]
        v_cndmask_b32 v{vVo}, 0, v{vT+5}, s[{S_MASK+4*i+2}:{S_MASK+4*i+3}]
        v_or_b32 v{vPM+i}, v{vPM+i}, v{vVo}""")
    e(f"""v_and_b32 v{vVo}, 15, v{vL}
    v_lshl_add_u32 v{vVo}, v{vT+2}, 4, v{vVo}
    v_lshlrev_b32 v{vVo}, 4, v{vVo}""")
    for i in range(80): e(f"v_mov_b32 v{Vv+i}, 0x3f803f80")
    e(f"""s_lshl_b32 s{S_KB}, s{S_HEAD}, 6
    s_add_u32 s{S_KB}, s{S_KB}, s{S_TQ}
    s_lshl_b32 s{S_KB}, s{S_KB}, 10""")
    e.wait_all(vm=False)
    poll(vF, vFt, tf)
    stamp(7)
    e(f"s_cmp_lt_u32 s{S_RB}, 2\ns_cbranch_scc1 L_att_edge")
    st0 = e.state()
    for edge in (False, True):
        if edge:
            e.restore(st0); e("L_att_edge:")
            e(f"s_sub_u32 s{S_NV}, 8, s{S_TQ}")
        def guard(i):
            if not edge or i >= 8: return lambda: None
            L = e.newlabel("L_sk")
            e.flush_haz()
            e(f"s_cmp_gt_u32 s{S_NV}, {i}\ns_cbranch_scc1 {L}")
            def close():
                e.flush_haz(); e(f"{L}:")
            return close
        kt = {}; vt = {}; qt = {}
        def ldq(u): qt[u] = e(f"buffer_load_dwordx4 {vr(Q+4*u,4)}, v{vL16}, {sr(R_WS,4)}, s{S_KB} offen offset:{1024*u} sc1")
        def ldk(i):
            cl = guard(i)
            e(f"s_add_u32 s{S_T0}, s{S_KB}, {(32*64 - 8 + i)*1024}")
            kt[i] = e(f"buffer_load_dwordx4 {vr(K+4*i,4)}, v{vL16}, {sr(R_WS,4)}, s{S_T0} offen sc1")
            cl()
        def ldv(i):
            cl = guard(i)
            e(f"s_add_u32 s{S_T0}, s{S_KB}, {(64*64 - 8 + i)*1024}")
            e(f"buffer_load_dwordx4 {vr(Vv+8*i,4)}, v{vVo}, {sr(R_WS,4)}, s{S_T0} offen sc1")
            vt[i] = e(f"buffer_load_dwordx4 {vr(Vv+8*i+4,4)}, v{vVo}, {sr(R_WS,4)}, s{S_T0} offen offset:512 sc1")
            cl()
        ldq(0); ldk(8); ldk(0)
        for i in range(1, 8): ldk(i)
        ldq(1); ldk(9)
        e("s_mov_b32 exec_lo, 0xffff\ns_mov_b32 exec_hi, 0xffff")
        for i in [1, 2, 3, 4, 5, 6, 7, 0, 8, 9]: ldv(i)
        e("s_mov_b64 exec, -1")
        if edge: e.wait_all(lg=False)
        for u in range(2):
            q = vr(Q+4*u, 4)
            def qk(i, dst, c):
                e.wait(vm=max(kt[i], qt[u]))
                e(f"v_mfma_f32_32x32x16_bf16 {vr(dst,16)}, {vr(K+4*i,4)}, {q}, {c}")
            far, diag = u, u + 8
            mids = list(range(u+1, u+8))
            qk(diag, D[0], "0")
            if edge:
                for r in range(16): e(f"v_mov_b32 v{D[1]+r}, 0xff800000")
                cl = guard(far); qk(far, D[1], "0"); cl()
            else:
                qk(far, D[1], "0")
                qk(mids[0], C, "0")
            for r in range(16):
                e(f"v_cndmask_b32 v{Mg+r}, v{D[1]+r}, v{D[0]+r}, s[{S_MASK+2*r}:{S_MASK+2*r+1}]")
            bufs = [C, D[0], D[1]]
            if not edge: qk(mids[1], D[0], "0")
            e(f"v_max_f32 v{vM}, v{Mg}, v{Mg+1}\nv_max_f32 v{vM+1}, v{Mg+2}, v{Mg+3}")
            for r in range(4, 16, 4):
                e(f"v_max3_f32 v{vM}, v{vM}, v{Mg+r}, v{Mg+r+1}\nv_max3_f32 v{vM+1}, v{vM+1}, v{Mg+r+2}, v{Mg+r+3}")
            for n, i in enumerate(mids):
                b = bufs[n % 3]
                cl = guard(i)
                if edge: qk(i, b, "0")
                elif n + 2 < 7: qk(mids[n+2], bufs[(n+2) % 3], "0")
                for r in range(0, 16, 4):
                    e(f"v_max3_f32 v{vM}, v{vM}, v{b+r}, v{b+r+1}\nv_max3_f32 v{vM+1}, v{vM+1}, v{b+r+2}, v{b+r+3}")
                cl()
            e(f"""v_max_f32 v{vM}, v{vM}, v{vM+1}
            v_mov_b32 v{vM+1}, v{vM}
            v_permlane32_swap_b32 v{vM}, v{vM+1}
            v_max_f32 v{vM}, v{vM}, v{vM+1}""")
            for r in range(16): e(f"v_sub_f32 v{C+r}, 0, v{vM}")
            first = [True]
            def pv(i, P):
                e.wait(vm=vt[i])
                for s in range(2):
                    e(f"v_mfma_f32_32x32x16_bf16 {vr(O,16)}, {vr(Vv+8*i+4*s,4)}, {vr(P+4*s,4)}, {'0' if first[0] else vr(O,16)}")
                    first[0] = False
            if not edge: qk(mids[0], D[0], vr(C, 16))
            for r in range(16): e(f"v_add_f32 v{Mg+r}, v{Mg+r}, v{C}")
            for r in range(16): e(f"v_exp_f32 v{Mg+r}, v{Mg+r}")
            for i in range(8): e(f"v_cvt_pk_bf16_f32 v{Mg+i}, v{Mg+2*i}, v{Mg+2*i+1}")
            for i in range(8): e(f"v_and_b32 v{Mg+8+i}, v{Mg+i}, v{vPM+i}")
            for i in range(8): e(f"v_xor_b32 v{Mg+i}, v{Mg+i}, v{Mg+8+i}")
            if edge:
                pv(diag, Mg+8)
                cl = guard(far); pv(far, Mg); cl()
            for n, i in enumerate(mids):
                b = D[n % 2]; P = Pb[n % 2]
                cl = guard(i)
                if edge: qk(i, b, vr(C, 16))
                elif n + 1 < 7: qk(mids[n+1], D[(n+1) % 2], vr(C, 16))
                for r in range(16): e(f"v_exp_f32 v{b+r}, v{b+r}")
                for k in range(8): e(f"v_cvt_pk_bf16_f32 v{P+k}, v{b+2*k}, v{b+2*k+1}")
                pv(i, P)
                cl()
            if not edge:
                pv(far, Mg); pv(diag, Mg+8)
            e(f"""s_add_u32 s{S_T0}, s{S_TQ}, {u}
            s_mul_i32 s{S_T0}, s{S_T0}, 144
            s_add_u32 s{S_T0}, s{S_T0}, s{S_HEAD}
            s_add_u32 s{S_T0}, s{S_T0}, 112
            s_lshl_b32 s{S_T0}, s{S_T0}, 10
            s_add_u32 s{S_T0}, s{S_T0}, {WS_ACT}
            v_rcp_f32 v{vM}, v{O+8}
            v_mul_f32 v{vM}, v{vM}, v{vGt+u}""")
            for r in range(8): e(f"v_mul_f32 v{O+r}, v{O+r}, v{vM}")
            P = Pb[1]
            for k in range(4): e(f"v_cvt_pk_bf16_f32 v{P+4*u+k}, v{O+2*k}, v{O+2*k+1}")
            e(f"buffer_store_dwordx4 {vr(P+4*u,4)}, v{vL16}, {sr(R_WS,4)}, s{S_T0} offen sc1")
            stamp(8+u)
        e.wait_all(lg=False)
        publish(2, 4, 2, vT, vT+1)
        stamp(10)
        e("s_endpgm")

g = stage_a(0)
g_main(g)
e.restore(common_state); v.release(common_mark)
e("L_streamA:")
stage_a(1)
a_main()
e("L_end:")
e("s_endpgm")

hdr = open("gated_mix__sliding_block__mixer_channel_mlp__prompt.s.ref").read().split("; Override launch")[0] if len(sys.argv) > 1 and "--nohdr" not in sys.argv else ""
txt = hdr + f"""; Generated by my own generator script (single persistent launch; flags in d_ws tagged by a per-launch nonce).
; @launch grid=(256,1,1) block=(512,1,1) lds=163840
.amdgcn_target "amdgcn-amd-amdhsa--gfx950"
.text
.globl {NAME}
.p2align 8
.type {NAME},@function
{NAME}:
""" + e.text() + f""".section .rodata,"a"
.p2align 6
.amdhsa_kernel {NAME}
  .amdhsa_next_free_vgpr 256
  .amdhsa_next_free_sgpr 102
  .amdhsa_accum_offset 256
  .amdhsa_group_segment_fixed_size 0
  .amdhsa_kernarg_size 96
  .amdhsa_user_sgpr_count 2
  .amdhsa_user_sgpr_kernarg_segment_ptr 1
  .amdhsa_system_sgpr_workgroup_id_x 1
.end_amdhsa_kernel
"""
out = sys.argv[1]
open(out, "w").write(txt)
print("vgpr high water", v.hw, "nops", e.nops, "lines", txt.count("\n"), file=sys.stderr)
```

```python
import sys, math, struct
from emit import *

NAME = "gated_mix__sliding_block__mixer_channel_mlp__prompt_kernel"
STAMP = "--stamp" in sys.argv
ECHO = [a.split("=")[1] for a in sys.argv if a.startswith("--echo=")]
ECHO = ECHO[0] if ECHO else None

def f2u(x): return struct.unpack("<I", struct.pack("<f", x))[0]
LOG2E = 1.4426950408889634
QSCALE = f2u(0.25 * LOG2E)
GC0 = -2.0 * math.sqrt(2.0 / math.pi) * LOG2E
GC1 = GC0 * 0.044715

WS_QKV = 0
WS_ACT = 8 << 20
WS_OMG = 20 << 20
WS_FLG = 21 << 20
WS_DBG = 24 << 20
WS_SIZE = 32 << 20
L_X, L_WQ, L_WH, L_MISC = 0, 49152, 98304, 147456
L_GW = L_MISC; L_ONES = L_MISC + 1152; L_STATS = L_MISC + 2304; L_CS = L_MISC + 4352; L_CNT = L_MISC + 4864
L_VSCR = L_MISC + 8192
RING = [4, 5, 10, 11, 16, 17, 0, 1, 6, 7, 12, 13, 2, 3, 8, 9, 14, 15]
NRING = 18
DACT = 8
SPIN = 200000

P_X, P_WQKV, P_WO, P_W1, P_B1, P_W2, P_B2, P_GW, P_OUT, P_DBG, P_WS = 4, 6, 8, 12, 14, 16, 18, 20, 22, 24, 26
R_X, R_WA, R_WS, R_W2, R_WO, R_OUT = 28, 32, 36, 40, 44, 48
S_W, S_TG, S_RB, S_CB, S_R4, S_C4, S_NONCE = 52, 53, 54, 55, 56, 57, 58
S_T0, S_T1, S_T2, S_T3, S_T4 = 59, 60, 61, 62, 63
S_MASK = 64
S_MX, S_MW, S_MG = 96, 97, 98
S_SPIN = 99
S_EX = 100
S_TJ = 64
S_C1, S_C2, S_C3 = 68, 70, 72
S_ST = 10

e = Em()
stamp_n = [0]
stamp_names = {}
def stamp(name, real=False):
    if ECHO == name and cur_stream[0] == "G":
        e("s_memtime s[78:79]")
    if not STAMP: return
    d = stamp_names.setdefault(cur_stream[0], [])
    if name in d: idx = d.index(name)
    else: d.append(name); idx = len(d) - 1
    assert idx < 64
    e(f"""{'s_memrealtime' if real else 's_memtime'} s[{S_ST}:{S_ST+1}]
    s_waitcnt lgkmcnt(0)
    v_writelane_b32 v255, s{S_ST}, {idx}""")
    e.lg_done = e.lgq
def stamp_flush():
    if ECHO and cur_stream[0] == "G":
        stamp("end")
        L = e.newlabel("L_echo")
        e(f"""s_memtime s[80:81]
        s_waitcnt lgkmcnt(0)
        s_sub_u32 s78, s78, s76
        s_min_u32 s78, s78, 400000
        {L}:
        s_memtime s[82:83]
        s_waitcnt lgkmcnt(0)
        s_sub_u32 s82, s82, s80
        s_cmp_lt_u32 s82, s78
        s_cbranch_scc1 {L}""")
    if not STAMP: return
    stamp("end"); stamp("rt_end", True)
    e(f"""s_lshl_b32 s{S_ST}, s2, 3
    s_add_u32 s{S_ST}, s{S_ST}, s{S_W}
    s_lshl_b32 s{S_ST}, s{S_ST}, 8
    s_add_u32 s{S_ST}, s{S_ST}, {WS_DBG}
    v_lshlrev_b32 v254, 2, v{vL}
    buffer_store_dword v255, v254, {sr(R_WS,4)}, s{S_ST} offen""")
cur_stream = ["G"]

def srd(r, p, size):
    e(f"""s_mov_b32 s{r}, s{p}
    s_mov_b32 s{r+1}, s{p+1}
    s_mov_b32 s{r+2}, {size}
    s_mov_b32 s{r+3}, 0x20000""")

def publish(cnt_idx, total, stage, vt0, vt1):
    L = e.newlabel("L_pub")
    st = e.state()
    e(f"""s_mov_b64 exec, 1
    v_mov_b32 v{vt0}, {L_CNT + 4*cnt_idx}
    v_mov_b32 v{vt1}, 1
    ds_add_rtn_u32 v{vt1}, v{vt0}, v{vt1}
    s_lshl_b32 s{S_T0}, s{S_RB}, 7
    s_lshl_b32 s{S_T1}, s{S_CB}, 2
    s_add_u32 s{S_T0}, s{S_T0}, s{S_T1}
    s_add_u32 s{S_T0}, s{S_T0}, {WS_FLG + stage*4096}
    v_mov_b32 v{vt0}, 0""")
    e.wait_all(vm=False)
    e(f"""v_readfirstlane_b32 s{S_T1}, v{vt1}
    v_mov_b32 v{vt1}, s{S_NONCE}
    s_cmp_lg_u32 s{S_T1}, {total-1}
    s_cbranch_scc1 {L}""")
    vmq = e.vmq
    e(f"buffer_store_dword v{vt1}, v{vt0}, {sr(R_WS,4)}, s{S_T0} offen sc1")
    e.vmq = vmq
    e(f"{L}:")
    e("s_mov_b64 exec, -1")

def poll(vaddr, vtmp, first_ticket=None):
    L = e.newlabel("L_poll"); Lc = e.newlabel("L_pchk"); Lo = e.newlabel("L_pout")
    e(f"s_mov_b32 s{S_SPIN}, {SPIN}")
    if first_ticket is not None:
        e.wait(vm=first_ticket)
        e(f"s_branch {Lc}")
    st = e.state()
    e(f"{L}:")
    e(f"buffer_load_dword v{vtmp}, v{vaddr}, {sr(R_WS,4)}, 0 offen sc1")
    e("s_waitcnt vmcnt(0)")
    e(f"{Lc}:")
    e(f"""v_cmp_ne_u32 vcc, s{S_NONCE}, v{vtmp}
    s_sub_u32 s{S_SPIN}, s{S_SPIN}, 1
    s_cmp_eq_u32 s{S_SPIN}, 0
    s_cbranch_scc1 {Lo}
    s_nop 2
    s_cbranch_vccnz {L}
    {Lo}:""")
    if first_ticket is not None:
        e.vmq, e.vm_done = st[0], st[2]
    else:
        e.vm_done = e.vmq

v = Regs(1, 254 if STAMP else 256)
vL = v.alloc()
vL16 = v.alloc()
vXs = v.alloc(2)
vT = v.alloc(6, 2)
if ECHO: e("s_memtime s[76:77]")
e(f"""s_cmp_ge_u32 s2, 256
s_cbranch_scc1 L_end
s_load_dwordx16 s[4:19], s[0:1], 0
s_load_dwordx8 s[20:27], s[0:1], 64
v_lshrrev_b32 v{vT}, 6, v0
v_and_b32 v{vL}, 63, v0
v_readfirstlane_b32 s{S_W}, v{vT}
v_lshlrev_b32 v{vL16}, 4, v{vL}
s_and_b32 s{S_T0}, s2, 1
s_lshl_b32 s{S_T0}, s{S_T0}, 3
s_lshr_b32 s{S_T1}, s2, 3
s_and_b32 s{S_T2}, s{S_T1}, 7
s_add_u32 s{S_RB}, s{S_T0}, s{S_T2}
s_lshr_b32 s{S_T0}, s2, 1
s_and_b32 s{S_T0}, s{S_T0}, 3
s_lshl_b32 s{S_T0}, s{S_T0}, 2
s_lshr_b32 s{S_T2}, s2, 6
s_add_u32 s{S_CB}, s{S_T0}, s{S_T2}
s_and_b32 s{S_T0}, s2, 7
s_lshl_b32 s{S_T0}, s{S_T0}, 2
s_and_b32 s{S_T2}, s{S_T1}, 3
s_add_u32 s{S_R4}, s{S_T0}, s{S_T2}
s_lshr_b32 s{S_C4}, s{S_T1}, 2
s_and_b32 s{S_TG}, s{S_W}, 3
""")
e(f"""s_lshl_b32 s{S_T0}, s{S_RB}, 7
s_lshl_b32 s{S_T1}, s{S_W}, 4
s_add_u32 s{S_T0}, s{S_T0}, s{S_T1}
v_lshrrev_b32 v{vT}, 3, v{vL}
v_add_u32 v{vT}, s{S_T0}, v{vT}
v_lshlrev_b32 v{vT}, 10, v{vT}
v_lshrrev_b32 v{vT+1}, 4, v{vL}
v_and_b32 v{vT+2}, 7, v{vL}
v_xor_b32 v{vT+2}, v{vT+2}, v{vT+1}
v_lshlrev_b32 v{vT+2}, 4, v{vT+2}
v_add_u32 v{vXs}, v{vT}, v{vT+2}
v_xor_b32 v{vT+2}, 64, v{vT+2}
v_add_u32 v{vXs+1}, v{vT}, v{vT+2}
v_add_u32 v{vXs+1}, {8192-1024}, v{vXs+1}
s_lshl_b32 s{S_MX}, s{S_W}, 11
s_cmp_ge_u32 s{S_W}, 4
s_cbranch_scc1 L_streamA
""")
common_mark = v.mark()
common_state = e.state()

def kperm_code(vrho, vk, vt):
    e(f"""v_and_b32 v{vk}, 0x23, v{vrho}
    v_lshrrev_b32 v{vt}, 2, v{vrho}
    v_and_b32 v{vt}, 3, v{vt}
    v_lshl_add_u32 v{vk}, v{vt}, 3, v{vk}
    v_lshrrev_b32 v{vt}, 4, v{vrho}
    v_and_b32 v{vt}, 1, v{vt}
    v_lshl_add_u32 v{vk}, v{vt}, 2, v{vk}""")

def stage_a(fh):
    NH = 4 if fh == 0 else 3
    NW = 3 if fh == 0 else 4
    g = None
    if fh == 0:
        g = {'w2': v.alloc(2), 'wo': v.alloc(2), 't': {}}
        g['mark'] = v.mark()
    vWs = v.alloc(4)
    for j in range(NW):
        if fh == 0:
            e(f"""s_mul_i32 s{S_T0}, s{S_TG}, 192
            s_add_u32 s{S_T0}, s{S_T0}, {64*j}
            v_add_u32 v{vT}, s{S_T0}, v{vL}
            v_mul_u32_u24 v{vT+1}, 43691, v{vT}
            v_lshrrev_b32 v{vT+1}, 19, v{vT+1}
            v_mul_u32_u24 v{vT+2}, 12, v{vT+1}
            v_sub_u32 v{vT+2}, v{vT}, v{vT+2}""")
            kperm_code(vT+1, vT+3, vT+4)
            e(f"""v_lshrrev_b32 v{vT+4}, 1, v{vT+1}
            v_and_b32 v{vT+4}, 2, v{vT+4}
            v_xor_b32 v{vT+2}, v{vT+2}, v{vT+4}
            v_mul_u32_u24 v{vT+3}, 3072, v{vT+3}
            v_lshl_add_u32 v{vT+3}, v{vT+2}, 4, v{vT+3}
            s_mul_i32 s{S_T0}, s{S_CB}, 192
            s_sub_u32 s{S_T0}, s{S_T0}, {1024*j}
            v_add_u32 v{vWs+j}, s{S_T0}, v{vT+3}""")
        else:
            e(f"""s_lshl_b32 s{S_T0}, s{S_TG}, 8
            s_add_u32 s{S_T0}, s{S_T0}, {64*j}
            v_add_u32 v{vT}, s{S_T0}, v{vL}
            v_mul_u32_u24 v{vT+1}, 4682, v{vT}
            v_lshrrev_b32 v{vT+1}, 16, v{vT+1}
            v_mul_u32_u24 v{vT+2}, 14, v{vT+1}
            v_sub_u32 v{vT+2}, v{vT}, v{vT+2}""")
            kperm_code(vT+1, vT+3, vT+4)
            e(f"""v_mul_u32_u24 v{vT+3}, 3584, v{vT+3}
            v_lshl_add_u32 v{vT+3}, v{vT+2}, 4, v{vT+3}
            v_and_b32 v{vT+4}, 64, v{vT+1}
            v_lshl_add_u32 v{vT+3}, v{vT+4}, 20, v{vT+3}
            s_mul_i32 s{S_T0}, s{S_CB}, 224
            s_sub_u32 s{S_T0}, s{S_T0}, {1024*j}
            v_add_u32 v{vWs+j}, s{S_T0}, v{vT+3}""")
    if fh == 0: e(f"s_mul_i32 s{S_MW}, s{S_TG}, 3072\ns_add_u32 s{S_MW}, s{S_MW}, {L_WQ}")
    else:       e(f"s_lshl_b32 s{S_MW}, s{S_TG}, 12\ns_add_u32 s{S_MW}, s{S_MW}, {L_WH}")
    e("s_waitcnt lgkmcnt(0)")
    stamp("rt0", True); stamp("t0")
    srd(R_X, P_X, 2048*512*2)
    if fh == 0: srd(R_WA, P_WQKV, 512*1536*2)
    else:       srd(R_WA, P_W1, 512*1792*2)
    wstride = 3072 if fh == 0 else 3584
    dma_t = {}
    def dma_chunk(c):
        s = c % 3
        e(f"s_movk_i32 s{S_T0}, {128*c}")
        e(f"s_add_u32 m0, s{S_MX}, {L_X + 16384*s}")
        e(f"buffer_load_dwordx4 v{vXs}, {sr(R_X,4)}, s{S_T0} offen lds")
        e(f"buffer_load_dwordx4 v{vXs+1}, {sr(R_X,4)}, s{S_T0} offen offset:1024 lds")
        e(f"s_mov_b32 s{S_T1}, {64*wstride*c}")
        e(f"s_add_u32 m0, s{S_MW}, {16384*s}")
        for j in range(NW):
            t = e(f"buffer_load_dwordx4 v{vWs+j}, {sr(R_WA,4)}, s{S_T1} offen offset:{1024*j} lds")
        dma_t[c] = t
    if fh == 1:
        L1 = e.newlabel()
        e(f"""s_cmp_lg_u32 s{S_W}, 4
        s_cbranch_scc1 {L1}
        s_mov_b32 m0, {L_GW}""")
        q = e.vmq
        e(f"global_load_lds_dwordx4 v{vL16}, {sr(P_GW,2)}")
        e.vmq = q
        e(f"{L1}:")
    dma_chunk(0)
    dma_chunk(1)
    dma_chunk(2)
    srd(R_WS, P_WS, WS_SIZE)
    stamp("dma_issued")
    if fh == 1:
        L1 = e.newlabel()
        e(f"""s_cmp_lg_u32 s{S_W}, 5
        s_cbranch_scc1 {L1}
        v_mov_b32 v{vT}, 0x3f803f80
        v_mov_b32 v{vT+1}, 0x3f803f80
        v_lshlrev_b32 v{vT+2}, 3, v{vL}
        v_add_u32 v{vT+2}, {L_ONES}, v{vT+2}""")
        q = e.lgq
        e(f"""ds_write_b64 v{vT+2}, v[{vT}:{vT+1}]
        ds_write_b64 v{vT+2}, v[{vT}:{vT+1}] offset:512
        v_mov_b32 v{vT+3}, 0
        v_lshlrev_b32 v{vT+4}, 2, v{vL}
        v_add_u32 v{vT+4}, {L_CNT}, v{vT+4}
        ds_write_b32 v{vT+4}, v{vT+3}
        s_waitcnt lgkmcnt(0)""")
        e.lgq = q
        e(f"{L1}:")
    else:
        L1 = e.newlabel()
        e(f"""s_or_b32 s{S_T0}, s2, s{S_W}
        s_cmp_lg_u32 s{S_T0}, 0
        s_cbranch_scc1 {L1}
        s_memrealtime s[{S_EX}:{S_EX+1}]
        s_waitcnt lgkmcnt(0)
        s_or_b32 s{S_T0}, s{S_EX}, 1
        v_mov_b32 v{vT}, s{S_T0}
        v_mov_b32 v{vT+1}, 0""")
        q = e.vmq
        e(f"global_store_dword v{vT+1}, v{vT}, {sr(P_DBG,2)} sc1")
        e.vmq = q
        e(f"{L1}:")
    vXr = v.alloc(2); vWq = v.alloc(2); vWh = v.alloc(4); vGw = v.alloc(1)
    vB1 = v.alloc(8, 2)
    vG = v.alloc(1)
    e(f"""v_lshrrev_b32 v{vG}, 4, v{vL}
    v_and_b32 v{vT}, 15, v{vL}
    v_lshrrev_b32 v{vT+1}, 1, v{vT}
    v_xor_b32 v{vT+1}, v{vT+1}, v{vG}
    v_lshlrev_b32 v{vT+1}, 4, v{vT+1}
    v_lshl_add_u32 v{vT+1}, v{vT}, 7, v{vT+1}
    s_lshl_b32 s{S_T0}, s{S_TG}, 12
    v_add_u32 v{vXr}, s{S_T0}, v{vT+1}
    v_xor_b32 v{vXr+1}, 64, v{vXr}
    v_lshrrev_b32 v{vT+2}, 2, v{vL}
    v_and_b32 v{vT+3}, 3, v{vL}
    v_lshlrev_b32 v{vT+3}, 3, v{vT+3}
    v_mul_u32_u24 v{vT+4}, 192, v{vT+2}
    v_add_u32 v{vT+4}, v{vT+4}, v{vT+3}
    v_add_u32 v{vT+4}, {L_WQ}, v{vT+4}
    v_and_b32 v{vT+5}, 1, v{vG}
    v_lshlrev_b32 v{vT+5}, 5, v{vT+5}
    v_add_u32 v{vWq}, v{vT+4}, v{vT+5}
    v_sub_u32 v{vWq+1}, v{vT+4}, v{vT+5}
    v_mul_u32_u24 v{vT+4}, 224, v{vT+2}
    v_add_u32 v{vT+4}, v{vT+4}, v{vT+3}
    v_add_u32 v{vT+4}, {L_WH}, v{vT+4}""")
    b1t = []
    for j in range(NH):
        if fh == 0:
            e(f"s_xor_b32 s{S_TJ+j}, s{S_TG}, {j}")
        else:
            e(f"""s_add_u32 s{S_TJ+j}, s{S_TG}, {j}
            s_cmp_ge_u32 s{S_TJ+j}, 3
            s_cselect_b32 s{S_T0}, 3, 0
            s_sub_u32 s{S_TJ+j}, s{S_TJ+j}, s{S_T0}
            s_add_u32 s{S_TJ+j}, s{S_TJ+j}, 4""")
        e(f"""s_lshl_b32 s{S_T0}, s{S_TJ+j}, 5
        v_add_u32 v{vWh+j}, s{S_T0}, v{vT+4}
        s_mul_i32 s{S_T1}, s{S_CB}, 224
        s_add_u32 s{S_T0}, s{S_T0}, s{S_T1}
        v_lshlrev_b32 v{vT}, 3, v{vG}
        v_add_u32 v{vT}, s{S_T0}, v{vT}""")
        b1t.append(e(f"global_load_dwordx2 v[{vB1+2*j}:{vB1+2*j+1}], v{vT}, {sr(P_B1,2)}"))
    e(f"""v_and_b32 v{vT}, 1, v{vL}
    v_mul_u32_u24 v{vT}, {L_ONES-L_GW}, v{vT}
    v_lshlrev_b32 v{vT+1}, 4, v{vG}
    v_sub_u32 v{vT+1}, v{vT+1}, v{vT}
    v_add_u32 v{vGw}, {L_ONES}, v{vT+1}""")
    aQ = v.alloc(24, 4); aH = v.alloc(8*NH, 4); aCS = v.alloc(4, 4); aGR = v.alloc(4, 4); aSM = v.alloc(4, 4)
    vOnes = v.alloc(4, 4)
    frag_mark = v.mark()
    fX = [v.alloc(8, 4) for _ in range(2)]
    fW = [v.alloc(4*(3+NH), 4) for _ in range(2)]
    fG = [v.alloc(4, 4) for _ in range(2)]
    for i in range(4): e(f"v_mov_b32 v{vOnes+i}, 0x3f803f80")
    if fh == 0:
        srd(R_W2, P_W2, 1792*512*2); srd(R_WO, P_WO, 512*512*2); srd(R_OUT, P_OUT, 2048*512*2)
        g_setup(g)
    def reads(ks):
        c, kk = divmod(ks, 2); s = c % 3; b = ks % 2
        R = []
        R.append(("x0", f"ds_read_b128 {vr(fX[b],4)}, v{vXr+kk} offset:{L_X+16384*s}"))
        R.append(("x1", f"ds_read_b128 {vr(fX[b]+4,4)}, v{vXr+kk} offset:{L_X+16384*s+2048}"))
        for j in range(3):
            t = 3*fh + j
            for h2 in range(2):
                R.append((f"w{j}", f"ds_read_b64_tr_b16 {vr(fW[b]+4*j+2*h2,2)}, v{vWq+(t&1)} offset:{16384*s+6144*kk+3072*h2+32*t}"))
        for j in range(NH):
            for h2 in range(2):
                R.append((f"w{3+j}", f"ds_read_b64_tr_b16 {vr(fW[b]+12+4*j+2*h2,2)}, v{vWh+j} offset:{16384*s+7168*kk+3584*h2}"))
        R.append(("g", f"ds_read_b128 {vr(fG[b],4)}, v{vGw} offset:{64*ks}"))
        return R
    def mfmas(ks):
        b = ks % 2
        c0 = (lambda r: "0") if ks == 0 else (lambda r: vr(r, 4))
        M = []
        xf = fX[b] + 4*fh
        M.append((("x0", "x1"), f"v_mfma_f32_16x16x32_bf16 {vr(aGR,4)}, {vr(xf,4)}, {vr(xf,4)}, {c0(aGR)}"))
        for j in range(3+NH):
            for f in range(2):
                acc = (aQ + 8*j if j < 3 else aH + 8*(j-3)) + 4*f
                M.append(((f"w{j}", "x0", "x1"), f"v_mfma_f32_16x16x32_bf16 {vr(acc,4)}, {vr(fW[b]+4*j,4)}, {vr(fX[b]+4*f,4)}, {c0(acc)}"))
            if j == 3:
                M.append((("w3",), f"v_mfma_f32_16x16x32_bf16 {vr(aCS,4)}, {vr(fW[b]+12,4)}, {vr(vOnes,4)}, {c0(aCS)}"))
        M.append((("g",), f"v_mfma_f32_16x16x32_bf16 {vr(aSM,4)}, {vr(fG[b],4)}, {vr(xf,4)}, {c0(aSM)}"))
        return M
    tick = {}
    def issue_reads(ks):
        for nm, tx in reads(ks): tick[(ks, nm)] = e(tx)
    def block(ks, extra=None):
        R = reads(ks+1) if ks < 15 else []
        M = mfmas(ks)
        extra = list(extra or [])
        for i, (deps, tx) in enumerate(M):
            e.wait(lg=max(tick[(ks, d)] for d in deps))
            e(tx)
            n = 2 if i < 4 else 1
            for _ in range(n):
                if R:
                    nm, rt = R.pop(0); tick[(ks+1, nm)] = e(rt)
            if extra and i >= 2: extra.pop(0)()
        for nm, rt in R: tick[(ks+1, nm)] = e(rt)
        for x in extra: x()
    e.wait(vm=dma_t[0]); e.wait_all(vm=False)
    e("s_barrier")
    stamp("c0_landed")
    issue_reads(0)
    for c in range(8):
        block(2*c)
        ex = []
        if c < 7:
            stamp(f"b{c}a")
            e.wait(vm=dma_t[c+1]); e.wait_all(vm=False)
            stamp(f"b{c}v")
            e("s_barrier")
            stamp(f"b{c}b")
            if c + 3 < 8: ex = [lambda c=c: dma_chunk(c+3)]
            elif fh == 0: ex = [(lambda s=s: g_dma(g, s)) for s in range(6*(c-5), 6*(c-5)+6)]
        block(2*c+1, ex)
    stamp("kloop_end")
    v.release(frag_mark)
    vN = v.alloc(1); vZ = v.alloc(1)
    e(f"v_mov_b32 v{vZ}, 0")
    tN = e(f"global_load_dword v{vN}, v{vZ}, {sr(P_DBG,2)} sc1")
    w = v.alloc(8, 4)
    e(f"""s_mov_b32 s{S_C1}, 0x22222222
    s_mov_b32 s{S_C1+1}, 0x22222222
    s_mov_b32 s{S_C2}, 0x44444444
    s_mov_b32 s{S_C2+1}, 0x44444444
    s_mov_b32 s{S_C3}, 0x88888888
    s_mov_b32 s{S_C3+1}, 0x88888888
    v_cndmask_b32 v{w+4}, v{aGR}, v{aGR+1}, s[{S_C1}:{S_C1+1}]
    v_cndmask_b32 v{w+4}, v{w+4}, v{aGR+2}, s[{S_C2}:{S_C2+1}]
    v_cndmask_b32 v{w+4}, v{w+4}, v{aGR+3}, s[{S_C3}:{S_C3+1}]
    v_mul_f32 v{w+5}, {f2u(1.0/512)}, v{aSM}
    v_mul_f32 v{w+4}, {f2u(1.0/512)}, v{w+4}
    v_fma_f32 v{w+4}, -v{w+5}, v{w+5}, v{w+4}
    v_max_f32 v{w+4}, 0, v{w+4}
    v_add_f32 v{w+4}, {f2u(1e-5)}, v{w+4}
    v_rsq_f32 v{w}, v{w+4}
    v_mul_f32 v{w+6}, {f2u(LOG2E)}, v{aSM+1}
    v_mul_f32 v{w+1}, v{w+5}, v{w}
    v_exp_f32 v{w+2}, v{w+6}
    v_exp_f32 v{w+3}, -v{w+6}
    v_add_f32 v{w+2}, 1.0, v{w+2}
    v_add_f32 v{w+3}, 1.0, v{w+3}
    v_min_f32 v{w+2}, {f2u(1e30)}, v{w+2}
    v_rcp_f32 v{w+3}, v{w+3}
    v_rcp_f32 v{w+7}, v{w+2}
    v_and_b32 v{w+4}, 15, v{vL}
    s_lshl_b32 s{S_T0}, s{S_TG}, 5
    s_add_u32 s{S_T0}, s{S_T0}, {16*fh}
    v_add_u32 v{w+4}, s{S_T0}, v{w+4}
    v_lshlrev_b32 v{w+5}, 4, v{w+4}
    v_add_u32 v{w+5}, {L_STATS}, v{w+5}
    v_lshlrev_b32 v{w+4}, 2, v{w+4}
    s_mov_b32 exec_lo, 0x00f0000f
    s_mov_b32 exec_hi, 0xf0000f00
    ds_write_b128 v{w+5}, {vr(w,4)}""")
    L = e.newlabel()
    e(f"""s_cmp_lg_u32 s{S_CB}, 0
    s_cbranch_scc1 {L}
    s_lshl_b32 s{S_T0}, s{S_RB}, 9
    s_add_u32 s{S_T0}, s{S_T0}, {WS_OMG}""")
    q = e.vmq
    e(f"buffer_store_dword v{w+7}, v{w+4}, {sr(R_WS,4)}, s{S_T0} offen sc1")
    e.vmq = q
    e(f"{L}:")
    e(f"""s_mov_b64 exec, -1
    s_lshl_b32 s{S_T0}, s{S_TJ}, 6
    s_add_u32 s{S_T0}, s{S_T0}, {L_CS}
    v_lshlrev_b32 v{w+6}, 4, v{vG}
    v_add_u32 v{w+6}, s{S_T0}, v{w+6}
    s_mov_b32 exec_lo, 0x00010001
    s_mov_b32 exec_hi, 0x00010001
    ds_write_b128 v{w+6}, {vr(aCS,4)}
    s_mov_b64 exec, -1""")
    vVw = v.alloc(1); vVr = v.alloc(1)
    e(f"""v_and_b32 v{vVw}, 15, v{vL}
    v_lshlrev_b32 v{vVw}, 5, v{vVw}
    v_lshl_add_u32 v{vVw}, v{vG}, 3, v{vVw}
    s_lshl_b32 s{S_T0}, s{S_W}, 10
    s_add_u32 s{S_T0}, s{S_T0}, {L_VSCR}
    v_add_u32 v{vVw}, s{S_T0}, v{vVw}
    v_lshrrev_b32 v{vVr}, 5, v{vL}
    v_lshlrev_b32 v{vVr}, 9, v{vVr}
    v_and_b32 v{vT}, 31, v{vL}
    v_lshl_add_u32 v{vVr}, v{vT}, 3, v{vVr}
    v_add_u32 v{vVr}, s{S_T0}, v{vVr}""")
    pk = v.alloc(12, 4)
    tq = None
    for j in range(3):
        P = pk + 4*j; A = aQ + 8*j
        e(f"""s_mul_i32 s{S_T2}, s{S_CB}, 6
        s_add_u32 s{S_T2}, s{S_T2}, {3*fh+j}
        s_cmp_lt_u32 s{S_T2}, 32
        s_cselect_b32 s{S_T3}, {QSCALE}, 1.0""")
        for i in range(8): e(f"v_mul_f32 v{A+i}, s{S_T3}, v{A+i}")
        for i in range(4): e(f"v_cvt_pk_bf16_f32 v{P+i}, v{A+2*i}, v{A+2*i+1}")
        Lv = e.newlabel("L_v"); Lj = e.newlabel("L_j")
        e(f"""s_lshl_b32 s{S_T0}, s{S_T2}, 6
        s_lshl_b32 s{S_T1}, s{S_RB}, 2
        s_add_u32 s{S_T0}, s{S_T0}, s{S_T1}
        s_add_u32 s{S_T0}, s{S_T0}, s{S_TG}
        s_lshl_b32 s{S_T0}, s{S_T0}, 10
        s_cmp_ge_u32 s{S_T2}, 64
        s_cbranch_scc1 {Lv}
        v_permlane16_swap_b32 v{P}, v{P+2}
        v_permlane16_swap_b32 v{P+1}, v{P+3}
        s_branch {Lj}
        {Lv}:""")
        st = e.state()
        e(f"""ds_write_b64 v{vVw}, {vr(P,2)}
        ds_write_b64 v{vVw}, {vr(P+2,2)} offset:512
        s_waitcnt lgkmcnt(0)
        ds_read_b64_tr_b16 {vr(P,2)}, v{vVr}
        ds_read_b64_tr_b16 {vr(P+2,2)}, v{vVr} offset:256
        s_waitcnt lgkmcnt(0)
        {Lj}:""")
        e.lgq, e.lg_done = st[1], st[3]
        tq = e(f"buffer_store_dwordx4 {vr(P,4)}, v{vL16}, {sr(R_WS,4)}, s{S_T0} offen sc1")
    e.wait_all(vm=False)
    e("s_barrier")
    stamp("xchg_bar")
    stt = v.alloc(8, 4); cs = v.alloc(16, 4)
    e(f"""v_and_b32 v{vT}, 15, v{vL}
    s_lshl_b32 s{S_T0}, s{S_TG}, 9
    s_add_u32 s{S_T0}, s{S_T0}, {L_STATS}
    v_lshlrev_b32 v{vT}, 4, v{vT}
    v_add_u32 v{vT}, s{S_T0}, v{vT}
    ds_read_b128 {vr(stt,4)}, v{vT}
    ds_read_b128 {vr(stt+4,4)}, v{vT} offset:256""")
    for j in range(NH):
        e(f"""s_lshl_b32 s{S_T0}, s{S_TJ+j}, 6
        s_add_u32 s{S_T0}, s{S_T0}, {L_CS}
        v_lshlrev_b32 v{vT+1}, 4, v{vG}
        v_add_u32 v{vT+1}, s{S_T0}, v{vT+1}
        ds_read_b128 {vr(cs+4*j,4)}, v{vT+1}""")
    if fh == 0:
        for s in range(12, 18): g_dma(g, s)
    cC0 = v.alloc(1); cC1 = v.alloc(1); bb = v.alloc(4); tm = v.alloc(8); hp = v.alloc(16, 4)
    e(f"v_mov_b32 v{cC0}, {f2u(GC0)}\nv_mov_b32 v{cC1}, {f2u(GC1)}")
    e.wait(vm=b1t[-1])
    e.wait_all(vm=False)
    th = None
    for j in range(NH):
        A = aH + 8*j
        e(f"""v_lshlrev_b32 v{bb}, 16, v{vB1+2*j}
        v_and_b32 v{bb+1}, 0xffff0000, v{vB1+2*j}
        v_lshlrev_b32 v{bb+2}, 16, v{vB1+2*j+1}
        v_and_b32 v{bb+3}, 0xffff0000, v{vB1+2*j+1}""")
        ids = range(8)
        S4 = lambda i: stt + 4*(i//4)
        for i in ids: e(f"v_fma_f32 v{tm+i}, -v{S4(i)+1}, v{cs+4*j+i%4}, v{bb+i%4}")
        for i in ids: e(f"v_fma_f32 v{A+i}, v{A+i}, v{S4(i)}, v{tm+i}")
        for i in ids: e(f"v_mul_f32 v{tm+i}, v{A+i}, v{A+i}")
        for i in ids: e(f"v_fma_f32 v{tm+i}, v{tm+i}, v{cC1}, v{cC0}")
        for i in ids: e(f"v_mul_f32 v{tm+i}, v{tm+i}, v{A+i}")
        for i in ids: e(f"v_exp_f32 v{tm+i}, v{tm+i}")
        for i in ids: e(f"v_fma_f32 v{tm+i}, v{tm+i}, v{S4(i)+2}, v{S4(i)+2}")
        for i in ids: e(f"v_rcp_f32 v{tm+i}, v{tm+i}")
        for i in ids: e(f"v_mul_f32 v{A+i}, v{A+i}, v{tm+i}")
        P = hp + 4*j
        for i in range(4): e(f"v_cvt_pk_bf16_f32 v{P+i}, v{A+2*i}, v{A+2*i+1}")
        e(f"""s_lshl_b32 s{S_T0}, s{S_RB}, 2
        s_add_u32 s{S_T0}, s{S_T0}, s{S_TG}
        s_mul_i32 s{S_T0}, s{S_T0}, 144
        s_mul_i32 s{S_T1}, s{S_CB}, 7
        s_add_u32 s{S_T0}, s{S_T0}, s{S_T1}
        s_add_u32 s{S_T0}, s{S_T0}, s{S_TJ+j}
        s_lshl_b32 s{S_T0}, s{S_T0}, 10
        s_add_u32 s{S_T0}, s{S_T0}, {WS_ACT}
        v_permlane16_swap_b32 v{P}, v{P+2}
        v_permlane16_swap_b32 v{P+1}, v{P+3}""")
        th = e(f"buffer_store_dwordx4 {vr(P,4)}, v{vL16}, {sr(R_WS,4)}, s{S_T0} offen sc1")
        if j == 1:
            e.wait(vm=tq)
            Ln = e.newlabel("L_n"); Lk = e.newlabel("L_nk")
            st = e.state()
            e(f"""s_mov_b32 s{S_SPIN}, {SPIN}
            {Ln}:
            v_readfirstlane_b32 s{S_NONCE}, v{vN}
            s_sub_u32 s{S_SPIN}, s{S_SPIN}, 1
            s_cmp_eq_u32 s{S_SPIN}, 0
            s_cbranch_scc1 {Lk}
            s_cmp_lg_u32 s{S_NONCE}, 0
            s_cbranch_scc1 {Lk}
            global_load_dword v{vN}, v{vZ}, {sr(P_DBG,2)} sc1
            s_waitcnt vmcnt(0)
            s_branch {Ln}
            {Lk}:""")
            e.vmq, e.vm_done = st[0], st[2]
            publish(0, 8, 0, vT, vT+1)
            stamp("pub_qkv")
    stamp("gelu_end")
    e.wait_all(lg=False)
    publish(1, 8, 1, vT, vT+1)
    stamp("pub_h")
    return g if fh == 0 else None

def g_setup(g):
    e(f"""v_lshrrev_b32 v{vT}, 2, v{vL}
    v_and_b32 v{vT}, 4, v{vT}
    v_and_b32 v{vT+1}, 7, v{vL}
    v_xor_b32 v{vT}, v{vT}, v{vT+1}
    v_lshlrev_b32 v{vT}, 4, v{vT}
    s_lshl_b32 s{S_T0}, s{S_C4}, 7
    v_add_u32 v{vT}, s{S_T0}, v{vT}
    v_lshrrev_b32 v{vT+1}, 3, v{vL}
    s_mul_i32 s{S_T0}, s{S_W}, 448
    v_add_u32 v{vT+2}, s{S_T0}, v{vT+1}
    v_lshl_add_u32 v{g['w2']}, v{vT+2}, 10, v{vT}
    v_add_u32 v{g['w2']+1}, {8192-1024}, v{g['w2']}
    v_and_b32 v{vT+1}, 3, v{vT+1}
    v_lshrrev_b32 v{vT+2}, 5, v{vL}
    v_lshl_add_u32 v{vT+1}, v{vT+2}, 3, v{vT+1}
    s_lshl_b32 s{S_T0}, s{S_W}, 7
    v_add_u32 v{vT+1}, s{S_T0}, v{vT+1}
    v_lshl_add_u32 v{g['wo']}, v{vT+1}, 10, v{vT}
    v_add_u32 v{g['wo']+1}, {4096-1024}, v{g['wo']}
    s_lshl_b32 s{S_MG}, s{S_W}, 11""")

def g_dma(g, s):
    gam = RING[s % NRING]
    if s < 28: vv, R, k = g['w2'], R_W2, s
    else:      vv, R, k = g['wo'], R_WO, s - 28
    e(f"s_mov_b32 s{S_T4}, {16384*k}")
    e(f"s_add_u32 m0, s{S_MG}, {8192*gam}")
    e(f"buffer_load_dwordx4 v{vv}, {sr(R,4)}, s{S_T4} offen lds")
    g['t'][s] = e(f"buffer_load_dwordx4 v{vv+1}, {sr(R,4)}, s{S_T4} offen offset:1024 lds")

def g_main(g):
    keep = [g['w2'], g['w2']+1, g['wo'], g['wo']+1]
    v.release(g['mark'])
    vF = v.alloc(1); vFt = v.alloc(1)
    vA = v.alloc(2); vR = v.alloc(6)
    acc = v.alloc(64, 4); fa = [v.alloc(8, 4) for _ in range(2)]; ab = v.alloc(8*DACT, 4)
    vB2 = v.alloc(8, 2); vOm = v.alloc(1)
    e(f"""v_and_b32 v{vF}, 15, v{vL}
    v_lshlrev_b32 v{vF}, 2, v{vF}
    s_lshr_b32 s{S_T0}, s{S_R4}, 1
    s_lshl_b32 s{S_T0}, s{S_T0}, 7
    s_add_u32 s{S_T0}, s{S_T0}, {WS_FLG + 4096}
    v_add_u32 v{vF}, s{S_T0}, v{vF}""")
    e(f"""s_mul_i32 s{S_T0}, s{S_R4}, 288
    s_mul_i32 s{S_T1}, s{S_W}, 28
    s_add_u32 s{S_T0}, s{S_T0}, s{S_T1}
    s_lshl_b32 s{S_T0}, s{S_T0}, 10
    s_add_u32 s{S_T0}, s{S_T0}, {WS_ACT}
    v_add_u32 v{vA}, s{S_T0}, v{vL16}
    v_add_u32 v{vA+1}, {144*1024}, v{vA}""")
    e(f"""v_lshrrev_b32 v{vT}, 5, v{vL}
    v_lshlrev_b32 v{vT}, 10, v{vT}
    v_lshrrev_b32 v{vT+1}, 2, v{vL}
    v_and_b32 v{vT+1}, 3, v{vT+1}
    v_lshl_add_u32 v{vT}, v{vT+1}, 7, v{vT}
    v_and_b32 v{vT+1}, 2, v{vT+1}
    v_lshl_add_u32 v{vT}, v{vT+1}, 5, v{vT}
    v_and_b32 v{vT+1}, 16, v{vL}
    v_lshl_add_u32 v{vT}, v{vT+1}, 1, v{vT}
    v_and_b32 v{vT+1}, 3, v{vL}
    v_lshl_add_u32 v{vT}, v{vT+1}, 3, v{vT}
    v_add_u32 v{vR}, s{S_MG}, v{vT}
    v_xor_b32 v{vR+1}, 64, v{vR}
    v_add_u32 v{vR+2}, 49152, v{vR}
    v_add_u32 v{vR+3}, 49152, v{vR+1}
    v_add_u32 v{vR+4}, 98304, v{vR}
    v_add_u32 v{vR+5}, 98304, v{vR+1}""")
    e(f"""s_and_b32 s{S_T0}, s{S_W}, 1
    s_lshl_b32 s{S_T0}, s{S_T0}, 6
    s_lshl_b32 s{S_T1}, s{S_C4}, 7
    s_add_u32 s{S_T0}, s{S_T0}, s{S_T1}
    v_lshrrev_b32 v{vT}, 5, v{vL}
    v_lshlrev_b32 v{vT}, 3, v{vT}
    v_add_u32 v{vT}, s{S_T0}, v{vT}""")
    for gi in range(4): e(f"global_load_dwordx2 {vr(vB2+2*gi,2)}, v{vT}, {sr(P_B2,2)} offset:{16*gi}")
    poll(vF, vFt)
    stamp("h_seen")
    at = {}
    def act_load(s):
        sl = ab + 8*(s % DACT)
        k = s
        if s == 28:
            e(f"""s_mul_i32 s{S_T0}, s{S_W}, {-20*1024}
            s_add_u32 s{S_T0}, s{S_T0}, {(112-28)*1024}
            v_add_u32 v{vA}, s{S_T0}, v{vA}
            v_add_u32 v{vA+1}, s{S_T0}, v{vA+1}""")
        if s % 4 == 0: e(f"s_mov_b32 s{S_T3}, {4096*(s//4)}")
        e(f"buffer_load_dwordx4 {vr(sl,4)}, v{vA}, {sr(R_WS,4)}, s{S_T3} offen offset:{1024*(s%4)} sc1")
        at[s] = e(f"buffer_load_dwordx4 {vr(sl+4,4)}, v{vA+1}, {sr(R_WS,4)}, s{S_T3} offen offset:{1024*(s%4)} sc1")
    rt = {}
    def tr_reads(s):
        gam = RING[s % NRING]; win = gam // 6; off = 8192*gam - 49152*win
        e.wait(vm=g['t'][s])
        for ch in range(2):
            for h2 in range(2):
                rt[s] = e(f"ds_read_b64_tr_b16 {vr(fa[s%2]+4*ch+2*h2,2)}, v{vR+2*win+ch} offset:{off+512*h2}")
    for s in range(DACT): act_load(s)
    e(f"""s_lshr_b32 s{S_T0}, s{S_W}, 1
    s_lshl_b32 s{S_T0}, s{S_T0}, 7
    s_lshl_b32 s{S_T1}, s{S_R4}, 8
    s_add_u32 s{S_T0}, s{S_T0}, s{S_T1}
    s_add_u32 s{S_T0}, s{S_T0}, {WS_OMG}
    v_and_b32 v{vT}, 31, v{vL}
    v_lshlrev_b32 v{vT}, 2, v{vT}
    v_add_u32 v{vF}, 4096, v{vF}""")
    e(f"buffer_load_dword v{vOm}, v{vT}, {sr(R_WS,4)}, s{S_T0} offen sc1")
    tr_reads(0)
    tf = None
    for s in range(36):
        if s + 1 < 36: tr_reads(s+1)
        e.wait(vm=at[s], lg=rt[s])
        sl = ab + 8*(s % DACT)
        for ch in range(2):
            for th in range(2):
                a = acc + 16*(2*th + ch)
                e(f"v_mfma_f32_32x32x16_bf16 {vr(a,16)}, {vr(fa[s%2]+4*ch,4)}, {vr(sl+4*th,4)}, {'0' if s == 0 else vr(a,16)}")
        if s in (0, 4, 8, 12, 16, 24, 28, 32): stamp(f"g{s}")
        if s == 28 - 2*DACT:
            tf = e(f"buffer_load_dword v{vFt}, v{vF}, {sr(R_WS,4)}, 0 offen sc1")
        if s + DACT == 28:
            stamp("pre_opoll")
            poll(vF, vFt, tf)
            stamp("o_seen")
        if s + DACT < 36: act_load(s + DACT)
        if s + NRING < 36: g_dma(g, s + NRING)
    stamp("g_loop_end")
    vW = v.alloc(1); red = v.alloc(48, 4)
    e(f"""s_lshl_b32 s{S_T0}, s{S_W}, 14
    v_add_u32 v{vW}, s{S_T0}, v{vL16}""")
    e.wait_all()
    e("s_barrier")
    for q in range(4):
        for gi in range(4):
            e(f"ds_write_b128 v{vW}, {vr(acc+16*q+4*gi,4)} offset:{4096*q+1024*gi}")
    e.wait_all(vm=False)
    e("s_barrier")
    e(f"""s_lshl_b32 s{S_T0}, s{S_W}, 12
    v_add_u32 v{vW}, s{S_T0}, v{vL16}""")
    fin = acc
    tks = []
    for p in range(4):
        dst = fin if p == 0 else red + 16*(p-1)
        for gi in range(4):
            tks.append(e(f"ds_read_b128 {vr(dst+4*gi,4)}, v{vW} offset:{16384*p+1024*gi}"))
    bb = v.alloc(4)
    for p in range(1, 4):
        e.wait(lg=tks[4*p+3])
        for i in range(16): e(f"v_add_f32 v{fin+i}, v{fin+i}, v{red+16*(p-1)+i}")
    for gi in range(4):
        e(f"""v_lshlrev_b32 v{bb}, 16, v{vB2+2*gi}
        v_and_b32 v{bb+1}, 0xffff0000, v{vB2+2*gi}
        v_lshlrev_b32 v{bb+2}, 16, v{vB2+2*gi+1}
        v_and_b32 v{bb+3}, 0xffff0000, v{vB2+2*gi+1}""")
        for c in range(4): e(f"v_fma_f32 v{fin+4*gi+c}, v{vOm}, v{bb+c}, v{fin+4*gi+c}")
    P = red
    for i in range(8): e(f"v_cvt_pk_bf16_f32 v{P+i}, v{fin+2*i}, v{fin+2*i+1}")
    e(f"""s_lshr_b32 s{S_T0}, s{S_W}, 1
    s_lshl_b32 s{S_T0}, s{S_T0}, 5
    s_lshl_b32 s{S_T1}, s{S_R4}, 6
    s_add_u32 s{S_T0}, s{S_T0}, s{S_T1}
    s_lshl_b32 s{S_T0}, s{S_T0}, 10
    s_lshl_b32 s{S_T1}, s{S_C4}, 7
    s_add_u32 s{S_T0}, s{S_T0}, s{S_T1}
    s_and_b32 s{S_T1}, s{S_W}, 1
    s_lshl_b32 s{S_T1}, s{S_T1}, 6
    s_add_u32 s{S_T0}, s{S_T0}, s{S_T1}
    v_and_b32 v{vT}, 31, v{vL}
    v_lshlrev_b32 v{vT}, 10, v{vT}
    v_lshrrev_b32 v{vT+1}, 5, v{vL}
    v_lshl_add_u32 v{vT}, v{vT+1}, 4, v{vT}
    v_permlane32_swap_b32 v{P}, v{P+2}
    v_permlane32_swap_b32 v{P+1}, v{P+3}
    v_permlane32_swap_b32 v{P+4}, v{P+6}
    v_permlane32_swap_b32 v{P+5}, v{P+7}
    buffer_store_dwordx4 {vr(P,4)}, v{vT}, {sr(R_OUT,4)}, s{S_T0} offen
    buffer_store_dwordx4 {vr(P+4,4)}, v{vT}, {sr(R_OUT,4)}, s{S_T0} offen offset:32""")
    stamp_flush()
    e("s_endpgm")

def a_main():
    v.release(common_mark)
    S_HEAD, S_TQ, S_KB, S_NV = S_R4, S_C4, S_MX, S_MW
    vF = v.alloc(1); vFt = v.alloc(1); vVo = v.alloc(1); vGt = v.alloc(2); vM = v.alloc(2); vPM = v.alloc(8)
    K = v.alloc(40, 4); Vv = v.alloc(80, 4); Q = v.alloc(8, 4)
    D = [v.alloc(16, 4) for _ in range(2)]; Mg = v.alloc(16, 4); C = v.alloc(16, 4); O = v.alloc(16, 4)
    Pb = [v.alloc(8, 4) for _ in range(2)]
    e(f"""s_and_b32 s{S_T0}, s{S_TG}, 1
    s_lshl_b32 s{S_HEAD}, s{S_CB}, 1
    s_add_u32 s{S_HEAD}, s{S_HEAD}, s{S_T0}
    s_and_b32 s{S_T0}, s{S_TG}, 2
    s_lshl_b32 s{S_TQ}, s{S_RB}, 2
    s_add_u32 s{S_TQ}, s{S_TQ}, s{S_T0}""")
    for kind in range(3):
        e(f"""s_add_u32 s{S_T0}, s{S_HEAD}, {32*kind}
        s_mul_i32 s{S_T0}, s{S_T0}, 43
        s_lshr_b32 s{S_T0}, s{S_T0}, 8
        s_lshl_b32 s{S_T0}, s{S_T0}, 2
        s_add_u32 s{S_T0}, s{S_T0}, {WS_FLG}""")
        for d in range(1 if kind == 0 else 3):
            e(f"""s_sub_i32 s{S_T1}, s{S_RB}, {d}
            s_max_i32 s{S_T1}, s{S_T1}, 0
            s_lshl_b32 s{S_T1}, s{S_T1}, 7
            s_add_u32 s{S_T1}, s{S_T1}, s{S_T0}""")
            if kind == 0: e(f"v_mov_b32 v{vF}, s{S_T1}")
            else: e(f"v_writelane_b32 v{vF}, s{S_T1}, {1 + 3*(kind-1) + d}")
    tf = e(f"buffer_load_dword v{vFt}, v{vF}, {sr(R_WS,4)}, 0 offen sc1")
    e(f"""v_and_b32 v{vT}, 31, v{vL}
    s_and_b32 s{S_T0}, s{S_TG}, 2
    s_lshl_b32 s{S_T0}, s{S_T0}, 9
    s_add_u32 s{S_T0}, s{S_T0}, {L_STATS + 12}
    v_lshlrev_b32 v{vT+1}, 4, v{vT}
    v_add_u32 v{vT+1}, s{S_T0}, v{vT+1}
    ds_read_b32 v{vGt}, v{vT+1}
    ds_read_b32 v{vGt+1}, v{vT+1} offset:512""")
    e(f"""v_lshrrev_b32 v{vT+2}, 5, v{vL}
    v_lshlrev_b32 v{vT+3}, 2, v{vT+2}
    v_sub_u32 v{vT+3}, v{vT}, v{vT+3}""")
    for r in range(16):
        e(f"v_cmp_le_i32 s[{S_MASK+2*r}:{S_MASK+2*r+1}], {8*(r//4) + r%4}, v{vT+3}")
    e(f"v_mov_b32 v{vT+4}, 0xffff\nv_mov_b32 v{vT+5}, 0xffff0000")
    for i in range(8):
        e(f"""v_cndmask_b32 v{vPM+i}, 0, v{vT+4}, s[{S_MASK+4*i}:{S_MASK+4*i+1}]
        v_cndmask_b32 v{vVo}, 0, v{vT+5}, s[{S_MASK+4*i+2}:{S_MASK+4*i+3}]
        v_or_b32 v{vPM+i}, v{vPM+i}, v{vVo}""")
    e(f"""v_and_b32 v{vVo}, 15, v{vL}
    v_lshl_add_u32 v{vVo}, v{vT+2}, 4, v{vVo}
    v_lshlrev_b32 v{vVo}, 4, v{vVo}""")
    for i in range(80): e(f"v_mov_b32 v{Vv+i}, 0x3f803f80")
    e(f"""s_lshl_b32 s{S_KB}, s{S_HEAD}, 6
    s_add_u32 s{S_KB}, s{S_KB}, s{S_TQ}
    s_lshl_b32 s{S_KB}, s{S_KB}, 10""")
    e.wait_all(vm=False)
    poll(vF, vFt, tf)
    stamp("qkv_seen")
    e(f"s_cmp_lt_u32 s{S_RB}, 2\ns_cbranch_scc1 L_att_edge")
    st0 = e.state()
    for edge in (False, True):
        if edge:
            e.restore(st0); e("L_att_edge:")
            e(f"s_sub_u32 s{S_NV}, 8, s{S_TQ}")
        def guard(i):
            if not edge or i >= 8: return lambda: None
            L = e.newlabel("L_sk")
            e.flush_haz()
            e(f"s_cmp_gt_u32 s{S_NV}, {i}\ns_cbranch_scc1 {L}")
            def close():
                e.flush_haz(); e(f"{L}:")
            return close
        kt = {}; vt = {}; qt = {}
        def ldq(u): qt[u] = e(f"buffer_load_dwordx4 {vr(Q+4*u,4)}, v{vL16}, {sr(R_WS,4)}, s{S_KB} offen offset:{1024*u} sc1")
        def ldk(i):
            cl = guard(i)
            e(f"s_add_u32 s{S_T0}, s{S_KB}, {(32*64 - 8 + i)*1024}")
            kt[i] = e(f"buffer_load_dwordx4 {vr(K+4*i,4)}, v{vL16}, {sr(R_WS,4)}, s{S_T0} offen sc1")
            cl()
        def ldv(i):
            cl = guard(i)
            e(f"s_add_u32 s{S_T0}, s{S_KB}, {(64*64 - 8 + i)*1024}")
            e(f"buffer_load_dwordx4 {vr(Vv+8*i,4)}, v{vVo}, {sr(R_WS,4)}, s{S_T0} offen sc1")
            vt[i] = e(f"buffer_load_dwordx4 {vr(Vv+8*i+4,4)}, v{vVo}, {sr(R_WS,4)}, s{S_T0} offen offset:512 sc1")
            cl()
        ldq(0); ldk(8); ldk(0)
        for i in range(1, 8): ldk(i)
        ldq(1); ldk(9)
        e("s_mov_b32 exec_lo, 0xffff\ns_mov_b32 exec_hi, 0xffff")
        for i in [1, 2, 3, 4, 5, 6, 7, 0, 8, 9]: ldv(i)
        e("s_mov_b64 exec, -1")
        if edge: e.wait_all(lg=False)
        for u in range(2):
            q = vr(Q+4*u, 4)
            def qk(i, dst, c):
                e.wait(vm=max(kt[i], qt[u]))
                e(f"v_mfma_f32_32x32x16_bf16 {vr(dst,16)}, {vr(K+4*i,4)}, {q}, {c}")
            far, diag = u, u + 8
            mids = list(range(u+1, u+8))
            qk(diag, D[0], "0")
            if edge:
                for r in range(16): e(f"v_mov_b32 v{D[1]+r}, 0xff800000")
                cl = guard(far); qk(far, D[1], "0"); cl()
            else:
                qk(far, D[1], "0")
                qk(mids[0], C, "0")
            for r in range(16):
                e(f"v_cndmask_b32 v{Mg+r}, v{D[1]+r}, v{D[0]+r}, s[{S_MASK+2*r}:{S_MASK+2*r+1}]")
            bufs = [C, D[0], D[1]]
            if not edge: qk(mids[1], D[0], "0")
            e(f"v_max_f32 v{vM}, v{Mg}, v{Mg+1}\nv_max_f32 v{vM+1}, v{Mg+2}, v{Mg+3}")
            for r in range(4, 16, 4):
                e(f"v_max3_f32 v{vM}, v{vM}, v{Mg+r}, v{Mg+r+1}\nv_max3_f32 v{vM+1}, v{vM+1}, v{Mg+r+2}, v{Mg+r+3}")
            for n, i in enumerate(mids):
                b = bufs[n % 3]
                cl = guard(i)
                if edge: qk(i, b, "0")
                elif n + 2 < 7: qk(mids[n+2], bufs[(n+2) % 3], "0")
                for r in range(0, 16, 4):
                    e(f"v_max3_f32 v{vM}, v{vM}, v{b+r}, v{b+r+1}\nv_max3_f32 v{vM+1}, v{vM+1}, v{b+r+2}, v{b+r+3}")
                cl()
            e(f"""v_max_f32 v{vM}, v{vM}, v{vM+1}
            v_mov_b32 v{vM+1}, v{vM}
            v_permlane32_swap_b32 v{vM}, v{vM+1}
            v_max_f32 v{vM}, v{vM}, v{vM+1}""")
            for r in range(16): e(f"v_sub_f32 v{C+r}, 0, v{vM}")
            stamp(f"p1_{u}")
            first = [True]
            def pv(i, P):
                e.wait(vm=vt[i])
                for s in range(2):
                    e(f"v_mfma_f32_32x32x16_bf16 {vr(O,16)}, {vr(Vv+8*i+4*s,4)}, {vr(P+4*s,4)}, {'0' if first[0] else vr(O,16)}")
                    first[0] = False
            if not edge: qk(mids[0], D[0], vr(C, 16))
            for r in range(16): e(f"v_add_f32 v{Mg+r}, v{Mg+r}, v{C}")
            for r in range(16): e(f"v_exp_f32 v{Mg+r}, v{Mg+r}")
            for i in range(8): e(f"v_cvt_pk_bf16_f32 v{Mg+i}, v{Mg+2*i}, v{Mg+2*i+1}")
            for i in range(8): e(f"v_and_b32 v{Mg+8+i}, v{Mg+i}, v{vPM+i}")
            for i in range(8): e(f"v_xor_b32 v{Mg+i}, v{Mg+i}, v{Mg+8+i}")
            if edge:
                pv(diag, Mg+8)
                cl = guard(far); pv(far, Mg); cl()
            for n, i in enumerate(mids):
                b = D[n % 2]; P = Pb[n % 2]
                cl = guard(i)
                if edge: qk(i, b, vr(C, 16))
                elif n + 1 < 7: qk(mids[n+1], D[(n+1) % 2], vr(C, 16))
                for r in range(16): e(f"v_exp_f32 v{b+r}, v{b+r}")
                for k in range(8): e(f"v_cvt_pk_bf16_f32 v{P+k}, v{b+2*k}, v{b+2*k+1}")
                pv(i, P)
                cl()
            if not edge:
                pv(far, Mg); pv(diag, Mg+8)
            e(f"""s_add_u32 s{S_T0}, s{S_TQ}, {u}
            s_mul_i32 s{S_T0}, s{S_T0}, 144
            s_add_u32 s{S_T0}, s{S_T0}, s{S_HEAD}
            s_add_u32 s{S_T0}, s{S_T0}, 112
            s_lshl_b32 s{S_T0}, s{S_T0}, 10
            s_add_u32 s{S_T0}, s{S_T0}, {WS_ACT}
            v_rcp_f32 v{vM}, v{O+8}
            v_mul_f32 v{vM}, v{vM}, v{vGt+u}""")
            for r in range(8): e(f"v_mul_f32 v{O+r}, v{O+r}, v{vM}")
            P = Pb[1]
            for k in range(4): e(f"v_cvt_pk_bf16_f32 v{P+4*u+k}, v{O+2*k}, v{O+2*k+1}")
            e(f"buffer_store_dwordx4 {vr(P+4*u,4)}, v{vL16}, {sr(R_WS,4)}, s{S_T0} offen sc1")
            stamp(f"unit{u}")
        e.wait_all(lg=False)
        publish(2, 4, 2, vT, vT+1)
        stamp_flush()
        e("s_endpgm")

g = stage_a(0)
g_main(g)
e.restore(common_state); v.release(common_mark)
e("L_streamA:")
cur_stream[0] = "A"
stage_a(1)
a_main()
e("L_end:")
e("s_endpgm")

hdr = open("gated_mix__sliding_block__mixer_channel_mlp__prompt.s.ref").read().split("; Override launch")[0] if len(sys.argv) > 1 and "--nohdr" not in sys.argv else ""
txt = hdr + f"""; Generated by my own generator script (single persistent launch; flags in d_ws tagged by a per-launch nonce).
; @launch grid=(256,1,1) block=(512,1,1) lds=163840
.amdgcn_target "amdgcn-amd-amdhsa--gfx950"
.text
.globl {NAME}
.p2align 8
.type {NAME},@function
{NAME}:
""" + e.text() + f""".section .rodata,"a"
.p2align 6
.amdhsa_kernel {NAME}
  .amdhsa_next_free_vgpr 256
  .amdhsa_next_free_sgpr 102
  .amdhsa_accum_offset 256
  .amdhsa_group_segment_fixed_size 0
  .amdhsa_kernarg_size 96
  .amdhsa_user_sgpr_count 2
  .amdhsa_user_sgpr_kernarg_segment_ptr 1
  .amdhsa_system_sgpr_workgroup_id_x 1
.end_amdhsa_kernel
"""
out = sys.argv[1]
open(out, "w").write(txt)
if STAMP:
    import json; json.dump(stamp_names, open(out + ".names.json", "w"))
print("vgpr high water", v.hw, "nops", e.nops, "lines", txt.count("\n"), file=sys.stderr)
```

```python
import sys, math, struct
from emit import *

NAME = "gated_mix__sliding_block__mixer_channel_mlp__prompt_kernel"
STAMP = "--stamp" in sys.argv
ECHO = [a.split("=")[1] for a in sys.argv if a.startswith("--echo=")]
ECHO = ECHO[0] if ECHO else None
OPT = dict(rot=2, nreg=9, codepf=1, aprio=1, sleep=2, fine=0, npro=3, krot=3, n5=6, n6=6, wopf=0, fast=1, forcefb=0, gp=1, pf2=1, pfrot=1, kprio=1, nld0=9, qfirst=1)
for a in sys.argv:
    if a.startswith("--o:"):
        k, vv = a[4:].split("="); assert k in OPT, k; OPT[k] = int(vv)

def f2u(x): return struct.unpack("<I", struct.pack("<f", x))[0]
LOG2E = 1.4426950408889634
QSCALE = f2u(0.25 * LOG2E)
GC0 = -2.0 * math.sqrt(2.0 / math.pi) * LOG2E
GC1 = GC0 * 0.044715

WS_QKV = 0
WS_ACT = 8 << 20
WS_OMG = 20 << 20
WS_FLG = 21 << 20
WS_DBG = 24 << 20
WS_SIZE = 32 << 20
L_X, L_WQ, L_WH, L_MISC = 0, 49152, 98304, 147456
L_GW = L_MISC; L_ONES = L_MISC + 1152; L_STATS = L_MISC + 2304; L_CS = L_MISC + 4352; L_CNT = L_MISC + 4864
L_VSCR = L_MISC + 8192
RING = [4, 5, 10, 11, 16, 17, 0, 1, 6, 7, 12, 13, 2, 3, 8, 9, 14, 15]
NRING = 18
DACT = 8
SPIN = 200000

S_FO = 3
P_X, P_WQKV, P_WO, P_W1, P_B1, P_W2, P_B2, P_GW, P_OUT, P_DBG, P_WS = 4, 6, 8, 12, 14, 16, 18, 20, 22, 24, 26
S_ST = 10
R_X, R_WA, R_WS, R_W2, R_WO, R_OUT = 28, 32, 36, 40, 44, 48
R_W1 = 88
S_SH, S_MH, S_PG = 71, 72, 73
S_W, S_TG, S_RB, S_CB, S_R4, S_C4, S_NONCE = 52, 53, 54, 55, 56, 57, 58
S_T0, S_T1, S_T2, S_T3, S_T4 = 59, 60, 61, 62, 63
S_MASK = 64
S_SO = 64
S_SC = 70
S_VM = 76
S_C1, S_C2, S_C3 = 82, 84, 86
S_GW, S_GA, S_OFFO = 84, 85, 86
S_SX, S_SW, S_KO, S_KG = 92, 93, 94, 95
S_MX, S_MW, S_MG = 96, 97, 98
S_SPIN = 99
S_EX = 100

e = Em()
stamp_names = {}
cur_stream = ["G"]
def stamp(name, real=False):
    if ECHO == name and cur_stream[0] == "G": e("s_memtime s[78:79]")
    if not STAMP: return
    d = stamp_names.setdefault(cur_stream[0], [])
    if name in d: idx = d.index(name)
    else: d.append(name); idx = len(d) - 1
    assert idx < 64
    e(f"""{'s_memrealtime' if real else 's_memtime'} s[{S_ST}:{S_ST+1}]
    s_waitcnt lgkmcnt(0)
    v_writelane_b32 v255, s{S_ST}, {idx}""")
    e.lg_done = e.lgq
def fstamp(name):
    if OPT['fine']: stamp(name)
def stamp_flush():
    if ECHO and cur_stream[0] == "G":
        stamp("end")
        L = e.newlabel("L_echo")
        e(f"""s_memtime s[80:81]
        s_waitcnt lgkmcnt(0)
        s_sub_u32 s78, s78, s76
        s_min_u32 s78, s78, 400000
        {L}:
        s_memtime s[82:83]
        s_waitcnt lgkmcnt(0)
        s_sub_u32 s82, s82, s80
        s_cmp_lt_u32 s82, s78
        s_cbranch_scc1 {L}""")
    if not STAMP: return
    stamp("end"); stamp("rt_end", True)
    e(f"""s_lshl_b32 s{S_ST}, s2, 3
    s_add_u32 s{S_ST}, s{S_ST}, s{S_W}
    s_lshl_b32 s{S_ST}, s{S_ST}, 8
    s_add_u32 s{S_ST}, s{S_ST}, {WS_DBG}
    v_lshlrev_b32 v254, 2, v{vL}
    buffer_store_dword v255, v254, {sr(R_WS,4)}, s{S_ST} offen""")

def srd(r, p, size):
    e(f"""s_mov_b32 s{r}, s{p}
    s_mov_b32 s{r+1}, s{p+1}
    s_mov_b32 s{r+2}, {size}
    s_mov_b32 s{r+3}, 0x20000""")

def opt_vm(text):
    q = e.vmq; e(text); e.vmq = q

def get_nonce(vN):
    Ln = e.newlabel("L_n"); Lk = e.newlabel("L_nk")
    st = e.state()
    e(f"""v_readfirstlane_b32 s{S_NONCE}, v{vN}
    s_mov_b32 s{S_SPIN}, {SPIN}
    s_cmp_lg_u32 s{S_NONCE}, 0
    s_cbranch_scc0 {Ln}
    {Lk}:""")
    tail.append(f"""{Ln}:
    global_load_dword v{vN}, v{vZ}, {sr(P_DBG,2)} sc1
    s_waitcnt vmcnt(0)
    v_readfirstlane_b32 s{S_NONCE}, v{vN}
    s_sub_u32 s{S_SPIN}, s{S_SPIN}, 1
    s_cmp_eq_u32 s{S_SPIN}, 0
    s_cbranch_scc1 {Lk}
    s_cmp_lg_u32 s{S_NONCE}, 0
    s_cbranch_scc1 {Lk}
    s_branch {Ln}""")
tail = []

def publish(cnt_idx, total, stage, vt0, vt1):
    e(f"""s_mov_b64 exec, 1
    v_mov_b32 v{vt0}, {L_CNT + 4*cnt_idx}
    v_mov_b32 v{vt1}, 1
    ds_add_rtn_u32 v{vt1}, v{vt0}, v{vt1}
    s_add_u32 s{S_T0}, s{S_FO}, {stage*65536}
    v_mov_b32 v{vt0}, s{S_NONCE}""")
    e.wait_all(vm=False)
    L = e.newlabel("L_pub")
    e(f"""v_cmp_eq_u32 vcc, {total-1}, v{vt1}
    s_and_b64 exec, exec, vcc
    s_cbranch_execz {L}""")
    opt_vm(f"buffer_store_dword v{vt0}, v{vZ}, {sr(R_WS,4)}, s{S_T0} offen sc1")
    e(f"{L}:\ns_mov_b64 exec, -1")

def poll(vaddr, vtmp, first_ticket=None):
    L = e.newlabel("L_poll"); Lo = e.newlabel("L_pout")
    if first_ticket is None:
        first_ticket = e(f"buffer_load_dword v{vtmp}, v{vaddr}, {sr(R_WS,4)}, 0 offen sc1")
    e(f"s_mov_b32 s{S_SPIN}, {SPIN}")
    e.wait(vm=first_ticket)
    e(f"""v_cmp_ne_u32 vcc, s{S_NONCE}, v{vtmp}
    s_cbranch_vccnz {L}
    {Lo}:""")
    tail.append(f"""{L}:
    {('s_sleep %d' % OPT['sleep']) if OPT['sleep'] else ''}
    buffer_load_dword v{vtmp}, v{vaddr}, {sr(R_WS,4)}, 0 offen sc1
    s_waitcnt vmcnt(0)
    v_cmp_ne_u32 vcc, s{S_NONCE}, v{vtmp}
    s_sub_u32 s{S_SPIN}, s{S_SPIN}, 1
    s_cmp_eq_u32 s{S_SPIN}, 0
    s_cbranch_scc1 {Lo}
    s_nop 2
    s_cbranch_vccnz {L}
    s_branch {Lo}""")

v = Regs(1, 254 if STAMP else 256)
vL = v.alloc(); vL16 = v.alloc(); vZ = v.alloc()
vT = v.alloc(6, 2)
common_mark = v.mark()
vPF = 0
if ECHO: e("s_memtime s[76:77]")
e(f"""s_cmp_ge_u32 s2, 256
s_cbranch_scc1 L_end
s_load_dwordx16 s[4:19], s[0:1], 0
s_load_dwordx8 s[20:27], s[0:1], 64
v_lshrrev_b32 v{vT}, 6, v0
v_and_b32 v{vL}, 63, v0
v_readfirstlane_b32 s{S_W}, v{vT}
v_lshlrev_b32 v{vL16}, 4, v{vL}
v_mov_b32 v{vZ}, 0
s_and_b32 s{S_T0}, s2, 1
s_lshl_b32 s{S_T0}, s{S_T0}, 3
s_lshr_b32 s{S_T1}, s2, 3
s_and_b32 s{S_T2}, s{S_T1}, 7
s_add_u32 s{S_RB}, s{S_T0}, s{S_T2}
s_lshr_b32 s{S_T0}, s2, 1
s_and_b32 s{S_T0}, s{S_T0}, 3
s_lshl_b32 s{S_T0}, s{S_T0}, 2
s_lshr_b32 s{S_T2}, s2, 6
s_add_u32 s{S_CB}, s{S_T0}, s{S_T2}
s_and_b32 s{S_TG}, s{S_W}, 3
""")
if OPT['codepf']:
    e(f"""s_cmp_lg_u32 s{S_W}, 7
    s_cbranch_scc1 L_nocpf
    s_getpc_b64 s[{S_EX}:{S_EX+1}]
    L_pc:
    v_and_b32 v{vT}, 15, v{vL}
    s_lshl_b32 s{S_T0}, s{S_T1}, 4
    v_add_u32 v{vT}, s{S_T0}, v{vT}
    v_lshlrev_b32 v{vT}, 7, v{vT}
    v_min_u32 v{vT}, L_end-L_pc, v{vT}""")
    opt_vm(f"global_load_dword v{vPF}, v{vT}, s[{S_EX}:{S_EX+1}]")
    e("L_nocpf:")
KROT = {0: f"s_mov_b32 s{S_KO}, 0",
        2: f"s_add_u32 s{S_KO}, s{S_RB}, s{S_CB}\ns_and_b32 s{S_KO}, s{S_KO}, 3\ns_lshl_b32 s{S_KO}, s{S_KO}, 8\ns_lshr_b32 s{S_T0}, s2, 1\ns_xor_b32 s{S_T0}, s{S_T0}, s2\ns_and_b32 s{S_T0}, s{S_T0}, 1\ns_lshl_b32 s{S_T0}, s{S_T0}, 7\ns_add_u32 s{S_KO}, s{S_KO}, s{S_T0}",
        3: f"s_lshl_b32 s{S_KO}, s{S_CB}, 1\ns_add_u32 s{S_KO}, s{S_KO}, s{S_RB}\ns_and_b32 s{S_KO}, s{S_KO}, 7\ns_lshl_b32 s{S_KO}, s{S_KO}, 7",
        5: f"s_lshl_b32 s{S_KO}, s{S_CB}, 1\ns_add_u32 s{S_KO}, s{S_KO}, s{S_RB}\ns_lshr_b32 s{S_T0}, s{S_CB}, 2\ns_and_b32 s{S_T0}, s{S_T0}, 1\ns_add_u32 s{S_KO}, s{S_KO}, s{S_T0}\ns_and_b32 s{S_KO}, s{S_KO}, 7\ns_lshl_b32 s{S_KO}, s{S_KO}, 7",
        }[OPT['krot']]
e(f"""{KROT}
s_cmp_ge_u32 s{S_W}, 4
s_cbranch_scc1 L_streamA
""")
common_state = e.state()

def kperm_code(vrho, vk, vt):
    e(f"""v_and_b32 v{vk}, 0x23, v{vrho}
    v_lshrrev_b32 v{vt}, 2, v{vrho}
    v_and_b32 v{vt}, 3, v{vt}
    v_lshl_add_u32 v{vk}, v{vt}, 3, v{vk}
    v_lshrrev_b32 v{vt}, 4, v{vrho}
    v_and_b32 v{vt}, 1, v{vt}
    v_lshl_add_u32 v{vk}, v{vt}, 2, v{vk}""")

def dma_setup(fh):
    NW = 3 if fh == 0 else 4
    vXs = v.alloc(2); vWs = v.alloc(NW)
    e(f"""s_lshl_b32 s{S_T0}, s{S_RB}, 7
    s_lshl_b32 s{S_T1}, s{S_W}, 4
    s_add_u32 s{S_T0}, s{S_T0}, s{S_T1}
    v_lshrrev_b32 v{vT}, 3, v{vL}
    v_add_u32 v{vT}, s{S_T0}, v{vT}
    v_lshlrev_b32 v{vT}, 10, v{vT}
    v_lshrrev_b32 v{vT+1}, 4, v{vL}
    v_and_b32 v{vT+2}, 7, v{vL}
    v_xor_b32 v{vT+2}, v{vT+2}, v{vT+1}
    v_lshlrev_b32 v{vT+2}, 4, v{vT+2}
    v_add_u32 v{vXs}, v{vT}, v{vT+2}
    v_xor_b32 v{vT+2}, 64, v{vT+2}
    v_add_u32 v{vXs+1}, v{vT}, v{vT+2}
    v_add_u32 v{vXs+1}, 7168, v{vXs+1}
    s_lshl_b32 s{S_MX}, s{S_W}, 11""")
    for j in range(NW):
        if fh == 0:
            e(f"""s_mul_i32 s{S_T0}, s{S_TG}, 192
            s_add_u32 s{S_T0}, s{S_T0}, {64*j}
            v_add_u32 v{vT}, s{S_T0}, v{vL}
            v_mul_u32_u24 v{vT+1}, 43691, v{vT}
            v_lshrrev_b32 v{vT+1}, 19, v{vT+1}
            v_mul_u32_u24 v{vT+2}, 12, v{vT+1}
            v_sub_u32 v{vT+2}, v{vT}, v{vT+2}""")
            kperm_code(vT+1, vT+3, vT+4)
            e(f"""v_lshrrev_b32 v{vT+4}, 1, v{vT+1}
            v_and_b32 v{vT+4}, 2, v{vT+4}
            v_xor_b32 v{vT+2}, v{vT+2}, v{vT+4}
            v_mul_u32_u24 v{vT+3}, 3072, v{vT+3}
            v_lshl_add_u32 v{vT+3}, v{vT+2}, 4, v{vT+3}
            v_lshrrev_b32 v{vT+4}, 3, v{vT+2}
            s_lshl_b32 s{S_T1}, s{S_CB}, 6
            s_sub_u32 s{S_T1}, 1920, s{S_T1}
            v_mad_u32_u24 v{vT+3}, v{vT+4}, s{S_T1}, v{vT+3}
            s_lshl_b32 s{S_T0}, s{S_CB}, 7
            s_sub_u32 s{S_T0}, s{S_T0}, {1024*j}
            v_add_u32 v{vWs+j}, s{S_T0}, v{vT+3}""")
        else:
            e(f"""s_lshl_b32 s{S_T0}, s{S_TG}, 8
            s_add_u32 s{S_T0}, s{S_T0}, {64*j}
            v_add_u32 v{vT}, s{S_T0}, v{vL}
            v_mul_u32_u24 v{vT+1}, 4682, v{vT}
            v_lshrrev_b32 v{vT+1}, 16, v{vT+1}
            v_mul_u32_u24 v{vT+2}, 14, v{vT+1}
            v_sub_u32 v{vT+2}, v{vT}, v{vT+2}""")
            kperm_code(vT+1, vT+3, vT+4)
            e(f"""v_mul_u32_u24 v{vT+3}, 3584, v{vT+3}
            v_lshl_add_u32 v{vT+3}, v{vT+2}, 4, v{vT+3}
            v_and_b32 v{vT+4}, 64, v{vT+1}
            v_lshl_add_u32 v{vT+3}, v{vT+4}, 20, v{vT+3}
            s_mul_i32 s{S_T0}, s{S_CB}, 224
            s_sub_u32 s{S_T0}, s{S_T0}, {1024*j}
            v_add_u32 v{vWs+j}, s{S_T0}, v{vT+3}""")
    if fh == 0: e(f"s_mul_i32 s{S_MW}, s{S_TG}, 3072\ns_add_u32 s{S_MW}, s{S_MW}, {L_WQ}")
    else:       e(f"s_lshl_b32 s{S_MW}, s{S_TG}, 12\ns_add_u32 s{S_MW}, s{S_MW}, {L_WH}")
    e("s_waitcnt lgkmcnt(0)")
    stamp("rt0", True); stamp("t0")
    srd(R_X, P_X, 2048*512*2)
    if fh == 0: srd(R_WA, P_WQKV, 512*1536*2)
    else:       srd(R_WA, P_W1, 512*1792*2)
    wstride = 3072 if fh == 0 else 3584
    dma_t = {}
    def dma_ops(c):
        s = c % 3; ops = []
        def one(mb, mo, so, va, R, off, first):
            def f():
                if off == 0:
                    e(f"s_add_u32 m0, s{mb}, {mo}")
                    if first: e(f"s_add_u32 s{S_SX}, s{S_KO}, {128*c}\ns_and_b32 s{S_SX}, s{S_SX}, 1023")
                    else: e(f"s_mul_i32 s{S_SW}, s{S_SX}, {wstride//2}")
                dma_t[c] = e(f"buffer_load_dwordx4 v{va}, {sr(R,4)}, s{so} offen offset:{off} lds")
            return f
        for j in range(2): ops.append(one(S_MX, L_X + 16384*s, S_SX, vXs+j, R_X, 1024*j, True))
        for j in range(NW): ops.append(one(S_MW, 16384*s, S_SW, vWs+j, R_WA, 1024*j, False))
        return ops
    return dma_ops, dma_t

def xread_setup():
    vXr = v.alloc(2); vG = v.alloc(1)
    e(f"""v_lshrrev_b32 v{vG}, 4, v{vL}
    v_and_b32 v{vT}, 15, v{vL}
    v_lshrrev_b32 v{vT+1}, 1, v{vT}
    v_xor_b32 v{vT+1}, v{vT+1}, v{vG}
    v_lshlrev_b32 v{vT+1}, 4, v{vT+1}
    v_lshl_add_u32 v{vT+1}, v{vT}, 7, v{vT+1}
    s_lshl_b32 s{S_T0}, s{S_TG}, 12
    v_add_u32 v{vXr}, s{S_T0}, v{vT+1}
    v_xor_b32 v{vXr+1}, 64, v{vXr}
    v_lshrrev_b32 v{vT+2}, 2, v{vL}
    v_and_b32 v{vT+3}, 3, v{vL}
    v_lshlrev_b32 v{vT+3}, 3, v{vT+3}
    s_lshl_b32 s{S_T0}, s{S_RB}, 12
    s_lshl_b32 s{S_T1}, s{S_CB}, 8
    s_add_u32 s{S_FO}, s{S_T0}, s{S_T1}
    s_add_u32 s{S_FO}, s{S_FO}, {WS_FLG}""")
    return vXr, vG

def kloop(reads, mfmas, dma_ops, dma_t, extras, head, tailx):
    tick = {}
    def block(ks, extra):
        R = reads(ks+1) if ks < 15 else []
        M = mfmas(ks)
        nx = len(extra); done = 0
        if ks > 0: e.wait(lg=e.lgq)
        for i, (deps, tx) in enumerate(M):
            e.wait(lg=max(tick[(ks, d)] for d in deps))
            e(tx)
            for _ in range(2 if i < 2 else 1):
                if R:
                    nm, rt = R.pop(0); tick[(ks+1, nm)] = e(rt)
            while done < nx and (2*done+1)*len(M) <= 2*(i+1)*nx:
                extra[done](); done += 1
        for nm, rt in R: tick[(ks+1, nm)] = e(rt)
        for x in extra[done:]: x()
    stamp("setup_done")
    t_c0 = dma_t[0]
    d1 = dma_ops(1)
    for f in d1[:OPT['npro']]: f()
    e.wait(vm=t_c0); e.wait_all(vm=False)
    e("s_barrier")
    stamp("c0_landed")
    for nm, tx in reads(0): tick[(0, nm)] = e(tx)
    for f in d1[OPT['npro']:]: f()
    pend = dma_ops(2); last = []
    for c in range(8):
        block(2*c, pend)
        ex = []
        if c < 7:
            tailx(c)
            e.wait(vm=dma_t[c+1]); e.wait_all(vm=False)
            e("s_barrier")
            if OPT['fine'] or c in (0, 6): stamp(f"b{c}b")
            head(c)
            if c + 3 < 8: ex = dma_ops(c+3)
            ex = ex + extras(c)
        if c == 6:
            h = (len(ex) + 2) // 3; last = ex[2*h:]; ex = ex[:2*h]
        if c == 7: ex = last + last
        h = (len(ex) + 1) // 2
        block(2*c+1, ex[:h]); pend = ex[h:]
    stamp("kloop_end")

MF16 = "v_mfma_f32_16x16x32_bf16"
MF32 = "v_mfma_f32_32x32x16_bf16"

def g_stream():
    NREG = OPT['nreg']
    g = {'w2': v.alloc(2), 'wo': v.alloc(2), 't': {}}
    vR = v.alloc(6)
    FR = v.alloc(72, 4)
    g_mark = v.mark()
    fX = [FR, FR + 36]; fW = [FR + 8, FR + 44]
    dma_ops, dma_t = dma_setup(0)
    for f in dma_ops(0): f()
    stamp("r0_issued")
    srd(R_WS, P_WS, WS_SIZE)
    L1 = e.newlabel()
    e(f"""s_or_b32 s{S_T0}, s2, s{S_W}
    s_cmp_lg_u32 s{S_T0}, 0
    s_cbranch_scc1 {L1}
    s_memrealtime s[{S_EX}:{S_EX+1}]
    s_waitcnt lgkmcnt(0)
    s_or_b32 s{S_T0}, s{S_EX}, 1
    v_mov_b32 v{vT}, s{S_T0}""")
    opt_vm(f"global_store_dword v{vZ}, v{vT}, {sr(P_DBG,2)} sc1")
    e(f"{L1}:")
    vXr, vG = xread_setup()
    vWh = v.alloc(7); vCs = v.alloc(7); vSt = v.alloc(1); vN = v.alloc(1); vB1 = v.alloc(14, 2)
    e(f"""v_mul_u32_u24 v{vT+4}, 224, v{vT+2}
    v_add_u32 v{vT+4}, v{vT+4}, v{vT+3}
    v_add_u32 v{vT+4}, {L_WH}, v{vT+4}
    v_lshlrev_b32 v{vT}, 3, v{vG}
    v_lshlrev_b32 v{vT+1}, 4, v{vG}
    v_add_u32 v{vT+1}, {L_CS}, v{vT+1}
    s_lshl_b32 s{S_T2}, s{S_RB}, 2
    s_add_u32 s{S_T2}, s{S_T2}, s{S_TG}
    s_mul_i32 s{S_T2}, s{S_T2}, 144
    s_mul_i32 s{S_T1}, s{S_CB}, 7
    s_add_u32 s{S_T2}, s{S_T2}, s{S_T1}
    s_mul_i32 s{S_T3}, s{S_CB}, 224""")
    for j, d in enumerate([0, 4, 1, 2, 3, 5, 6]):
        e(f"""s_add_u32 s{S_T4}, s{S_TG}, {d}
        s_cmp_ge_u32 s{S_T4}, 7
        s_cselect_b32 s{S_T0}, 7, 0
        s_sub_u32 s{S_T4}, s{S_T4}, s{S_T0}
        s_lshl_b32 s{S_T0}, s{S_T4}, 5
        v_add_u32 v{vWh+j}, s{S_T0}, v{vT+4}
        s_add_u32 s{S_T1}, s{S_T0}, s{S_T3}
        v_add_u32 v{vB1+2*j}, s{S_T1}, v{vT}
        s_lshl_b32 s{S_T0}, s{S_T0}, 1
        v_add_u32 v{vCs+j}, s{S_T0}, v{vT+1}
        s_add_u32 s{S_T4}, s{S_T4}, s{S_T2}
        s_lshl_b32 s{S_T4}, s{S_T4}, 10
        s_add_u32 s{S_SO+j}, s{S_T4}, {WS_ACT}""")
    e(f"""v_and_b32 v{vT}, 15, v{vL}
    s_lshl_b32 s{S_T0}, s{S_TG}, 9
    s_add_u32 s{S_T0}, s{S_T0}, {L_STATS}
    v_lshlrev_b32 v{vT}, 4, v{vT}
    v_add_u32 v{vSt}, s{S_T0}, v{vT}""")
    aH = v.alloc(56, 4); aCS = v.alloc(8, 4); vOnes = v.alloc(4, 4); cC = v.alloc(2, 2)
    for i in range(4): e(f"v_mov_b32 v{vOnes+i}, 0x3f803f80")
    e(f"v_mov_b32 v{cC}, {f2u(GC0)}\nv_mov_b32 v{cC+1}, {f2u(GC1)}")
    srd(R_W2, P_W2, 1792*512*2); srd(R_WO, P_WO, 512*512*2); srd(R_OUT, P_OUT, 2048*512*2)
    e(f"""s_lshr_b32 s{S_T1}, s2, 3
    s_and_b32 s{S_T0}, s2, 7
    s_lshl_b32 s{S_T0}, s{S_T0}, 2
    s_and_b32 s{S_T2}, s{S_T1}, 3
    s_add_u32 s{S_R4}, s{S_T0}, s{S_T2}
    s_lshr_b32 s{S_C4}, s{S_T1}, 2
    v_lshrrev_b32 v{vT}, 2, v{vL}
    v_and_b32 v{vT}, 4, v{vT}
    v_and_b32 v{vT+1}, 7, v{vL}
    v_xor_b32 v{vT}, v{vT}, v{vT+1}
    v_lshlrev_b32 v{vT}, 4, v{vT}
    s_lshl_b32 s{S_T0}, s{S_C4}, 7
    v_add_u32 v{vT}, s{S_T0}, v{vT}
    v_lshrrev_b32 v{vT+1}, 3, v{vL}
    s_mul_i32 s{S_T0}, s{S_W}, 448
    v_add_u32 v{vT+2}, s{S_T0}, v{vT+1}
    v_lshl_add_u32 v{g['w2']}, v{vT+2}, 10, v{vT}
    v_add_u32 v{g['w2']+1}, {8192-1024}, v{g['w2']}
    v_and_b32 v{vT+1}, 3, v{vT+1}
    v_lshrrev_b32 v{vT+2}, 5, v{vL}
    v_lshl_add_u32 v{vT+1}, v{vT+2}, 3, v{vT+1}
    s_lshl_b32 s{S_T0}, s{S_W}, 7
    v_add_u32 v{vT+1}, s{S_T0}, v{vT+1}
    v_lshl_add_u32 v{g['wo']}, v{vT+1}, 10, v{vT}
    v_add_u32 v{g['wo']+1}, {4096-1024}, v{g['wo']}
    s_lshl_b32 s{S_MG}, s{S_W}, 11""")
    ROT = {0: f"s_mov_b32 s{S_OFFO}, 0",
           1: f"s_and_b32 s{S_T0}, s{S_R4}, 3\ns_lshl_b32 s{S_T1}, s{S_T0}, 1\ns_add_u32 s{S_OFFO}, s{S_T1}, s{S_C4}\ns_and_b32 s{S_OFFO}, s{S_OFFO}, 7",
           2: f"s_and_b32 s{S_T0}, s{S_C4}, 1\ns_lshl_b32 s{S_T0}, s{S_T0}, 2\ns_add_u32 s{S_OFFO}, s{S_T0}, s2\ns_and_b32 s{S_OFFO}, s{S_OFFO}, 7",
           3: f"s_lshl_b32 s{S_T0}, s{S_C4}, 1\ns_add_u32 s{S_OFFO}, s{S_T0}, s2\ns_and_b32 s{S_OFFO}, s{S_OFFO}, 7",
           4: f"s_and_b32 s{S_OFFO}, s2, 7"}[OPT['rot']]
    e(ROT)
    e(f"""s_mul_i32 s{S_T1}, s{S_OFFO}, 7
    s_lshr_b32 s{S_T1}, s{S_T1}, 1
    s_lshl_b32 s{S_GW}, s{S_T1}, 14
    s_lshl_b32 s{S_GA}, s{S_T1}, 10""")
    e(f"""v_lshrrev_b32 v{vT}, 5, v{vL}
    v_lshlrev_b32 v{vT}, 10, v{vT}
    v_lshrrev_b32 v{vT+1}, 2, v{vL}
    v_and_b32 v{vT+1}, 3, v{vT+1}
    v_lshl_add_u32 v{vT}, v{vT+1}, 7, v{vT}
    v_and_b32 v{vT+1}, 2, v{vT+1}
    v_lshl_add_u32 v{vT}, v{vT+1}, 5, v{vT}
    v_and_b32 v{vT+1}, 16, v{vL}
    v_lshl_add_u32 v{vT}, v{vT+1}, 1, v{vT}
    v_and_b32 v{vT+1}, 3, v{vL}
    v_lshl_add_u32 v{vT}, v{vT+1}, 3, v{vT}
    s_and_b32 s{S_T0}, s{S_W}, 1
    s_lshl_b32 s{S_T0}, s{S_T0}, 6
    v_xor_b32 v{vT}, s{S_T0}, v{vT}
    v_add_u32 v{vR}, s{S_MG}, v{vT}
    v_xor_b32 v{vR+1}, 64, v{vR}
    v_add_u32 v{vR+2}, 49152, v{vR}
    v_add_u32 v{vR+3}, 49152, v{vR+1}
    v_add_u32 v{vR+4}, 98304, v{vR}
    v_add_u32 v{vR+5}, 98304, v{vR+1}""")
    def g_dma(s):
        gam = RING[s % NRING]
        e(f"s_add_u32 m0, s{S_MG}, {8192*gam}")
        if s < 28: vv, R, so = g['w2'], R_W2, S_GW
        else:
            vv, R, so = g['wo'], R_WO, S_T4
            e(f"s_add_u32 s{S_T4}, s{S_OFFO}, {s-28}\ns_and_b32 s{S_T4}, s{S_T4}, 7\ns_lshl_b32 s{S_T4}, s{S_T4}, 14")
        e(f"buffer_load_dwordx4 v{vv}, {sr(R,4)}, s{so} offen lds")
        g['t'][s] = e(f"buffer_load_dwordx4 v{vv+1}, {sr(R,4)}, s{so} offen offset:1024 lds")
        if s < 27:
            e(f"s_add_u32 s{S_GW}, s{S_GW}, 16384\ns_cmp_lt_u32 s{S_GW}, {28*16384}\ns_cselect_b32 s{S_GW}, s{S_GW}, 0")
    def reads(ks):
        c, kk = divmod(ks, 2); s = c % 3; b = ks % 2
        R = [("x0", f"ds_read_b128 {vr(fX[b],4)}, v{vXr+kk} offset:{L_X+16384*s}"),
             ("x1", f"ds_read_b128 {vr(fX[b]+4,4)}, v{vXr+kk} offset:{L_X+16384*s+2048}")]
        for j in range(7):
            for h2 in range(2):
                R.append((f"w{j}", f"ds_read_b64_tr_b16 {vr(fW[b]+4*j+2*h2,2)}, v{vWh+j} offset:{16384*s+7168*kk+3584*h2}"))
        return R
    def mfmas(ks):
        b = ks % 2; c0 = (lambda r: "0") if ks == 0 else (lambda r: vr(r, 4))
        M = []
        for j in range(7):
            if j < 2: M.append(((f"w{j}",), f"{MF16} {vr(aCS+4*j,4)}, {vr(fW[b]+4*j,4)}, {vr(vOnes,4)}, {c0(aCS+4*j)}"))
            for f in range(2):
                acc = aH + 8*j + 4*f
                M.append(((f"w{j}", "x0", "x1"), f"{MF16} {vr(acc,4)}, {vr(fW[b]+4*j,4)}, {vr(fX[b]+4*f,4)}, {c0(acc)}"))
        return M
    b1t = []; tN = []
    def b1_load(j): b1t.append(e(f"global_load_dwordx2 {vr(vB1+2*j,2)}, v{vB1+2*j}, {sr(P_B1,2)}"))
    vP2 = v.alloc(2)
    e(f"""s_lshr_b32 s{S_T0}, s2, 3
    s_and_b32 s{S_PG}, s{S_T0}, 3
    {f"s_add_u32 s{S_T0}, s{S_T0}, s2" if OPT['pfrot'] else ""}
    s_and_b32 s{S_T0}, s{S_T0}, 31""" if not OPT['pfrot'] else f"""s_lshr_b32 s{S_T0}, s2, 3
    s_and_b32 s{S_PG}, s{S_T0}, 3
    s_and_b32 s{S_T1}, s2, 7
    s_add_u32 s{S_T0}, s{S_T0}, s{S_T1}
    s_and_b32 s{S_T0}, s{S_T0}, 31""")
    e(f"""s_lshl_b32 s{S_T0}, s{S_T0}, 2
    s_add_u32 s{S_T0}, s{S_T0}, s{S_W}
    s_mul_i32 s{S_T1}, s{S_T0}, {14*1024}
    s_lshl_b32 s{S_T0}, s{S_T0}, 12
    v_lshlrev_b32 v{vT}, 7, v{vL}
    v_add_u32 v{vP2}, s{S_T1}, v{vT}
    v_add_u32 v{vP2+1}, s{S_T0}, v{vT}""")
    def pf2(t):
        if not OPT['pf2'] or not 0 <= t < 12: return
        bu, gam = divmod(t, 4)
        e(f"s_cmp_eq_u32 s{S_PG}, {gam}")
        if bu < 2:
            e(f"s_cselect_b32 exec_lo, -1, 0\ns_cselect_b32 exec_hi, 0xffff, 0\ns_movk_i32 s{S_T4}, {6144*bu}")
            e(f"buffer_load_dword v{vPF}, v{vP2}, {sr(R_W2,4)}, s{S_T4} offen")
        else:
            e(f"s_cselect_b32 exec_lo, 0xffff, 0\ns_mov_b32 exec_hi, 0\ns_movk_i32 s{S_T4}, {12288}")
            e(f"buffer_load_dword v{vPF}, v{vP2}, {sr(R_W2,4)}, s{S_T4} offen")
            e(f"s_cselect_b32 exec_lo, -1, 0")
            e(f"buffer_load_dword v{vPF}, v{vP2+1}, {sr(R_WO,4)}, 0 offen")
        e("s_mov_b64 exec, -1")
    def extras(c):
        if c == 5: return [(lambda s=s: g_dma(s)) for s in range(OPT['n5'])]
        if c == 6: return [(lambda s=s: g_dma(s)) for s in range(OPT['n5'], OPT['n5'] + OPT['n6'])]
        return []
    def tailx(c):
        pf2(2*c - 1)
        if c == 2:
            for j in range(7): b1_load(j)
        if c == 4: tN.append(e(f"global_load_dword v{vN}, v{vZ}, {sr(P_DBG,2)} sc1"))
    kloop(reads, mfmas, dma_ops, dma_t, extras, lambda c: pf2(2*c), tailx)
    e(f"""s_mov_b32 exec_lo, 0x00010001
    s_mov_b32 exec_hi, 0x00010001
    ds_write_b128 v{vCs}, {vr(aCS,4)}
    ds_write_b128 v{vCs+1}, {vr(aCS+4,4)}
    s_mov_b64 exec, -1""")
    e.wait(vm=tN[0])
    get_nonce(vN)
    e.wait_all(vm=False)
    e("s_barrier")
    stamp("xchg_bar")
    stt = v.alloc(8, 4); cs = v.alloc(28, 4); bb = vOnes; tm = v.alloc(8, 2); hp = aCS
    e(f"ds_read_b128 {vr(stt,4)}, v{vSt}")
    tst = e(f"ds_read_b128 {vr(stt+4,4)}, v{vSt} offset:256")
    tcs = [e(f"ds_read_b128 {vr(cs+4*j,4)}, v{vCs+j}") for j in range(7)]
    rt = {}
    fa = [0, 0]
    def wreg(s): return FR + 8*s if s < NREG else fa[s % 2]
    def tr_reads(s):
        gam = RING[s % NRING]; win = gam // 6; off = 8192*gam - 49152*win
        e.wait(vm=g['t'][s])
        for ch in range(2):
            for h2 in range(2):
                rt[s] = e(f"ds_read_b64_tr_b16 {vr(wreg(s)+4*ch+2*h2,2)}, v{vR+2*win+ch} offset:{off+512*h2}")
    gq = list(range(OPT['n5'] + OPT['n6'], NRING + NREG)); rq = list(range(NREG))
    def gpace():
        if gq:
            s = gq.pop(0)
            if s >= NRING:
                while s - NRING not in rt: tr_reads(rq.pop(0))
                e.wait(lg=rt[s - NRING])
            g_dma(s)
    th = None
    for j in range(7):
        A = aH + 8*j
        e(f"""v_lshlrev_b32 v{bb}, 16, v{vB1+2*j}
        v_and_b32 v{bb+1}, 0xffff0000, v{vB1+2*j}
        v_lshlrev_b32 v{bb+2}, 16, v{vB1+2*j+1}
        v_and_b32 v{bb+3}, 0xffff0000, v{vB1+2*j+1}""")
        e.wait(lg=tcs[j])
        P4 = range(4)
        S4 = lambda p: stt + 4*(p//2)
        for p in P4: e(f"v_pk_fma_f32 {vr(tm+2*p,2)}, {vr(cs+4*j+2*(p%2),2)}, {vr(S4(p),2)}, {vr(bb+2*(p%2),2)} op_sel:[0,1,0] op_sel_hi:[1,1,1]")
        for p in P4: e(f"v_pk_fma_f32 {vr(A+2*p,2)}, {vr(A+2*p,2)}, {vr(S4(p),2)}, {vr(tm+2*p,2)} op_sel_hi:[1,0,1]")
        for p in P4: e(f"v_pk_mul_f32 {vr(tm+2*p,2)}, {vr(A+2*p,2)}, {vr(A+2*p,2)}")
        for p in P4: e(f"v_pk_fma_f32 {vr(tm+2*p,2)}, {vr(tm+2*p,2)}, {vr(cC,2)}, {vr(cC,2)} op_sel:[0,1,0] op_sel_hi:[1,1,0]")
        for p in P4: e(f"v_pk_mul_f32 {vr(tm+2*p,2)}, {vr(tm+2*p,2)}, {vr(A+2*p,2)}")
        if j < 6 and OPT['gp'] >= 2: gpace()
        for i in range(8): e(f"v_exp_f32 v{tm+i}, v{tm+i}")
        for p in P4: e(f"v_pk_fma_f32 {vr(tm+2*p,2)}, {vr(tm+2*p,2)}, {vr(S4(p)+2,2)}, {vr(S4(p)+2,2)} op_sel_hi:[1,0,0]")
        if j < 6 and OPT['gp'] >= 3: gpace()
        if 1 <= j <= 3:
            for _ in range(3):
                if rq: tr_reads(rq.pop(0))
        for i in range(8): e(f"v_rcp_f32 v{tm+i}, v{tm+i}")
        for p in P4: e(f"v_pk_mul_f32 {vr(A+2*p,2)}, {vr(A+2*p,2)}, {vr(tm+2*p,2)}")
        P = hp + 4*(j % 2)
        for i in range(4): e(f"v_cvt_pk_bf16_f32 v{P+i}, v{A+2*i}, v{A+2*i+1}")
        e(f"v_permlane16_swap_b32 v{P}, v{P+2}\nv_permlane16_swap_b32 v{P+1}, v{P+3}")
        th = e(f"buffer_store_dwordx4 {vr(P,4)}, v{vL16}, {sr(R_WS,4)}, s{S_SO+j} offen sc1")
        if j < 5 and OPT['gp'] >= 1: gpace()
        if j in (1, 3): fstamp(f"gelu{j}")
    stamp("gelu_end")
    v.release(g_mark)
    vF = v.alloc(1); vFt = v.alloc(1); vA = v.alloc(2); vOm = v.alloc(1); vB2 = v.alloc(8, 2)
    acc = v.alloc(64, 4); fa[0] = v.alloc(8, 4); fa[1] = v.alloc(8, 4); ab = v.alloc(8*DACT, 4)
    assert hp >= vB2 + 8
    while rq: tr_reads(rq.pop(0))
    e(f"""v_and_b32 v{vF}, 15, v{vL}
    v_lshlrev_b32 v{vF}, 8, v{vF}
    s_lshr_b32 s{S_T0}, s{S_R4}, 1
    s_lshl_b32 s{S_T0}, s{S_T0}, 12
    s_add_u32 s{S_T0}, s{S_T0}, {WS_FLG + 65536}
    v_add_u32 v{vF}, s{S_T0}, v{vF}
    s_mul_i32 s{S_T0}, s{S_R4}, 288
    s_mul_i32 s{S_T1}, s{S_W}, 28
    s_add_u32 s{S_T0}, s{S_T0}, s{S_T1}
    s_lshl_b32 s{S_T0}, s{S_T0}, 10
    s_add_u32 s{S_T0}, s{S_T0}, {WS_ACT}
    s_add_u32 s{S_T1}, s{S_T0}, {144*1024}
    s_cmp_ge_u32 s{S_W}, 2
    s_cselect_b32 s{S_T2}, s{S_T1}, s{S_T0}
    s_cselect_b32 s{S_T3}, s{S_T0}, s{S_T1}
    v_add_u32 v{vA}, s{S_T2}, v{vL16}
    v_add_u32 v{vA+1}, s{S_T3}, v{vL16}
    s_and_b32 s{S_T0}, s{S_W}, 1
    s_lshl_b32 s{S_T0}, s{S_T0}, 6
    s_lshl_b32 s{S_T1}, s{S_C4}, 7
    s_add_u32 s{S_T0}, s{S_T0}, s{S_T1}
    v_lshrrev_b32 v{vT+2}, 5, v{vL}
    v_lshlrev_b32 v{vT+2}, 3, v{vT+2}
    v_add_u32 v{vT+2}, s{S_T0}, v{vT+2}""")
    e.wait(vm=th)
    publish(1, 4, 1, vT, vT+1)
    stamp("pub_h")
    while gq: gpace()
    for gi in range(4): e(f"global_load_dwordx2 {vr(vB2+2*gi,2)}, v{vT+2}, {sr(P_B2,2)} offset:{16*gi}")
    stamp("wpre")
    poll(vF, vFt)
    stamp("h_seen")
    at = {}
    def act_load(s):
        sl = ab + 8*(s % DACT)
        if s == 28:
            e(f"""s_mul_i32 s{S_T0}, s{S_W}, {-20*1024}
            s_add_u32 s{S_T0}, s{S_T0}, {112*1024}
            v_add_u32 v{vA}, s{S_T0}, v{vA}
            v_add_u32 v{vA+1}, s{S_T0}, v{vA+1}""")
        if s >= 28:
            e(f"s_add_u32 s{S_GA}, s{S_OFFO}, {s-28}\ns_and_b32 s{S_GA}, s{S_GA}, 7\ns_lshl_b32 s{S_GA}, s{S_GA}, 10")
        e(f"buffer_load_dwordx4 {vr(sl,4)}, v{vA}, {sr(R_WS,4)}, s{S_GA} offen sc1")
        at[s] = e(f"buffer_load_dwordx4 {vr(sl+4,4)}, v{vA+1}, {sr(R_WS,4)}, s{S_GA} offen sc1")
        if s < 27:
            e(f"s_add_u32 s{S_GA}, s{S_GA}, 1024\ns_cmp_lt_u32 s{S_GA}, {28*1024}\ns_cselect_b32 s{S_GA}, s{S_GA}, 0")
    for s in range(DACT): act_load(s)
    e(f"v_add_u32 v{vF}, 65536, v{vF}")
    if NREG == 0: tr_reads(0)
    tf = None
    for s in range(36):
        if NREG <= s + 1 < 36: tr_reads(s+1)
        e.wait(vm=at[s], lg=rt[s])
        sl = ab + 8*(s % DACT)
        for ch in range(2):
            for tk in range(2):
                a = acc + 16*(2*tk + ch)
                e(f"{MF32} {vr(a,16)}, {vr(wreg(s)+4*ch,4)}, {vr(sl+4*tk,4)}, {'0' if s == 0 else vr(a,16)}")
        if s in (0, 4, 8, 12, 16, 24, 28, 32): stamp(f"g{s}")
        if s == 28 - DACT - 4:
            tf = e(f"buffer_load_dword v{vFt}, v{vF}, {sr(R_WS,4)}, 0 offen sc1")
        if s + DACT == 28:
            stamp("pre_opoll")
            poll(vF, vFt, tf)
            stamp("o_seen")
            e(f"""s_lshr_b32 s{S_T0}, s{S_W}, 1
            s_lshl_b32 s{S_T0}, s{S_T0}, 7
            s_lshl_b32 s{S_T1}, s{S_R4}, 8
            s_add_u32 s{S_T0}, s{S_T0}, s{S_T1}
            s_add_u32 s{S_T0}, s{S_T0}, {WS_OMG}
            v_and_b32 v{vT}, 31, v{vL}
            v_lshlrev_b32 v{vT}, 2, v{vT}""")
            e(f"buffer_load_dword v{vOm}, v{vT}, {sr(R_WS,4)}, s{S_T0} offen sc1")
        if s + DACT < 36: act_load(s + DACT)
        if s >= NREG and s + NRING < 36: g_dma(s + NRING)
    stamp("g_loop_end")
    vW = vR; red = ab; bb = FR
    e(f"v_add_u32 v{vW}, s{S_MG}, v{vL16}")
    for j in range(1, 4): e(f"v_xor_b32 v{vW+j}, {2048*j}, v{vW}")
    for gi in range(4):
        e(f"""v_lshlrev_b32 v{bb+4*gi}, 16, v{vB2+2*gi}
        v_and_b32 v{bb+4*gi+1}, 0xffff0000, v{vB2+2*gi}
        v_lshlrev_b32 v{bb+4*gi+2}, 16, v{vB2+2*gi+1}
        v_and_b32 v{bb+4*gi+3}, 0xffff0000, v{vB2+2*gi+1}""")
    for j in (2, 1, 3):
        for gi in range(4):
            e(f"ds_write_b128 v{vW}, {vr(acc+16*j+4*gi,4)} offset:{8192*(2*j+gi//2)+1024*(gi%2)}")
    fin = acc
    for i in range(16): e(f"v_fma_f32 v{fin+i}, v{vOm}, v{bb+i}, v{fin+i}")
    e(f"""s_lshr_b32 s{S_T0}, s{S_W}, 1
    s_lshl_b32 s{S_T0}, s{S_T0}, 5
    s_lshl_b32 s{S_T1}, s{S_R4}, 6
    s_add_u32 s{S_T0}, s{S_T0}, s{S_T1}
    s_lshl_b32 s{S_T0}, s{S_T0}, 10
    s_lshl_b32 s{S_T1}, s{S_C4}, 7
    s_add_u32 s{S_T0}, s{S_T0}, s{S_T1}
    s_and_b32 s{S_T1}, s{S_W}, 1
    s_lshl_b32 s{S_T1}, s{S_T1}, 6
    s_add_u32 s{S_T0}, s{S_T0}, s{S_T1}
    v_and_b32 v{vT}, 31, v{vL}
    v_lshlrev_b32 v{vT}, 10, v{vT}
    v_lshrrev_b32 v{vT+1}, 5, v{vL}
    v_lshl_add_u32 v{vT}, v{vT+1}, 4, v{vT}""")
    e.wait_all(vm=False)
    e("s_barrier")
    stamp("red_bar")
    tks = []
    for j in range(1, 4):
        for gi in range(4):
            tks.append(e(f"ds_read_b128 {vr(red+16*(j-1)+4*gi,4)}, v{vW+j} offset:{8192*(2*j+gi//2)+1024*(gi%2)}"))
    for j in range(3):
        for gi in range(4):
            e.wait(lg=tks[4*j+gi])
            for i in (4*gi, 4*gi+2): e(f"v_pk_add_f32 {vr(fin+i,2)}, {vr(fin+i,2)}, {vr(red+16*j+i,2)}")
    P = FR + 16
    for i in range(8): e(f"v_cvt_pk_bf16_f32 v{P+i}, v{fin+2*i}, v{fin+2*i+1}")
    e(f"""v_permlane32_swap_b32 v{P}, v{P+2}
    v_permlane32_swap_b32 v{P+1}, v{P+3}
    v_permlane32_swap_b32 v{P+4}, v{P+6}
    v_permlane32_swap_b32 v{P+5}, v{P+7}
    buffer_store_dwordx4 {vr(P,4)}, v{vT}, {sr(R_OUT,4)}, s{S_T0} offen
    buffer_store_dwordx4 {vr(P+4,4)}, v{vT}, {sr(R_OUT,4)}, s{S_T0} offen offset:32""")
    stamp_flush()
    e("s_endpgm")

def a_stream():
    dma_ops, dma_t = dma_setup(1)
    L1 = e.newlabel()
    e(f"s_cmp_lg_u32 s{S_W}, 4\ns_cbranch_scc1 {L1}\ns_mov_b32 m0, {L_GW}")
    opt_vm(f"global_load_lds_dwordx4 v{vL16}, {sr(P_GW,2)}")
    e(f"{L1}:")
    for f in dma_ops(0): f()
    stamp("r0_issued")
    srd(R_WS, P_WS, WS_SIZE); srd(R_WO, P_WO, 512*512*2)
    L1 = e.newlabel()
    q = e.lgq
    e(f"""s_cmp_lg_u32 s{S_W}, 5
    s_cbranch_scc1 {L1}
    v_mov_b32 v{vT}, 0x3f803f80
    v_mov_b32 v{vT+1}, 0x3f803f80
    v_lshlrev_b32 v{vT+2}, 3, v{vL}
    v_add_u32 v{vT+2}, {L_ONES}, v{vT+2}
    ds_write_b64 v{vT+2}, v[{vT}:{vT+1}]
    ds_write_b64 v{vT+2}, v[{vT}:{vT+1}] offset:512
    v_lshlrev_b32 v{vT+4}, 2, v{vL}
    v_add_u32 v{vT+4}, {L_CNT}, v{vT+4}
    ds_write_b32 v{vT+4}, v{vZ}
    s_waitcnt lgkmcnt(0)
    {L1}:""")
    e.lgq = q
    vXr, vG = xread_setup()
    vWq = v.alloc(2); vGw = v.alloc(2); vSw = v.alloc(1); vOw = v.alloc(1); vN = v.alloc(1)
    e(f"""v_mul_u32_u24 v{vT+4}, 192, v{vT+2}
    v_add_u32 v{vT+4}, v{vT+4}, v{vT+3}
    v_add_u32 v{vT+4}, {L_WQ}, v{vT+4}
    v_and_b32 v{vT+5}, 1, v{vG}
    v_lshlrev_b32 v{vT+5}, 5, v{vT+5}
    v_add_u32 v{vWq}, v{vT+4}, v{vT+5}
    v_sub_u32 v{vWq+1}, v{vT+4}, v{vT+5}
    v_and_b32 v{vT}, 1, v{vL}
    v_mul_u32_u24 v{vT}, {L_ONES-L_GW}, v{vT}
    v_lshlrev_b32 v{vT+1}, 4, v{vG}
    v_sub_u32 v{vT+1}, v{vT+1}, v{vT}
    v_add_u32 v{vGw}, {L_ONES}, v{vT+1}
    v_and_b32 v{vT}, 15, v{vL}
    s_lshl_b32 s{S_T0}, s{S_TG}, 5
    v_add_u32 v{vT+1}, s{S_T0}, v{vT}
    v_lshlrev_b32 v{vSw}, 4, v{vT+1}
    v_add_u32 v{vSw}, {L_STATS}, v{vSw}
    s_lshl_b32 s{S_T0}, s{S_RB}, 9
    s_add_u32 s{S_T0}, s{S_T0}, {WS_OMG}
    s_cmp_eq_u32 s{S_CB}, 0
    s_cselect_b32 s{S_T0}, s{S_T0}, {WS_SIZE}
    v_lshlrev_b32 v{vOw}, 2, v{vT+1}
    v_add_u32 v{vOw}, s{S_T0}, v{vOw}
    s_lshl_b32 s{S_T1}, s{S_RB}, 2
    s_add_u32 s{S_T1}, s{S_T1}, s{S_TG}
    s_lshl_b32 s{S_T0}, s{S_CB}, 8
    s_add_u32 s{S_T0}, s{S_T0}, s{S_T1}
    s_lshl_b32 s{S_SO}, s{S_T0}, 10
    s_lshl_b32 s{S_T0}, s{S_CB}, 7
    s_add_u32 s{S_T0}, s{S_T0}, s{S_T1}
    s_add_u32 s{S_T0}, s{S_T0}, 4096
    s_lshl_b32 s{S_SO+4}, s{S_T0}, 10
    s_add_u32 s{S_SO+5}, s{S_SO+4}, 65536
    s_cmp_lt_u32 s{S_CB}, 8
    s_cselect_b32 s{S_SC}, {QSCALE}, 1.0
    s_mov_b32 s{S_SC+1}, 0""")
    for j in range(1, 4): e(f"s_add_u32 s{S_SO+j}, s{S_SO}, {65536*j}")
    for r, m in ((S_C1, 0x22222222), (S_C2, 0x44444444), (S_C3, 0x88888888)):
        e(f"s_mov_b32 s{r}, {hex(m)}\ns_mov_b32 s{r+1}, {hex(m)}")
    aQ = v.alloc(48, 4); aGR = v.alloc(8, 4); aSM = v.alloc(8, 4)
    fm = v.mark()
    fX = [v.alloc(8, 4) for _ in range(2)]; fW = [v.alloc(24, 4) for _ in range(2)]; fG = [v.alloc(4, 4) for _ in range(2)]
    def reads(ks):
        c, kk = divmod(ks, 2); s = c % 3; b = ks % 2
        R = [("x0", f"ds_read_b128 {vr(fX[b],4)}, v{vXr+kk} offset:{L_X+16384*s}"),
             ("x1", f"ds_read_b128 {vr(fX[b]+4,4)}, v{vXr+kk} offset:{L_X+16384*s+2048}")]
        pre = f"s_add_u32 s{S_KG}, s{S_KO}, {128*c}\ns_and_b32 s{S_KG}, s{S_KG}, 1023\nv_add_u32 v{vGw+1}, s{S_KG}, v{vGw}\n" if kk == 0 else ""
        R.append(("g", pre + f"ds_read_b128 {vr(fG[b],4)}, v{vGw+1} offset:{64*kk}"))
        for t in range(6):
            for h2 in range(2):
                R.append((f"w{t}", f"ds_read_b64_tr_b16 {vr(fW[b]+4*t+2*h2,2)}, v{vWq+(t&1)} offset:{16384*s+6144*kk+3072*h2+32*t}"))
        return R
    def mfmas(ks):
        b = ks % 2; c0 = (lambda r: "0") if ks == 0 else (lambda r: vr(r, 4))
        M = []
        for f in range(2): M.append(((f"x{f}",), f"{MF16} {vr(aGR+4*f,4)}, {vr(fX[b]+4*f,4)}, {vr(fX[b]+4*f,4)}, {c0(aGR+4*f)}"))
        for f in range(2): M.append((("g",), f"{MF16} {vr(aSM+4*f,4)}, {vr(fG[b],4)}, {vr(fX[b]+4*f,4)}, {c0(aSM+4*f)}"))
        for t in range(6):
            for f in range(2):
                acc = aQ + 8*t + 4*f
                opA, opB = vr(fW[b]+4*t,4), vr(fX[b]+4*f,4)
                if t >= 4: opA, opB = opB, opA
                M.append(((f"w{t}",), f"{MF16} {vr(acc,4)}, {opA}, {opB}, {c0(acc)}"))
        return M
    if OPT['kprio']: e("s_setprio 1")
    tN = []
    def head(c):
        if c == 6: tN.append(e(f"global_load_dword v{vN}, v{vZ}, {sr(P_DBG,2)} sc1"))
    kloop(reads, mfmas, dma_ops, dma_t, lambda c: [], head, lambda c: None)
    v.release(fm)
    w = [v.alloc(8, 4) for _ in range(2)]
    seq = [
     "v_cndmask_b32 v{w4}, v{G0}, v{G1}, s[%d:%d]" % (S_C1, S_C1+1),
     "v_mul_f32 v{w6}, %d, v{S1}" % f2u(LOG2E),
     "v_cndmask_b32 v{w4}, v{w4}, v{G2}, s[%d:%d]" % (S_C2, S_C2+1),
     "v_mul_f32 v{w5}, %d, v{S0}" % f2u(1.0/512),
     "v_cndmask_b32 v{w4}, v{w4}, v{G3}, s[%d:%d]" % (S_C3, S_C3+1),
     "v_exp_f32 v{w2}, v{w6}",
     "v_mul_f32 v{w4}, %d, v{w4}" % f2u(1.0/512),
     "v_exp_f32 v{w3}, -v{w6}",
     "v_fma_f32 v{w4}, -v{w5}, v{w5}, v{w4}",
     "v_add_f32 v{w2}, 1.0, v{w2}",
     "v_max_f32 v{w4}, 0, v{w4}",
     "v_add_f32 v{w3}, 1.0, v{w3}",
     "v_add_f32 v{w4}, %d, v{w4}" % f2u(1e-5),
     "v_min_f32 v{w2}, %d, v{w2}" % f2u(1e30),
     "v_rsq_f32 v{w0}, v{w4}",
     "v_rcp_f32 v{w3}, v{w3}",
     "v_mul_f32 v{w1}, -v{w5}, v{w0}",
    ]
    for ln in seq:
        for f in range(2):
            d = {f"w{i}": w[f]+i for i in range(8)}
            d.update({f"G{i}": aGR+4*f+i for i in range(4)}); d.update(S0=aSM+4*f, S1=aSM+4*f+1)
            e(ln.format(**d))
    e(f"""s_mov_b32 exec_lo, 0x00f0000f
    s_mov_b32 exec_hi, 0xf0000f00
    ds_write_b128 v{vSw}, {vr(w[0],4)}
    ds_write_b128 v{vSw}, {vr(w[1],4)} offset:256
    v_rcp_f32 v{w[0]+7}, v{w[0]+2}
    v_rcp_f32 v{w[1]+7}, v{w[1]+2}""")
    if not OPT['qfirst']:
        e.wait_all(vm=False)
        e("s_barrier")
    e(f"buffer_store_dword v{w[0]+7}, v{vOw}, {sr(R_WS,4)}, 0 offen sc1")
    e(f"buffer_store_dword v{w[1]+7}, v{vOw}, {sr(R_WS,4)}, 0 offen offset:64 sc1")
    e("s_mov_b64 exec, -1")
    if not OPT['qfirst']: stamp("xchg_bar")
    if OPT['aprio']: e("s_setprio 2")
    pk = v.alloc(24, 4)
    def pack(j):
        A = aQ + 8*j; P = pk + 4*j
        if j < 4:
            if OPT['qfirst']:
                for i in range(8): e(f"v_mul_f32 v{A+i}, s{S_SC}, v{A+i}")
            else:
                for p in range(4): e(f"v_pk_mul_f32 {vr(A+2*p,2)}, {vr(A+2*p,2)}, s[{S_SC}:{S_SC+1}] op_sel_hi:[1,0]")
        for i in range(4): e(f"v_cvt_pk_bf16_f32 v{P+i}, v{A+2*i}, v{A+2*i+1}")
    def swap(j):
        P = pk + 4*j; n = 16 if j < 4 else 32
        e(f"v_permlane{n}_swap_b32 v{P}, v{P+2}\nv_permlane{n}_swap_b32 v{P+1}, v{P+3}")
    def store(j): return e(f"buffer_store_dwordx4 {vr(pk+4*j,4)}, v{vL16}, {sr(R_WS,4)}, s{S_SO+j} offen sc1")
    for j in range(6):
        pack(j)
        if j > 0: swap(j-1); store(j-1)
    swap(5); tq = store(5)
    stamp("qkv_issued")
    if OPT['qfirst']:
        e.wait_all(vm=False)
        e("s_barrier")
        stamp("xchg_bar")
    keep = pk + 24
    v.release(common_mark)
    S_HEAD, S_TQ, S_KB, S_NV = S_R4, S_C4, S_MX, S_MW
    vF = v.alloc(1); vFt = v.alloc(1); vVo = v.alloc(1); vGt = v.alloc(2); vM = v.alloc(2); vPM = v.alloc(8)
    e.wait(vm=tN[0])
    get_nonce(vN)
    K = v.alloc(40, 4); Q = v.alloc(8, 4)
    D = [v.alloc(16, 4) for _ in range(2)]; Mg = v.alloc(16, 4); C = v.alloc(16, 4); O = v.alloc(16, 4)
    Pb = [v.alloc(8, 4) for _ in range(2)]
    Vv = v.alloc(80, 4)
    e(f"""s_and_b32 s{S_T0}, s{S_TG}, 1
    s_lshl_b32 s{S_HEAD}, s{S_CB}, 1
    s_add_u32 s{S_HEAD}, s{S_HEAD}, s{S_T0}
    s_and_b32 s{S_T0}, s{S_TG}, 2
    s_lshl_b32 s{S_TQ}, s{S_RB}, 2
    s_add_u32 s{S_TQ}, s{S_TQ}, s{S_T0}""")
    for kind in range(3):
        if kind < 2: e(f"s_lshr_b32 s{S_T0}, s{S_CB}, 1\ns_lshl_b32 s{S_T0}, s{S_T0}, 8\ns_add_u32 s{S_T0}, s{S_T0}, {WS_FLG + 2048*kind}")
        else: e(f"s_lshl_b32 s{S_T0}, s{S_CB}, 8\ns_add_u32 s{S_T0}, s{S_T0}, {WS_FLG}")
        for d in range(1 if kind == 0 else 3):
            e(f"""s_sub_i32 s{S_T1}, s{S_RB}, {d}
            s_max_i32 s{S_T1}, s{S_T1}, 0
            s_lshl_b32 s{S_T1}, s{S_T1}, 12
            s_add_u32 s{S_T1}, s{S_T1}, s{S_T0}""")
            if kind == 0: e(f"v_mov_b32 v{vF}, s{S_T1}")
            else: e(f"v_writelane_b32 v{vF}, s{S_T1}, {1 + 3*(kind-1) + d}")
    e(f"""v_and_b32 v{vT}, 31, v{vL}
    s_and_b32 s{S_T0}, s{S_TG}, 2
    s_lshl_b32 s{S_T0}, s{S_T0}, 9
    s_add_u32 s{S_T0}, s{S_T0}, {L_STATS + 12}
    v_lshlrev_b32 v{vT+1}, 4, v{vT}
    v_add_u32 v{vT+1}, s{S_T0}, v{vT+1}
    ds_read_b32 v{vGt}, v{vT+1}
    ds_read_b32 v{vGt+1}, v{vT+1} offset:512""")
    if OPT['aprio']: e("s_setprio 0")
    e.wait(vm=tq)
    publish(0, 4, 0, vT+2, vT+3)
    stamp("pub_qkv")
    if OPT['wopf']:
        e(f"""s_lshr_b32 s{S_T0}, s2, 3
        s_lshl_b32 s{S_T0}, s{S_T0}, 2
        s_add_u32 s{S_T0}, s{S_T0}, s{S_TG}
        s_lshl_b32 s{S_T0}, s{S_T0}, 12
        v_lshlrev_b32 v{vT+2}, 7, v{vT}
        buffer_load_dword v{vFt}, v{vT+2}, {sr(R_WO,4)}, s{S_T0} offen""")
    e(f"""v_lshrrev_b32 v{vT+2}, 5, v{vL}
    v_lshlrev_b32 v{vT+3}, 2, v{vT+2}
    v_sub_u32 v{vT+3}, v{vT}, v{vT+3}""")
    for r in range(16):
        e(f"v_cmp_le_i32 s[{S_MASK+2*r}:{S_MASK+2*r+1}], {8*(r//4) + r%4}, v{vT+3}")
    e(f"v_mov_b32 v{vT+4}, 0xffff\nv_mov_b32 v{vT+5}, 0xffff0000")
    for i in range(8):
        e(f"""v_cndmask_b32 v{vPM+i}, 0, v{vT+4}, s[{S_MASK+4*i}:{S_MASK+4*i+1}]
        v_cndmask_b32 v{vVo}, 0, v{vT+5}, s[{S_MASK+4*i+2}:{S_MASK+4*i+3}]
        v_or_b32 v{vPM+i}, v{vPM+i}, v{vVo}""")
    e(f"""v_and_b32 v{vVo}, 15, v{vL}
    v_lshl_add_u32 v{vVo}, v{vT+2}, 4, v{vVo}
    v_lshlrev_b32 v{vVo}, 4, v{vVo}
    s_lshl_b32 s{S_KB}, s{S_HEAD}, 6
    s_add_u32 s{S_KB}, s{S_KB}, s{S_TQ}
    s_lshl_b32 s{S_KB}, s{S_KB}, 10
    s_sub_i32 s{S_NV}, 8, s{S_TQ}
    s_max_i32 s{S_NV}, s{S_NV}, 0""")
    for i in range(10):
        e(f"s_cmp_gt_u32 s{S_NV}, {i}\ns_cselect_b32 s{S_T0}, 0, 0x3f803f80\nv_mov_b32 v{Vv+8*i}, s{S_T0}")
        for k in range(1, 8): e(f"v_mov_b32 v{Vv+8*i+k}, v{Vv+8*i}")
    poll(vF, vFt)
    stamp("qkv_seen")
    if OPT['aprio']: e("s_setprio 2")
    def guard(i):
        if i >= 8: return lambda: None
        L = e.newlabel("L_sk")
        e.flush_haz()
        e(f"s_cmp_gt_u32 s{S_NV}, {i}\ns_cbranch_scc1 {L}")
        def close():
            e.flush_haz(); e(f"{L}:")
        return close
    kt = {}; vt = {}; qt = {}
    def off(base, i):
        e(f"s_add_u32 s{S_T0}, s{S_KB}, {(base*64 - 8 + i)*1024}")
        if i < 8: e(f"s_cmp_gt_u32 s{S_NV}, {i}\ns_cselect_b32 s{S_T0}, {WS_SIZE}, s{S_T0}")
    def ldq(u): qt[u] = e(f"buffer_load_dwordx4 {vr(Q+4*u,4)}, v{vL16}, {sr(R_WS,4)}, s{S_KB} offen offset:{1024*u} sc1")
    def ldk(i):
        off(32, i)
        kt[i] = e(f"buffer_load_dwordx4 {vr(K+4*i,4)}, v{vL16}, {sr(R_WS,4)}, s{S_T0} offen sc1")
    def ldv(i):
        off(64, i)
        e(f"s_mov_b32 exec_lo, 0xffff\ns_mov_b32 exec_hi, 0xffff")
        e(f"buffer_load_dwordx4 {vr(Vv+8*i,4)}, v{vVo}, {sr(R_WS,4)}, s{S_T0} offen sc1")
        vt[i] = e(f"buffer_load_dwordx4 {vr(Vv+8*i+4,4)}, v{vVo}, {sr(R_WS,4)}, s{S_T0} offen offset:512 sc1")
        e("s_mov_b64 exec, -1")
    LD = [(ldq,0),(ldk,8),(ldk,0),(ldk,1),(ldk,2),(ldv,0),(ldv,8),(ldk,3),(ldv,1),(ldk,4),(ldv,2),(ldk,5),(ldv,3),(ldk,6),(ldv,4),(ldk,7),(ldv,5),(ldv,6),(ldq,1),(ldk,9),(ldv,7),(ldv,9)]
    def ld_more(n):
        for _ in range(n):
            if LD:
                f, i = LD.pop(0); f(i)
    def finalize(u):
        e(f"""s_add_u32 s{S_T0}, s{S_TQ}, {u}
        s_mul_i32 s{S_T0}, s{S_T0}, 144
        s_add_u32 s{S_T0}, s{S_T0}, s{S_HEAD}
        s_add_u32 s{S_T0}, s{S_T0}, 112
        s_lshl_b32 s{S_T0}, s{S_T0}, 10
        s_add_u32 s{S_T0}, s{S_T0}, {WS_ACT}
        v_rcp_f32 v{vM}, v{O+8}
        v_mul_f32 v{vM}, v{vM}, v{vGt+u}""")
        for r in range(8): e(f"v_mul_f32 v{O+r}, v{O+r}, v{vM}")
        P = C + 4*u
        for k in range(4): e(f"v_cvt_pk_bf16_f32 v{P+k}, v{O+2*k}, v{O+2*k+1}")
        e(f"buffer_store_dwordx4 {vr(P,4)}, v{vL16}, {sr(R_WS,4)}, s{S_T0} offen sc1")
    def merged_tail():
        for r in range(16):
            e(f"v_exp_f32 v{Mg+r}, v{Mg+r}")
            if r % 4 == 3: ld_more(1)
        for i in range(8): e(f"v_cvt_pk_bf16_f32 v{Mg+i}, v{Mg+2*i}, v{Mg+2*i+1}")
        for i in range(8): e(f"v_and_b32 v{Mg+8+i}, v{Mg+i}, v{vPM+i}")
        for i in range(8): e(f"v_xor_b32 v{Mg+i}, v{Mg+i}, v{Mg+8+i}")
    ld_more(OPT['nld0'] if OPT['fast'] else 99)
    e.wait(lg=e.lgq)
    if OPT['fast']:
        for u in range(2):
            q = vr(Q+4*u, 4); first = [True]
            def qk(i, dst):
                while i not in kt: ld_more(1)
                e.wait(vm=max(kt[i], qt[u]))
                e(f"{MF32} {vr(dst,16)}, {vr(K+4*i,4)}, {q}, 0")
            def pv1(i, P, sidx):
                while i not in vt: ld_more(1)
                e.wait(vm=vt[i])
                e(f"{MF32} {vr(O,16)}, {vr(Vv+8*i+4*sidx,4)}, {vr(P+4*sidx,4)}, {'0' if first[0] else vr(O,16)}")
                first[0] = False
            far, diag = u, u + 8; mids = list(range(u+1, u+8))
            if u == 0:
                qk(diag, D[1]); qk(far, Mg)
            qk(mids[0], D[0])
            for r in range(16):
                e(f"v_cndmask_b32 v{Mg+r}, v{Mg+r}, v{D[1]+r}, s[{S_MASK+2*r}:{S_MASK+2*r+1}]")
            merged_tail()
            fstamp(f"mg{u}")
            pend = [(far, Mg, 0), (far, Mg, 1), (diag, Mg+8, 0), (diag, Mg+8, 1)]
            for n, i in enumerate(mids):
                b = D[n % 2]; P = Pb[n % 2]; mf = []
                if n + 1 < 7: mf.append(lambda n=n: qk(mids[n+1], D[(n+1) % 2]))
                take = 3 if len(pend) > 2 else len(pend)
                for x in pend[:take]: mf.append(lambda x=x: pv1(*x))
                pend = pend[take:]
                if n == 6 and u == 0:
                    def nxt(i2, dst):
                        e.wait(vm=max(kt[i2], qt[1]))
                        e(f"{MF32} {vr(dst,16)}, {vr(K+4*i2,4)}, {vr(Q+4,4)}, 0")
                    mf += [lambda: nxt(9, D[1]), lambda: nxt(1, Mg)]
                slots = {4*k: f for k, f in enumerate(mf)}
                for r in range(16):
                    if r in slots: slots[r]()
                    e(f"v_exp_f32 v{b+r}, v{b+r}")
                    if r % 4 == 2: ld_more(1)
                for k in range(8):
                    e(f"v_cvt_pk_bf16_f32 v{P+k}, v{b+2*k}, v{b+2*k+1}")
                    if n == 6 and k == 5: pv1(i, P, 0)
                pend += [(i, P, 0), (i, P, 1)] if n < 6 else [(i, P, 1)]
            for x in pend: pv1(*x)
            assert not LD
            lo, hi = (2.0**-64, 2.0**64) if not OPT['forcefb'] else (2.0**60, 2.0**64)
            e(f"""v_cmp_gt_f32 vcc, {f2u(lo)}, v{O+8}
            s_mov_b64 s[{S_EX}:{S_EX+1}], vcc
            v_cmp_nge_f32 vcc, {f2u(hi)}, v{O+8}
            s_or_b64 vcc, vcc, s[{S_EX}:{S_EX+1}]
            s_cbranch_vccnz L_att_gen""")
            finalize(u)
            stamp(f"unit{u}")
    else:
        e("s_branch L_att_gen")
    e("L_att_pub:")
    e.wait_all(lg=False)
    publish(2, 4, 2, vT, vT+1)
    stamp_flush()
    e("s_endpgm")
    e("L_att_gen:")
    e("s_nop 15")
    e.wait_all()
    for u in range(2):
        q = vr(Q+4*u, 4); first = [True]
        def qk(i, dst, c): e(f"{MF32} {vr(dst,16)}, {vr(K+4*i,4)}, {q}, {c}")
        def pv(i, P):
            for s in range(2):
                e(f"{MF32} {vr(O,16)}, {vr(Vv+8*i+4*s,4)}, {vr(P+4*s,4)}, {'0' if first[0] else vr(O,16)}")
                first[0] = False
        far, diag = u, u + 8; mids = list(range(u+1, u+8))
        qk(diag, D[0], "0")
        for r in range(16): e(f"v_mov_b32 v{D[1]+r}, 0xff800000")
        cl = guard(far); qk(far, D[1], "0"); cl()
        for r in range(16):
            e(f"v_cndmask_b32 v{Mg+r}, v{D[1]+r}, v{D[0]+r}, s[{S_MASK+2*r}:{S_MASK+2*r+1}]")
        e(f"v_max_f32 v{vM}, v{Mg}, v{Mg+1}\nv_max_f32 v{vM+1}, v{Mg+2}, v{Mg+3}")
        for r in range(4, 16, 4):
            e(f"v_max3_f32 v{vM}, v{vM}, v{Mg+r}, v{Mg+r+1}\nv_max3_f32 v{vM+1}, v{vM+1}, v{Mg+r+2}, v{Mg+r+3}")
        for n, i in enumerate(mids):
            b = D[n % 2]
            cl = guard(i)
            qk(i, b, "0")
            for r in range(0, 16, 4):
                e(f"v_max3_f32 v{vM}, v{vM}, v{b+r}, v{b+r+1}\nv_max3_f32 v{vM+1}, v{vM+1}, v{b+r+2}, v{b+r+3}")
            cl()
        e(f"""v_max_f32 v{vM}, v{vM}, v{vM+1}
        v_mov_b32 v{vM+1}, v{vM}
        v_permlane32_swap_b32 v{vM}, v{vM+1}
        v_max_f32 v{vM}, v{vM}, v{vM+1}""")
        for r in range(16): e(f"v_sub_f32 v{C+r}, 0, v{vM}")
        for r in range(16): e(f"v_add_f32 v{Mg+r}, v{Mg+r}, v{C}")
        merged_tail()
        pv(diag, Mg+8)
        cl = guard(far); pv(far, Mg); cl()
        for n, i in enumerate(mids):
            b = D[n % 2]; P = Pb[n % 2]
            cl = guard(i)
            qk(i, b, vr(C, 16))
            for r in range(16): e(f"v_exp_f32 v{b+r}, v{b+r}")
            for k in range(8): e(f"v_cvt_pk_bf16_f32 v{P+k}, v{b+2*k}, v{b+2*k+1}")
            pv(i, P)
            cl()
        finalize(u)
    e("s_branch L_att_pub")

g_stream()
e.restore(common_state); v.release(common_mark)
e("L_streamA:")
cur_stream[0] = "A"
a_stream()
body = e.text() + "".join("\n".join((l if l.strip().endswith(":") else "    " + l.strip()).rstrip() if not l.strip().endswith(":") else l.strip() for l in t.split("\n") if l.strip()) + "\n" for t in tail) + "L_end:\n    s_endpgm\n"

hdr = open("gated_mix__sliding_block__mixer_channel_mlp__prompt.s.ref").read().split("; Override launch")[0]
txt = hdr + f"""; Generated by my own generator script (single persistent launch; hand-off flags in d_ws carry a per-launch nonce).
; @launch grid=(256,1,1) block=(512,1,1) lds=163840
.amdgcn_target "amdgcn-amd-amdhsa--gfx950"
.text
.globl {NAME}
.p2align 8
.type {NAME},@function
{NAME}:
""" + body + f""".section .rodata,"a"
.p2align 6
.amdhsa_kernel {NAME}
  .amdhsa_next_free_vgpr 256
  .amdhsa_next_free_sgpr 102
  .amdhsa_accum_offset 256
  .amdhsa_group_segment_fixed_size 0
  .amdhsa_kernarg_size 96
  .amdhsa_user_sgpr_count 2
  .amdhsa_user_sgpr_kernarg_segment_ptr 1
  .amdhsa_system_sgpr_workgroup_id_x 1
.end_amdhsa_kernel
"""
out = sys.argv[1]
open(out, "w").write(txt)
if STAMP:
    import json; json.dump(stamp_names, open(out + ".names.json", "w"))
print("vgpr high water", v.hw, "nops", e.nops, "lines", txt.count("\n"), file=sys.stderr)
```

```python
import sys, math, struct
from emit import *

NAME = "gated_mix__sliding_block__mixer_channel_mlp__prompt_kernel"
STAMP = "--stamp" in sys.argv
ECHO = [a.split("=")[1] for a in sys.argv if a.startswith("--echo=")]
ECHO = ECHO[0] if ECHO else None
OPT = dict(rot=2, nreg=9, codepf=1, aprio=1, sleep=2, fine=0, npro=3, krot=3, n5=6, n6=6, wopf=0, fast=1, forcefb=0, gp=1, pf2=2, pfrot=1, kprio=1, nld0=9, qfirst=1, ntl=0, pf0=1)
for a in sys.argv:
    if a.startswith("--o:"):
        k, vv = a[4:].split("="); assert k in OPT, k; OPT[k] = int(vv)

def f2u(x): return struct.unpack("<I", struct.pack("<f", x))[0]
LOG2E = 1.4426950408889634
QSCALE = f2u(0.25 * LOG2E)
GC0 = -2.0 * math.sqrt(2.0 / math.pi) * LOG2E
GC1 = GC0 * 0.044715

WS_QKV = 0
WS_ACT = 8 << 20
WS_OMG = 20 << 20
WS_FLG = 21 << 20
WS_DBG = 24 << 20
WS_SIZE = 32 << 20
L_X, L_WQ, L_WH, L_MISC = 0, 49152, 98304, 147456
L_GW = L_MISC; L_ONES = L_MISC + 1152; L_STATS = L_MISC + 2304; L_CS = L_MISC + 4352; L_CNT = L_MISC + 4864
L_VSCR = L_MISC + 8192
RING = [4, 5, 10, 11, 16, 17, 0, 1, 6, 7, 12, 13, 2, 3, 8, 9, 14, 15]
NRING = 18
DACT = 8
SPIN = 200000

S_FO = 3
P_X, P_WQKV, P_WO, P_W1, P_B1, P_W2, P_B2, P_GW, P_OUT, P_DBG, P_WS = 4, 6, 8, 12, 14, 16, 18, 20, 22, 24, 26
S_ST = 10
R_X, R_WA, R_WS, R_W2, R_WO, R_OUT = 28, 32, 36, 40, 44, 48
R_W1 = 88
S_SH, S_MH, S_PG = 71, 72, 73
S_W, S_TG, S_RB, S_CB, S_R4, S_C4, S_NONCE = 52, 53, 54, 55, 56, 57, 58
S_T0, S_T1, S_T2, S_T3, S_T4 = 59, 60, 61, 62, 63
S_MASK = 64
S_SO = 64
S_SC = 70
S_VM = 76
S_C1, S_C2, S_C3 = 82, 84, 86
S_GW, S_GA, S_OFFO = 84, 85, 86
S_SX, S_SW, S_KO, S_KG = 92, 93, 94, 95
S_MX, S_MW, S_MG = 96, 97, 98
S_SPIN = 99
S_EX = 100

e = Em()
stamp_names = {}
cur_stream = ["G"]
def stamp(name, real=False):
    if ECHO == name and cur_stream[0] == "G": e("s_memtime s[78:79]")
    if not STAMP: return
    d = stamp_names.setdefault(cur_stream[0], [])
    if name in d: idx = d.index(name)
    else: d.append(name); idx = len(d) - 1
    assert idx < 64
    e(f"""{'s_memrealtime' if real else 's_memtime'} s[{S_ST}:{S_ST+1}]
    s_waitcnt lgkmcnt(0)
    v_writelane_b32 v255, s{S_ST}, {idx}""")
    e.lg_done = e.lgq
def fstamp(name):
    if OPT['fine']: stamp(name)
def stamp_flush():
    if ECHO and cur_stream[0] == "G":
        stamp("end")
        L = e.newlabel("L_echo")
        e(f"""s_memtime s[80:81]
        s_waitcnt lgkmcnt(0)
        s_sub_u32 s78, s78, s76
        s_min_u32 s78, s78, 400000
        {L}:
        s_memtime s[82:83]
        s_waitcnt lgkmcnt(0)
        s_sub_u32 s82, s82, s80
        s_cmp_lt_u32 s82, s78
        s_cbranch_scc1 {L}""")
    if not STAMP: return
    stamp("end"); stamp("rt_end", True)
    e(f"""s_lshl_b32 s{S_ST}, s2, 3
    s_add_u32 s{S_ST}, s{S_ST}, s{S_W}
    s_lshl_b32 s{S_ST}, s{S_ST}, 8
    s_add_u32 s{S_ST}, s{S_ST}, {WS_DBG}
    v_lshlrev_b32 v254, 2, v{vL}
    buffer_store_dword v255, v254, {sr(R_WS,4)}, s{S_ST} offen""")

def srd(r, p, size):
    e(f"""s_mov_b32 s{r}, s{p}
    s_mov_b32 s{r+1}, s{p+1}
    s_mov_b32 s{r+2}, {size}
    s_mov_b32 s{r+3}, 0x20000""")

def opt_vm(text):
    q = e.vmq; e(text); e.vmq = q

def get_nonce(vN):
    Ln = e.newlabel("L_n"); Lk = e.newlabel("L_nk")
    st = e.state()
    e(f"""v_readfirstlane_b32 s{S_NONCE}, v{vN}
    s_mov_b32 s{S_SPIN}, {SPIN}
    s_cmp_lg_u32 s{S_NONCE}, 0
    s_cbranch_scc0 {Ln}
    {Lk}:""")
    tail.append(f"""{Ln}:
    global_load_dword v{vN}, v{vZ}, {sr(P_DBG,2)} sc1
    s_waitcnt vmcnt(0)
    v_readfirstlane_b32 s{S_NONCE}, v{vN}
    s_sub_u32 s{S_SPIN}, s{S_SPIN}, 1
    s_cmp_eq_u32 s{S_SPIN}, 0
    s_cbranch_scc1 {Lk}
    s_cmp_lg_u32 s{S_NONCE}, 0
    s_cbranch_scc1 {Lk}
    s_branch {Ln}""")
tail = []

def publish(cnt_idx, total, stage, vt0, vt1):
    e(f"""s_mov_b64 exec, 1
    v_mov_b32 v{vt0}, {L_CNT + 4*cnt_idx}
    v_mov_b32 v{vt1}, 1
    ds_add_rtn_u32 v{vt1}, v{vt0}, v{vt1}
    s_add_u32 s{S_T0}, s{S_FO}, {stage*65536}
    v_mov_b32 v{vt0}, s{S_NONCE}""")
    e.wait_all(vm=False)
    L = e.newlabel("L_pub")
    e(f"""v_cmp_eq_u32 vcc, {total-1}, v{vt1}
    s_and_b64 exec, exec, vcc
    s_cbranch_execz {L}""")
    opt_vm(f"buffer_store_dword v{vt0}, v{vZ}, {sr(R_WS,4)}, s{S_T0} offen sc1")
    e(f"{L}:\ns_mov_b64 exec, -1")

def poll(vaddr, vtmp, first_ticket=None):
    L = e.newlabel("L_poll"); Lo = e.newlabel("L_pout")
    if first_ticket is None:
        first_ticket = e(f"buffer_load_dword v{vtmp}, v{vaddr}, {sr(R_WS,4)}, 0 offen sc1")
    e(f"s_mov_b32 s{S_SPIN}, {SPIN}")
    e.wait(vm=first_ticket)
    e(f"""v_cmp_ne_u32 vcc, s{S_NONCE}, v{vtmp}
    s_cbranch_vccnz {L}
    {Lo}:""")
    tail.append(f"""{L}:
    {('s_sleep %d' % OPT['sleep']) if OPT['sleep'] else ''}
    buffer_load_dword v{vtmp}, v{vaddr}, {sr(R_WS,4)}, 0 offen sc1
    s_waitcnt vmcnt(0)
    v_cmp_ne_u32 vcc, s{S_NONCE}, v{vtmp}
    s_sub_u32 s{S_SPIN}, s{S_SPIN}, 1
    s_cmp_eq_u32 s{S_SPIN}, 0
    s_cbranch_scc1 {Lo}
    s_nop 2
    s_cbranch_vccnz {L}
    s_branch {Lo}""")

v = Regs(1, 254 if STAMP else 256)
vL = v.alloc(); vL16 = v.alloc(); vZ = v.alloc()
vT = v.alloc(6, 2)
common_mark = v.mark()
vPF = 0
if ECHO: e("s_memtime s[76:77]")
e(f"""s_cmp_ge_u32 s2, 256
s_cbranch_scc1 L_end
s_load_dwordx16 s[4:19], s[0:1], 0
s_load_dwordx8 s[20:27], s[0:1], 64
v_lshrrev_b32 v{vT}, 6, v0
v_and_b32 v{vL}, 63, v0
v_readfirstlane_b32 s{S_W}, v{vT}
v_lshlrev_b32 v{vL16}, 4, v{vL}
v_mov_b32 v{vZ}, 0
s_and_b32 s{S_T0}, s2, 1
s_lshl_b32 s{S_T0}, s{S_T0}, 3
s_lshr_b32 s{S_T1}, s2, 3
s_and_b32 s{S_T2}, s{S_T1}, 7
s_add_u32 s{S_RB}, s{S_T0}, s{S_T2}
s_lshr_b32 s{S_T0}, s2, 1
s_and_b32 s{S_T0}, s{S_T0}, 3
s_lshl_b32 s{S_T0}, s{S_T0}, 2
s_lshr_b32 s{S_T2}, s2, 6
s_add_u32 s{S_CB}, s{S_T0}, s{S_T2}
s_and_b32 s{S_TG}, s{S_W}, 3
""")
if OPT['codepf']:
    e(f"""s_cmp_lg_u32 s{S_W}, 7
    s_cbranch_scc1 L_nocpf
    s_getpc_b64 s[{S_EX}:{S_EX+1}]
    L_pc:
    v_and_b32 v{vT}, 15, v{vL}
    s_lshl_b32 s{S_T0}, s{S_T1}, 4
    v_add_u32 v{vT}, s{S_T0}, v{vT}
    v_lshlrev_b32 v{vT}, 7, v{vT}
    v_min_u32 v{vT}, L_end-L_pc, v{vT}""")
    opt_vm(f"global_load_dword v{vPF}, v{vT}, s[{S_EX}:{S_EX+1}]")
    e("L_nocpf:")
KROT = {0: f"s_mov_b32 s{S_KO}, 0",
        2: f"s_add_u32 s{S_KO}, s{S_RB}, s{S_CB}\ns_and_b32 s{S_KO}, s{S_KO}, 3\ns_lshl_b32 s{S_KO}, s{S_KO}, 8\ns_lshr_b32 s{S_T0}, s2, 1\ns_xor_b32 s{S_T0}, s{S_T0}, s2\ns_and_b32 s{S_T0}, s{S_T0}, 1\ns_lshl_b32 s{S_T0}, s{S_T0}, 7\ns_add_u32 s{S_KO}, s{S_KO}, s{S_T0}",
        3: f"s_lshl_b32 s{S_KO}, s{S_CB}, 1\ns_add_u32 s{S_KO}, s{S_KO}, s{S_RB}\ns_and_b32 s{S_KO}, s{S_KO}, 7\ns_lshl_b32 s{S_KO}, s{S_KO}, 7",
        5: f"s_lshl_b32 s{S_KO}, s{S_CB}, 1\ns_add_u32 s{S_KO}, s{S_KO}, s{S_RB}\ns_lshr_b32 s{S_T0}, s{S_CB}, 2\ns_and_b32 s{S_T0}, s{S_T0}, 1\ns_add_u32 s{S_KO}, s{S_KO}, s{S_T0}\ns_and_b32 s{S_KO}, s{S_KO}, 7\ns_lshl_b32 s{S_KO}, s{S_KO}, 7",
        }[OPT['krot']]
e(f"""{KROT}
s_cmp_ge_u32 s{S_W}, 4
s_cbranch_scc1 L_streamA
""")
common_state = e.state()

def kperm_code(vrho, vk, vt):
    e(f"""v_and_b32 v{vk}, 0x23, v{vrho}
    v_lshrrev_b32 v{vt}, 2, v{vrho}
    v_and_b32 v{vt}, 3, v{vt}
    v_lshl_add_u32 v{vk}, v{vt}, 3, v{vk}
    v_lshrrev_b32 v{vt}, 4, v{vrho}
    v_and_b32 v{vt}, 1, v{vt}
    v_lshl_add_u32 v{vk}, v{vt}, 2, v{vk}""")

def dma_setup(fh):
    NW = 3 if fh == 0 else 4
    vXs = v.alloc(2); vWs = v.alloc(NW)
    e(f"""s_lshl_b32 s{S_T0}, s{S_RB}, 7
    s_lshl_b32 s{S_T1}, s{S_W}, 4
    s_add_u32 s{S_T0}, s{S_T0}, s{S_T1}
    v_lshrrev_b32 v{vT}, 3, v{vL}
    v_add_u32 v{vT}, s{S_T0}, v{vT}
    v_lshlrev_b32 v{vT}, 10, v{vT}
    v_lshrrev_b32 v{vT+1}, 4, v{vL}
    v_and_b32 v{vT+2}, 7, v{vL}
    v_xor_b32 v{vT+2}, v{vT+2}, v{vT+1}
    v_lshlrev_b32 v{vT+2}, 4, v{vT+2}
    v_add_u32 v{vXs}, v{vT}, v{vT+2}
    v_xor_b32 v{vT+2}, 64, v{vT+2}
    v_add_u32 v{vXs+1}, v{vT}, v{vT+2}
    v_add_u32 v{vXs+1}, 7168, v{vXs+1}
    s_lshl_b32 s{S_MX}, s{S_W}, 11""")
    for j in range(NW):
        if fh == 0:
            e(f"""s_mul_i32 s{S_T0}, s{S_TG}, 192
            s_add_u32 s{S_T0}, s{S_T0}, {64*j}
            v_add_u32 v{vT}, s{S_T0}, v{vL}
            v_mul_u32_u24 v{vT+1}, 43691, v{vT}
            v_lshrrev_b32 v{vT+1}, 19, v{vT+1}
            v_mul_u32_u24 v{vT+2}, 12, v{vT+1}
            v_sub_u32 v{vT+2}, v{vT}, v{vT+2}""")
            kperm_code(vT+1, vT+3, vT+4)
            e(f"""v_lshrrev_b32 v{vT+4}, 1, v{vT+1}
            v_and_b32 v{vT+4}, 2, v{vT+4}
            v_xor_b32 v{vT+2}, v{vT+2}, v{vT+4}
            v_mul_u32_u24 v{vT+3}, 3072, v{vT+3}
            v_lshl_add_u32 v{vT+3}, v{vT+2}, 4, v{vT+3}
            v_lshrrev_b32 v{vT+4}, 3, v{vT+2}
            s_lshl_b32 s{S_T1}, s{S_CB}, 6
            s_sub_u32 s{S_T1}, 1920, s{S_T1}
            v_mad_u32_u24 v{vT+3}, v{vT+4}, s{S_T1}, v{vT+3}
            s_lshl_b32 s{S_T0}, s{S_CB}, 7
            s_sub_u32 s{S_T0}, s{S_T0}, {1024*j}
            v_add_u32 v{vWs+j}, s{S_T0}, v{vT+3}""")
        else:
            e(f"""s_lshl_b32 s{S_T0}, s{S_TG}, 8
            s_add_u32 s{S_T0}, s{S_T0}, {64*j}
            v_add_u32 v{vT}, s{S_T0}, v{vL}
            v_mul_u32_u24 v{vT+1}, 4682, v{vT}
            v_lshrrev_b32 v{vT+1}, 16, v{vT+1}
            v_mul_u32_u24 v{vT+2}, 14, v{vT+1}
            v_sub_u32 v{vT+2}, v{vT}, v{vT+2}""")
            kperm_code(vT+1, vT+3, vT+4)
            e(f"""v_mul_u32_u24 v{vT+3}, 3584, v{vT+3}
            v_lshl_add_u32 v{vT+3}, v{vT+2}, 4, v{vT+3}
            v_and_b32 v{vT+4}, 64, v{vT+1}
            v_lshl_add_u32 v{vT+3}, v{vT+4}, 20, v{vT+3}
            s_mul_i32 s{S_T0}, s{S_CB}, 224
            s_sub_u32 s{S_T0}, s{S_T0}, {1024*j}
            v_add_u32 v{vWs+j}, s{S_T0}, v{vT+3}""")
    if fh == 0: e(f"s_mul_i32 s{S_MW}, s{S_TG}, 3072\ns_add_u32 s{S_MW}, s{S_MW}, {L_WQ}")
    else:       e(f"s_lshl_b32 s{S_MW}, s{S_TG}, 12\ns_add_u32 s{S_MW}, s{S_MW}, {L_WH}")
    e("s_waitcnt lgkmcnt(0)")
    stamp("rt0", True); stamp("t0")
    srd(R_X, P_X, 2048*512*2)
    if fh == 0: srd(R_WA, P_WQKV, 512*1536*2)
    else:       srd(R_WA, P_W1, 512*1792*2)
    wstride = 3072 if fh == 0 else 3584
    dma_t = {}
    def dma_ops(c):
        s = c % 3; ops = []
        def one(mb, mo, so, va, R, off, first):
            def f():
                if off == 0:
                    e(f"s_add_u32 m0, s{mb}, {mo}")
                    if first: e(f"s_add_u32 s{S_SX}, s{S_KO}, {128*c}\ns_and_b32 s{S_SX}, s{S_SX}, 1023")
                    else: e(f"s_mul_i32 s{S_SW}, s{S_SX}, {wstride//2}")
                nt = " nt" if OPT['ntl'] and (c == 7 or (c == 6 and first)) else ""
                dma_t[c] = e(f"buffer_load_dwordx4 v{va}, {sr(R,4)}, s{so} offen offset:{off}{nt} lds")
            return f
        for j in range(2): ops.append(one(S_MX, L_X + 16384*s, S_SX, vXs+j, R_X, 1024*j, True))
        for j in range(NW): ops.append(one(S_MW, 16384*s, S_SW, vWs+j, R_WA, 1024*j, False))
        return ops
    return dma_ops, dma_t

def xread_setup():
    vXr = v.alloc(2); vG = v.alloc(1)
    e(f"""v_lshrrev_b32 v{vG}, 4, v{vL}
    v_and_b32 v{vT}, 15, v{vL}
    v_lshrrev_b32 v{vT+1}, 1, v{vT}
    v_xor_b32 v{vT+1}, v{vT+1}, v{vG}
    v_lshlrev_b32 v{vT+1}, 4, v{vT+1}
    v_lshl_add_u32 v{vT+1}, v{vT}, 7, v{vT+1}
    s_lshl_b32 s{S_T0}, s{S_TG}, 12
    v_add_u32 v{vXr}, s{S_T0}, v{vT+1}
    v_xor_b32 v{vXr+1}, 64, v{vXr}
    v_lshrrev_b32 v{vT+2}, 2, v{vL}
    v_and_b32 v{vT+3}, 3, v{vL}
    v_lshlrev_b32 v{vT+3}, 3, v{vT+3}
    s_lshl_b32 s{S_T0}, s{S_RB}, 12
    s_lshl_b32 s{S_T1}, s{S_CB}, 8
    s_add_u32 s{S_FO}, s{S_T0}, s{S_T1}
    s_add_u32 s{S_FO}, s{S_FO}, {WS_FLG}""")
    return vXr, vG

def kloop(reads, mfmas, dma_ops, dma_t, extras, head, tailx):
    tick = {}
    def block(ks, extra):
        R = reads(ks+1) if ks < 15 else []
        M = mfmas(ks)
        nx = len(extra); done = 0
        if ks > 0: e.wait(lg=e.lgq)
        for i, (deps, tx) in enumerate(M):
            e.wait(lg=max(tick[(ks, d)] for d in deps))
            e(tx)
            for _ in range(2 if i < 2 else 1):
                if R:
                    nm, rt = R.pop(0); tick[(ks+1, nm)] = e(rt)
            while done < nx and (2*done+1)*len(M) <= 2*(i+1)*nx:
                extra[done](); done += 1
        for nm, rt in R: tick[(ks+1, nm)] = e(rt)
        for x in extra[done:]: x()
    stamp("setup_done")
    t_c0 = dma_t[0]
    d1 = dma_ops(1)
    for f in d1[:OPT['npro']]: f()
    e.wait(vm=t_c0); e.wait_all(vm=False)
    e("s_barrier")
    stamp("c0_landed")
    for nm, tx in reads(0): tick[(0, nm)] = e(tx)
    for f in d1[OPT['npro']:]: f()
    pend = dma_ops(2); last = []
    for c in range(8):
        block(2*c, pend)
        ex = []
        if c < 7:
            tailx(c)
            e.wait(vm=dma_t[c+1]); e.wait_all(vm=False)
            e("s_barrier")
            if OPT['fine'] or c in (0, 6): stamp(f"b{c}b")
            head(c)
            if c + 3 < 8: ex = dma_ops(c+3)
            ex = ex + extras(c)
        if c == 6:
            h = (len(ex) + 2) // 3; last = ex[2*h:]; ex = ex[:2*h]
        if c == 7: ex = last + last
        h = (len(ex) + 1) // 2
        block(2*c+1, ex[:h]); pend = ex[h:]
    stamp("kloop_end")

MF16 = "v_mfma_f32_16x16x32_bf16"
MF32 = "v_mfma_f32_32x32x16_bf16"

def g_stream():
    NREG = OPT['nreg']
    g = {'w2': v.alloc(2), 'wo': v.alloc(2), 't': {}}
    vR = v.alloc(6)
    FR = v.alloc(72, 4)
    g_mark = v.mark()
    fX = [FR, FR + 36]; fW = [FR + 8, FR + 44]
    dma_ops, dma_t = dma_setup(0)
    for f in dma_ops(0): f()
    stamp("r0_issued")
    srd(R_WS, P_WS, WS_SIZE)
    L1 = e.newlabel()
    e(f"""s_or_b32 s{S_T0}, s2, s{S_W}
    s_cmp_lg_u32 s{S_T0}, 0
    s_cbranch_scc1 {L1}
    s_memrealtime s[{S_EX}:{S_EX+1}]
    s_waitcnt lgkmcnt(0)
    s_or_b32 s{S_T0}, s{S_EX}, 1
    v_mov_b32 v{vT}, s{S_T0}""")
    opt_vm(f"global_store_dword v{vZ}, v{vT}, {sr(P_DBG,2)} sc1")
    e(f"{L1}:")
    vXr, vG = xread_setup()
    vWh = v.alloc(7); vCs = v.alloc(7); vSt = v.alloc(1); vN = v.alloc(1); vB1 = v.alloc(14, 2)
    e(f"""v_mul_u32_u24 v{vT+4}, 224, v{vT+2}
    v_add_u32 v{vT+4}, v{vT+4}, v{vT+3}
    v_add_u32 v{vT+4}, {L_WH}, v{vT+4}
    v_lshlrev_b32 v{vT}, 3, v{vG}
    v_lshlrev_b32 v{vT+1}, 4, v{vG}
    v_add_u32 v{vT+1}, {L_CS}, v{vT+1}
    s_lshl_b32 s{S_T2}, s{S_RB}, 2
    s_add_u32 s{S_T2}, s{S_T2}, s{S_TG}
    s_mul_i32 s{S_T2}, s{S_T2}, 144
    s_mul_i32 s{S_T1}, s{S_CB}, 7
    s_add_u32 s{S_T2}, s{S_T2}, s{S_T1}
    s_mul_i32 s{S_T3}, s{S_CB}, 224""")
    for j, d in enumerate([0, 4, 1, 2, 3, 5, 6]):
        e(f"""s_add_u32 s{S_T4}, s{S_TG}, {d}
        s_cmp_ge_u32 s{S_T4}, 7
        s_cselect_b32 s{S_T0}, 7, 0
        s_sub_u32 s{S_T4}, s{S_T4}, s{S_T0}
        s_lshl_b32 s{S_T0}, s{S_T4}, 5
        v_add_u32 v{vWh+j}, s{S_T0}, v{vT+4}
        s_add_u32 s{S_T1}, s{S_T0}, s{S_T3}
        v_add_u32 v{vB1+2*j}, s{S_T1}, v{vT}
        s_lshl_b32 s{S_T0}, s{S_T0}, 1
        v_add_u32 v{vCs+j}, s{S_T0}, v{vT+1}
        s_add_u32 s{S_T4}, s{S_T4}, s{S_T2}
        s_lshl_b32 s{S_T4}, s{S_T4}, 10
        s_add_u32 s{S_SO+j}, s{S_T4}, {WS_ACT}""")
    e(f"""v_and_b32 v{vT}, 15, v{vL}
    s_lshl_b32 s{S_T0}, s{S_TG}, 9
    s_add_u32 s{S_T0}, s{S_T0}, {L_STATS}
    v_lshlrev_b32 v{vT}, 4, v{vT}
    v_add_u32 v{vSt}, s{S_T0}, v{vT}""")
    aH = v.alloc(56, 4); aCS = v.alloc(8, 4); vOnes = v.alloc(4, 4); cC = v.alloc(2, 2)
    for i in range(4): e(f"v_mov_b32 v{vOnes+i}, 0x3f803f80")
    e(f"v_mov_b32 v{cC}, {f2u(GC0)}\nv_mov_b32 v{cC+1}, {f2u(GC1)}")
    srd(R_W2, P_W2, 1792*512*2); srd(R_WO, P_WO, 512*512*2); srd(R_OUT, P_OUT, 2048*512*2)
    e(f"""s_lshr_b32 s{S_T1}, s2, 3
    s_and_b32 s{S_T0}, s2, 7
    s_lshl_b32 s{S_T0}, s{S_T0}, 2
    s_and_b32 s{S_T2}, s{S_T1}, 3
    s_add_u32 s{S_R4}, s{S_T0}, s{S_T2}
    s_lshr_b32 s{S_C4}, s{S_T1}, 2
    v_lshrrev_b32 v{vT}, 2, v{vL}
    v_and_b32 v{vT}, 4, v{vT}
    v_and_b32 v{vT+1}, 7, v{vL}
    v_xor_b32 v{vT}, v{vT}, v{vT+1}
    v_lshlrev_b32 v{vT}, 4, v{vT}
    s_lshl_b32 s{S_T0}, s{S_C4}, 7
    v_add_u32 v{vT}, s{S_T0}, v{vT}
    v_lshrrev_b32 v{vT+1}, 3, v{vL}
    s_mul_i32 s{S_T0}, s{S_W}, 448
    v_add_u32 v{vT+2}, s{S_T0}, v{vT+1}
    v_lshl_add_u32 v{g['w2']}, v{vT+2}, 10, v{vT}
    v_add_u32 v{g['w2']+1}, {8192-1024}, v{g['w2']}
    v_and_b32 v{vT+1}, 3, v{vT+1}
    v_lshrrev_b32 v{vT+2}, 5, v{vL}
    v_lshl_add_u32 v{vT+1}, v{vT+2}, 3, v{vT+1}
    s_lshl_b32 s{S_T0}, s{S_W}, 7
    v_add_u32 v{vT+1}, s{S_T0}, v{vT+1}
    v_lshl_add_u32 v{g['wo']}, v{vT+1}, 10, v{vT}
    v_add_u32 v{g['wo']+1}, {4096-1024}, v{g['wo']}
    s_lshl_b32 s{S_MG}, s{S_W}, 11""")
    ROT = {0: f"s_mov_b32 s{S_OFFO}, 0",
           1: f"s_and_b32 s{S_T0}, s{S_R4}, 3\ns_lshl_b32 s{S_T1}, s{S_T0}, 1\ns_add_u32 s{S_OFFO}, s{S_T1}, s{S_C4}\ns_and_b32 s{S_OFFO}, s{S_OFFO}, 7",
           2: f"s_and_b32 s{S_T0}, s{S_C4}, 1\ns_lshl_b32 s{S_T0}, s{S_T0}, 2\ns_add_u32 s{S_OFFO}, s{S_T0}, s2\ns_and_b32 s{S_OFFO}, s{S_OFFO}, 7",
           3: f"s_lshl_b32 s{S_T0}, s{S_C4}, 1\ns_add_u32 s{S_OFFO}, s{S_T0}, s2\ns_and_b32 s{S_OFFO}, s{S_OFFO}, 7",
           4: f"s_and_b32 s{S_OFFO}, s2, 7"}[OPT['rot']]
    e(ROT)
    e(f"""s_mul_i32 s{S_T1}, s{S_OFFO}, 7
    s_lshr_b32 s{S_T1}, s{S_T1}, 1
    s_lshl_b32 s{S_GW}, s{S_T1}, 14
    s_lshl_b32 s{S_GA}, s{S_T1}, 10""")
    e(f"""v_lshrrev_b32 v{vT}, 5, v{vL}
    v_lshlrev_b32 v{vT}, 10, v{vT}
    v_lshrrev_b32 v{vT+1}, 2, v{vL}
    v_and_b32 v{vT+1}, 3, v{vT+1}
    v_lshl_add_u32 v{vT}, v{vT+1}, 7, v{vT}
    v_and_b32 v{vT+1}, 2, v{vT+1}
    v_lshl_add_u32 v{vT}, v{vT+1}, 5, v{vT}
    v_and_b32 v{vT+1}, 16, v{vL}
    v_lshl_add_u32 v{vT}, v{vT+1}, 1, v{vT}
    v_and_b32 v{vT+1}, 3, v{vL}
    v_lshl_add_u32 v{vT}, v{vT+1}, 3, v{vT}
    s_and_b32 s{S_T0}, s{S_W}, 1
    s_lshl_b32 s{S_T0}, s{S_T0}, 6
    v_xor_b32 v{vT}, s{S_T0}, v{vT}
    v_add_u32 v{vR}, s{S_MG}, v{vT}
    v_xor_b32 v{vR+1}, 64, v{vR}
    v_add_u32 v{vR+2}, 49152, v{vR}
    v_add_u32 v{vR+3}, 49152, v{vR+1}
    v_add_u32 v{vR+4}, 98304, v{vR}
    v_add_u32 v{vR+5}, 98304, v{vR+1}""")
    def g_dma(s):
        gam = RING[s % NRING]
        e(f"s_add_u32 m0, s{S_MG}, {8192*gam}")
        if s < 28: vv, R, so = g['w2'], R_W2, S_GW
        else:
            vv, R, so = g['wo'], R_WO, S_T4
            e(f"s_add_u32 s{S_T4}, s{S_OFFO}, {s-28}\ns_and_b32 s{S_T4}, s{S_T4}, 7\ns_lshl_b32 s{S_T4}, s{S_T4}, 14")
        e(f"buffer_load_dwordx4 v{vv}, {sr(R,4)}, s{so} offen lds")
        g['t'][s] = e(f"buffer_load_dwordx4 v{vv+1}, {sr(R,4)}, s{so} offen offset:1024 lds")
        if s < 27:
            e(f"s_add_u32 s{S_GW}, s{S_GW}, 16384\ns_cmp_lt_u32 s{S_GW}, {28*16384}\ns_cselect_b32 s{S_GW}, s{S_GW}, 0")
    def reads(ks):
        c, kk = divmod(ks, 2); s = c % 3; b = ks % 2
        R = [("x0", f"ds_read_b128 {vr(fX[b],4)}, v{vXr+kk} offset:{L_X+16384*s}"),
             ("x1", f"ds_read_b128 {vr(fX[b]+4,4)}, v{vXr+kk} offset:{L_X+16384*s+2048}")]
        for j in range(7):
            for h2 in range(2):
                R.append((f"w{j}", f"ds_read_b64_tr_b16 {vr(fW[b]+4*j+2*h2,2)}, v{vWh+j} offset:{16384*s+7168*kk+3584*h2}"))
        return R
    def mfmas(ks):
        b = ks % 2; c0 = (lambda r: "0") if ks == 0 else (lambda r: vr(r, 4))
        M = []
        for j in range(7):
            if j < 2: M.append(((f"w{j}",), f"{MF16} {vr(aCS+4*j,4)}, {vr(fW[b]+4*j,4)}, {vr(vOnes,4)}, {c0(aCS+4*j)}"))
            for f in range(2):
                acc = aH + 8*j + 4*f
                M.append(((f"w{j}", "x0", "x1"), f"{MF16} {vr(acc,4)}, {vr(fW[b]+4*j,4)}, {vr(fX[b]+4*f,4)}, {c0(acc)}"))
        return M
    b1t = []; tN = []
    def b1_load(j): b1t.append(e(f"global_load_dwordx2 {vr(vB1+2*j,2)}, v{vB1+2*j}, {sr(P_B1,2)}"))
    vP2 = v.alloc(2)
    e(f"""s_lshr_b32 s{S_T0}, s2, 3
    s_and_b32 s{S_PG}, s{S_T0}, 3
    s_lshr_b32 s{S_T0}, s{S_GA}, 10
    s_lshl_b32 s{S_T1}, s{S_PG}, 2
    s_add_u32 s{S_T0}, s{S_T0}, s{S_T1}
    s_add_u32 s{S_T0}, s{S_T0}, 12
    v_add_u32 v{vT}, s{S_T0}, v{vG}
    v_subrev_u32 v{vT+1}, 28, v{vT}
    v_min_u32 v{vT}, v{vT}, v{vT+1}
    v_and_b32 v{vT+1}, 15, v{vL}
    v_lshl_add_u32 v{vT}, v{vT}, 4, v{vT+1}
    s_mul_i32 s{S_T0}, s{S_W}, 448
    v_add_u32 v{vT}, s{S_T0}, v{vT}
    s_lshl_b32 s{S_T1}, s{S_C4}, 7
    v_lshlrev_b32 v{vT}, 10, v{vT}
    v_add_u32 v{vP2}, s{S_T1}, v{vT}
    s_lshl_b32 s{S_T0}, s{S_W}, 2
    s_add_u32 s{S_T0}, s{S_T0}, s{S_PG}
    s_lshl_b32 s{S_T0}, s{S_T0}, 15
    s_add_u32 s{S_T0}, s{S_T0}, s{S_T1}
    v_lshlrev_b32 v{vT}, 10, v{vL}
    v_add_u32 v{vP2+1}, s{S_T0}, v{vT}
    s_add_u32 s{S_PG}, s{S_PG}, s{S_C4}
    s_and_b32 s{S_PG}, s{S_PG}, 3""")
    def pf2(t):
        t -= OPT['pf0']
        if not OPT['pf2'] or not 0 <= t < 4*OPT['pf2']: return
        bu, gam = divmod(t, 4)
        e(f"s_cmp_eq_u32 s{S_PG}, {gam}")
        if bu == 0:   e(f"s_cselect_b32 exec_lo, -1, 0\ns_mov_b32 exec_hi, 0\nbuffer_load_dword v{vPF}, v{vP2}, {sr(R_W2,4)}, 0 offen")
        elif bu == 1: e(f"s_cselect_b32 exec_hi, -1, 0\ns_mov_b32 exec_lo, 0\nbuffer_load_dword v{vPF}, v{vP2}, {sr(R_W2,4)}, 0 offen")
        else:         e(f"s_cselect_b32 exec_lo, -1, 0\ns_mov_b32 exec_hi, 0\nbuffer_load_dword v{vPF}, v{vP2+1}, {sr(R_WO,4)}, 0 offen")
        e("s_mov_b64 exec, -1")
    def extras(c):
        if c == 5: return [(lambda s=s: g_dma(s)) for s in range(OPT['n5'])]
        if c == 6: return [(lambda s=s: g_dma(s)) for s in range(OPT['n5'], OPT['n5'] + OPT['n6'])]
        return []
    def tailx(c):
        pf2(2*c - 1)
        if c == 2:
            for j in range(7): b1_load(j)
        if c == 4: tN.append(e(f"global_load_dword v{vN}, v{vZ}, {sr(P_DBG,2)} sc1"))
    kloop(reads, mfmas, dma_ops, dma_t, extras, lambda c: pf2(2*c), tailx)
    e(f"""s_mov_b32 exec_lo, 0x00010001
    s_mov_b32 exec_hi, 0x00010001
    ds_write_b128 v{vCs}, {vr(aCS,4)}
    ds_write_b128 v{vCs+1}, {vr(aCS+4,4)}
    s_mov_b64 exec, -1""")
    e.wait(vm=tN[0])
    get_nonce(vN)
    e.wait_all(vm=False)
    e("s_barrier")
    stamp("xchg_bar")
    stt = v.alloc(8, 4); cs = v.alloc(28, 4); bb = vOnes; tm = v.alloc(8, 2); hp = aCS
    e(f"ds_read_b128 {vr(stt,4)}, v{vSt}")
    tst = e(f"ds_read_b128 {vr(stt+4,4)}, v{vSt} offset:256")
    tcs = [e(f"ds_read_b128 {vr(cs+4*j,4)}, v{vCs+j}") for j in range(7)]
    rt = {}
    fa = [0, 0]
    def wreg(s): return FR + 8*s if s < NREG else fa[s % 2]
    def tr_reads(s):
        gam = RING[s % NRING]; win = gam // 6; off = 8192*gam - 49152*win
        e.wait(vm=g['t'][s])
        for ch in range(2):
            for h2 in range(2):
                rt[s] = e(f"ds_read_b64_tr_b16 {vr(wreg(s)+4*ch+2*h2,2)}, v{vR+2*win+ch} offset:{off+512*h2}")
    gq = list(range(OPT['n5'] + OPT['n6'], NRING + NREG)); rq = list(range(NREG))
    def gpace():
        if gq:
            s = gq.pop(0)
            if s >= NRING:
                while s - NRING not in rt: tr_reads(rq.pop(0))
                e.wait(lg=rt[s - NRING])
            g_dma(s)
    th = None
    for j in range(7):
        A = aH + 8*j
        e(f"""v_lshlrev_b32 v{bb}, 16, v{vB1+2*j}
        v_and_b32 v{bb+1}, 0xffff0000, v{vB1+2*j}
        v_lshlrev_b32 v{bb+2}, 16, v{vB1+2*j+1}
        v_and_b32 v{bb+3}, 0xffff0000, v{vB1+2*j+1}""")
        e.wait(lg=tcs[j])
        P4 = range(4)
        S4 = lambda p: stt + 4*(p//2)
        for p in P4: e(f"v_pk_fma_f32 {vr(tm+2*p,2)}, {vr(cs+4*j+2*(p%2),2)}, {vr(S4(p),2)}, {vr(bb+2*(p%2),2)} op_sel:[0,1,0] op_sel_hi:[1,1,1]")
        for p in P4: e(f"v_pk_fma_f32 {vr(A+2*p,2)}, {vr(A+2*p,2)}, {vr(S4(p),2)}, {vr(tm+2*p,2)} op_sel_hi:[1,0,1]")
        for p in P4: e(f"v_pk_mul_f32 {vr(tm+2*p,2)}, {vr(A+2*p,2)}, {vr(A+2*p,2)}")
        for p in P4: e(f"v_pk_fma_f32 {vr(tm+2*p,2)}, {vr(tm+2*p,2)}, {vr(cC,2)}, {vr(cC,2)} op_sel:[0,1,0] op_sel_hi:[1,1,0]")
        for p in P4: e(f"v_pk_mul_f32 {vr(tm+2*p,2)}, {vr(tm+2*p,2)}, {vr(A+2*p,2)}")
        if j < 6 and OPT['gp'] >= 2: gpace()
        for i in range(8): e(f"v_exp_f32 v{tm+i}, v{tm+i}")
        for p in P4: e(f"v_pk_fma_f32 {vr(tm+2*p,2)}, {vr(tm+2*p,2)}, {vr(S4(p)+2,2)}, {vr(S4(p)+2,2)} op_sel_hi:[1,0,0]")
        if j < 6 and OPT['gp'] >= 3: gpace()
        if 1 <= j <= 3:
            for _ in range(3):
                if rq: tr_reads(rq.pop(0))
        for i in range(8): e(f"v_rcp_f32 v{tm+i}, v{tm+i}")
        for p in P4: e(f"v_pk_mul_f32 {vr(A+2*p,2)}, {vr(A+2*p,2)}, {vr(tm+2*p,2)}")
        P = hp + 4*(j % 2)
        for i in range(4): e(f"v_cvt_pk_bf16_f32 v{P+i}, v{A+2*i}, v{A+2*i+1}")
        e(f"v_permlane16_swap_b32 v{P}, v{P+2}\nv_permlane16_swap_b32 v{P+1}, v{P+3}")
        th = e(f"buffer_store_dwordx4 {vr(P,4)}, v{vL16}, {sr(R_WS,4)}, s{S_SO+j} offen sc1")
        if j < 5 and OPT['gp'] >= 1: gpace()
        if j in (1, 3): fstamp(f"gelu{j}")
    stamp("gelu_end")
    v.release(g_mark)
    vF = v.alloc(1); vFt = v.alloc(1); vA = v.alloc(2); vOm = v.alloc(1); vB2 = v.alloc(8, 2)
    acc = v.alloc(64, 4); fa[0] = v.alloc(8, 4); fa[1] = v.alloc(8, 4); ab = v.alloc(8*DACT, 4)
    assert hp >= vB2 + 8
    while rq: tr_reads(rq.pop(0))
    e(f"""v_and_b32 v{vF}, 15, v{vL}
    v_lshlrev_b32 v{vF}, 8, v{vF}
    s_lshr_b32 s{S_T0}, s{S_R4}, 1
    s_lshl_b32 s{S_T0}, s{S_T0}, 12
    s_add_u32 s{S_T0}, s{S_T0}, {WS_FLG + 65536}
    v_add_u32 v{vF}, s{S_T0}, v{vF}
    s_mul_i32 s{S_T0}, s{S_R4}, 288
    s_mul_i32 s{S_T1}, s{S_W}, 28
    s_add_u32 s{S_T0}, s{S_T0}, s{S_T1}
    s_lshl_b32 s{S_T0}, s{S_T0}, 10
    s_add_u32 s{S_T0}, s{S_T0}, {WS_ACT}
    s_add_u32 s{S_T1}, s{S_T0}, {144*1024}
    s_cmp_ge_u32 s{S_W}, 2
    s_cselect_b32 s{S_T2}, s{S_T1}, s{S_T0}
    s_cselect_b32 s{S_T3}, s{S_T0}, s{S_T1}
    v_add_u32 v{vA}, s{S_T2}, v{vL16}
    v_add_u32 v{vA+1}, s{S_T3}, v{vL16}
    s_and_b32 s{S_T0}, s{S_W}, 1
    s_lshl_b32 s{S_T0}, s{S_T0}, 6
    s_lshl_b32 s{S_T1}, s{S_C4}, 7
    s_add_u32 s{S_T0}, s{S_T0}, s{S_T1}
    v_lshrrev_b32 v{vT+2}, 5, v{vL}
    v_lshlrev_b32 v{vT+2}, 3, v{vT+2}
    v_add_u32 v{vT+2}, s{S_T0}, v{vT+2}""")
    e.wait(vm=th)
    publish(1, 4, 1, vT, vT+1)
    stamp("pub_h")
    while gq: gpace()
    for gi in range(4): e(f"global_load_dwordx2 {vr(vB2+2*gi,2)}, v{vT+2}, {sr(P_B2,2)} offset:{16*gi}")
    stamp("wpre")
    poll(vF, vFt)
    stamp("h_seen")
    at = {}
    def act_load(s):
        sl = ab + 8*(s % DACT)
        if s == 28:
            e(f"""s_mul_i32 s{S_T0}, s{S_W}, {-20*1024}
            s_add_u32 s{S_T0}, s{S_T0}, {112*1024}
            v_add_u32 v{vA}, s{S_T0}, v{vA}
            v_add_u32 v{vA+1}, s{S_T0}, v{vA+1}""")
        if s >= 28:
            e(f"s_add_u32 s{S_GA}, s{S_OFFO}, {s-28}\ns_and_b32 s{S_GA}, s{S_GA}, 7\ns_lshl_b32 s{S_GA}, s{S_GA}, 10")
        e(f"buffer_load_dwordx4 {vr(sl,4)}, v{vA}, {sr(R_WS,4)}, s{S_GA} offen sc1")
        at[s] = e(f"buffer_load_dwordx4 {vr(sl+4,4)}, v{vA+1}, {sr(R_WS,4)}, s{S_GA} offen sc1")
        if s < 27:
            e(f"s_add_u32 s{S_GA}, s{S_GA}, 1024\ns_cmp_lt_u32 s{S_GA}, {28*1024}\ns_cselect_b32 s{S_GA}, s{S_GA}, 0")
    for s in range(DACT): act_load(s)
    e(f"v_add_u32 v{vF}, 65536, v{vF}")
    if NREG == 0: tr_reads(0)
    tf = None
    for s in range(36):
        if NREG <= s + 1 < 36: tr_reads(s+1)
        e.wait(vm=at[s], lg=rt[s])
        sl = ab + 8*(s % DACT)
        for ch in range(2):
            for tk in range(2):
                a = acc + 16*(2*tk + ch)
                e(f"{MF32} {vr(a,16)}, {vr(wreg(s)+4*ch,4)}, {vr(sl+4*tk,4)}, {'0' if s == 0 else vr(a,16)}")
        if s in (0, 4, 8, 12, 16, 24, 28, 32): stamp(f"g{s}")
        if s == 28 - DACT - 4:
            tf = e(f"buffer_load_dword v{vFt}, v{vF}, {sr(R_WS,4)}, 0 offen sc1")
        if s + DACT == 28:
            stamp("pre_opoll")
            poll(vF, vFt, tf)
            stamp("o_seen")
            e(f"""s_lshr_b32 s{S_T0}, s{S_W}, 1
            s_lshl_b32 s{S_T0}, s{S_T0}, 7
            s_lshl_b32 s{S_T1}, s{S_R4}, 8
            s_add_u32 s{S_T0}, s{S_T0}, s{S_T1}
            s_add_u32 s{S_T0}, s{S_T0}, {WS_OMG}
            v_and_b32 v{vT}, 31, v{vL}
            v_lshlrev_b32 v{vT}, 2, v{vT}""")
            e(f"buffer_load_dword v{vOm}, v{vT}, {sr(R_WS,4)}, s{S_T0} offen sc1")
        if s + DACT < 36: act_load(s + DACT)
        if s >= NREG and s + NRING < 36: g_dma(s + NRING)
    stamp("g_loop_end")
    vW = vR; red = ab; bb = FR
    e(f"v_add_u32 v{vW}, s{S_MG}, v{vL16}")
    for j in range(1, 4): e(f"v_xor_b32 v{vW+j}, {2048*j}, v{vW}")
    for gi in range(4):
        e(f"""v_lshlrev_b32 v{bb+4*gi}, 16, v{vB2+2*gi}
        v_and_b32 v{bb+4*gi+1}, 0xffff0000, v{vB2+2*gi}
        v_lshlrev_b32 v{bb+4*gi+2}, 16, v{vB2+2*gi+1}
        v_and_b32 v{bb+4*gi+3}, 0xffff0000, v{vB2+2*gi+1}""")
    for j in (2, 1, 3):
        for gi in range(4):
            e(f"ds_write_b128 v{vW}, {vr(acc+16*j+4*gi,4)} offset:{8192*(2*j+gi//2)+1024*(gi%2)}")
    fin = acc
    for i in range(16): e(f"v_fma_f32 v{fin+i}, v{vOm}, v{bb+i}, v{fin+i}")
    e(f"""s_lshr_b32 s{S_T0}, s{S_W}, 1
    s_lshl_b32 s{S_T0}, s{S_T0}, 5
    s_lshl_b32 s{S_T1}, s{S_R4}, 6
    s_add_u32 s{S_T0}, s{S_T0}, s{S_T1}
    s_lshl_b32 s{S_T0}, s{S_T0}, 10
    s_lshl_b32 s{S_T1}, s{S_C4}, 7
    s_add_u32 s{S_T0}, s{S_T0}, s{S_T1}
    s_and_b32 s{S_T1}, s{S_W}, 1
    s_lshl_b32 s{S_T1}, s{S_T1}, 6
    s_add_u32 s{S_T0}, s{S_T0}, s{S_T1}
    v_and_b32 v{vT}, 31, v{vL}
    v_lshlrev_b32 v{vT}, 10, v{vT}
    v_lshrrev_b32 v{vT+1}, 5, v{vL}
    v_lshl_add_u32 v{vT}, v{vT+1}, 4, v{vT}""")
    e.wait_all(vm=False)
    e("s_barrier")
    stamp("red_bar")
    tks = []
    for j in range(1, 4):
        for gi in range(4):
            tks.append(e(f"ds_read_b128 {vr(red+16*(j-1)+4*gi,4)}, v{vW+j} offset:{8192*(2*j+gi//2)+1024*(gi%2)}"))
    for j in range(3):
        for gi in range(4):
            e.wait(lg=tks[4*j+gi])
            for i in (4*gi, 4*gi+2): e(f"v_pk_add_f32 {vr(fin+i,2)}, {vr(fin+i,2)}, {vr(red+16*j+i,2)}")
    P = FR + 16
    for i in range(8): e(f"v_cvt_pk_bf16_f32 v{P+i}, v{fin+2*i}, v{fin+2*i+1}")
    e(f"""v_permlane32_swap_b32 v{P}, v{P+2}
    v_permlane32_swap_b32 v{P+1}, v{P+3}
    v_permlane32_swap_b32 v{P+4}, v{P+6}
    v_permlane32_swap_b32 v{P+5}, v{P+7}
    buffer_store_dwordx4 {vr(P,4)}, v{vT}, {sr(R_OUT,4)}, s{S_T0} offen
    buffer_store_dwordx4 {vr(P+4,4)}, v{vT}, {sr(R_OUT,4)}, s{S_T0} offen offset:32""")
    stamp_flush()
    e("s_endpgm")

def a_stream():
    dma_ops, dma_t = dma_setup(1)
    L1 = e.newlabel()
    e(f"s_cmp_lg_u32 s{S_W}, 4\ns_cbranch_scc1 {L1}\ns_mov_b32 m0, {L_GW}")
    opt_vm(f"global_load_lds_dwordx4 v{vL16}, {sr(P_GW,2)}")
    e(f"{L1}:")
    for f in dma_ops(0): f()
    stamp("r0_issued")
    srd(R_WS, P_WS, WS_SIZE); srd(R_WO, P_WO, 512*512*2)
    L1 = e.newlabel()
    q = e.lgq
    e(f"""s_cmp_lg_u32 s{S_W}, 5
    s_cbranch_scc1 {L1}
    v_mov_b32 v{vT}, 0x3f803f80
    v_mov_b32 v{vT+1}, 0x3f803f80
    v_lshlrev_b32 v{vT+2}, 3, v{vL}
    v_add_u32 v{vT+2}, {L_ONES}, v{vT+2}
    ds_write_b64 v{vT+2}, v[{vT}:{vT+1}]
    ds_write_b64 v{vT+2}, v[{vT}:{vT+1}] offset:512
    v_lshlrev_b32 v{vT+4}, 2, v{vL}
    v_add_u32 v{vT+4}, {L_CNT}, v{vT+4}
    ds_write_b32 v{vT+4}, v{vZ}
    s_waitcnt lgkmcnt(0)
    {L1}:""")
    e.lgq = q
    vXr, vG = xread_setup()
    vWq = v.alloc(2); vGw = v.alloc(2); vSw = v.alloc(1); vOw = v.alloc(1); vN = v.alloc(1)
    e(f"""v_mul_u32_u24 v{vT+4}, 192, v{vT+2}
    v_add_u32 v{vT+4}, v{vT+4}, v{vT+3}
    v_add_u32 v{vT+4}, {L_WQ}, v{vT+4}
    v_and_b32 v{vT+5}, 1, v{vG}
    v_lshlrev_b32 v{vT+5}, 5, v{vT+5}
    v_add_u32 v{vWq}, v{vT+4}, v{vT+5}
    v_sub_u32 v{vWq+1}, v{vT+4}, v{vT+5}
    v_and_b32 v{vT}, 1, v{vL}
    v_mul_u32_u24 v{vT}, {L_ONES-L_GW}, v{vT}
    v_lshlrev_b32 v{vT+1}, 4, v{vG}
    v_sub_u32 v{vT+1}, v{vT+1}, v{vT}
    v_add_u32 v{vGw}, {L_ONES}, v{vT+1}
    v_and_b32 v{vT}, 15, v{vL}
    s_lshl_b32 s{S_T0}, s{S_TG}, 5
    v_add_u32 v{vT+1}, s{S_T0}, v{vT}
    v_lshlrev_b32 v{vSw}, 4, v{vT+1}
    v_add_u32 v{vSw}, {L_STATS}, v{vSw}
    s_lshl_b32 s{S_T0}, s{S_RB}, 9
    s_add_u32 s{S_T0}, s{S_T0}, {WS_OMG}
    s_cmp_eq_u32 s{S_CB}, 0
    s_cselect_b32 s{S_T0}, s{S_T0}, {WS_SIZE}
    v_lshlrev_b32 v{vOw}, 2, v{vT+1}
    v_add_u32 v{vOw}, s{S_T0}, v{vOw}
    s_lshl_b32 s{S_T1}, s{S_RB}, 2
    s_add_u32 s{S_T1}, s{S_T1}, s{S_TG}
    s_lshl_b32 s{S_T0}, s{S_CB}, 8
    s_add_u32 s{S_T0}, s{S_T0}, s{S_T1}
    s_lshl_b32 s{S_SO}, s{S_T0}, 10
    s_lshl_b32 s{S_T0}, s{S_CB}, 7
    s_add_u32 s{S_T0}, s{S_T0}, s{S_T1}
    s_add_u32 s{S_T0}, s{S_T0}, 4096
    s_lshl_b32 s{S_SO+4}, s{S_T0}, 10
    s_add_u32 s{S_SO+5}, s{S_SO+4}, 65536
    s_cmp_lt_u32 s{S_CB}, 8
    s_cselect_b32 s{S_SC}, {QSCALE}, 1.0
    s_mov_b32 s{S_SC+1}, 0""")
    for j in range(1, 4): e(f"s_add_u32 s{S_SO+j}, s{S_SO}, {65536*j}")
    for r, m in ((S_C1, 0x22222222), (S_C2, 0x44444444), (S_C3, 0x88888888)):
        e(f"s_mov_b32 s{r}, {hex(m)}\ns_mov_b32 s{r+1}, {hex(m)}")
    aQ = v.alloc(48, 4); aGR = v.alloc(8, 4); aSM = v.alloc(8, 4)
    fm = v.mark()
    fX = [v.alloc(8, 4) for _ in range(2)]; fW = [v.alloc(24, 4) for _ in range(2)]; fG = [v.alloc(4, 4) for _ in range(2)]
    def reads(ks):
        c, kk = divmod(ks, 2); s = c % 3; b = ks % 2
        R = [("x0", f"ds_read_b128 {vr(fX[b],4)}, v{vXr+kk} offset:{L_X+16384*s}"),
             ("x1", f"ds_read_b128 {vr(fX[b]+4,4)}, v{vXr+kk} offset:{L_X+16384*s+2048}")]
        pre = f"s_add_u32 s{S_KG}, s{S_KO}, {128*c}\ns_and_b32 s{S_KG}, s{S_KG}, 1023\nv_add_u32 v{vGw+1}, s{S_KG}, v{vGw}\n" if kk == 0 else ""
        R.append(("g", pre + f"ds_read_b128 {vr(fG[b],4)}, v{vGw+1} offset:{64*kk}"))
        for t in range(6):
            for h2 in range(2):
                R.append((f"w{t}", f"ds_read_b64_tr_b16 {vr(fW[b]+4*t+2*h2,2)}, v{vWq+(t&1)} offset:{16384*s+6144*kk+3072*h2+32*t}"))
        return R
    def mfmas(ks):
        b = ks % 2; c0 = (lambda r: "0") if ks == 0 else (lambda r: vr(r, 4))
        M = []
        for f in range(2): M.append(((f"x{f}",), f"{MF16} {vr(aGR+4*f,4)}, {vr(fX[b]+4*f,4)}, {vr(fX[b]+4*f,4)}, {c0(aGR+4*f)}"))
        for f in range(2): M.append((("g",), f"{MF16} {vr(aSM+4*f,4)}, {vr(fG[b],4)}, {vr(fX[b]+4*f,4)}, {c0(aSM+4*f)}"))
        for t in range(6):
            for f in range(2):
                acc = aQ + 8*t + 4*f
                opA, opB = vr(fW[b]+4*t,4), vr(fX[b]+4*f,4)
                if t >= 4: opA, opB = opB, opA
                M.append(((f"w{t}",), f"{MF16} {vr(acc,4)}, {opA}, {opB}, {c0(acc)}"))
        return M
    if OPT['kprio']: e("s_setprio 1")
    tN = []
    def head(c):
        if c == 6: tN.append(e(f"global_load_dword v{vN}, v{vZ}, {sr(P_DBG,2)} sc1"))
    kloop(reads, mfmas, dma_ops, dma_t, lambda c: [], head, lambda c: None)
    v.release(fm)
    w = [v.alloc(8, 4) for _ in range(2)]
    seq = [
     "v_cndmask_b32 v{w4}, v{G0}, v{G1}, s[%d:%d]" % (S_C1, S_C1+1),
     "v_mul_f32 v{w6}, %d, v{S1}" % f2u(LOG2E),
     "v_cndmask_b32 v{w4}, v{w4}, v{G2}, s[%d:%d]" % (S_C2, S_C2+1),
     "v_mul_f32 v{w5}, %d, v{S0}" % f2u(1.0/512),
     "v_cndmask_b32 v{w4}, v{w4}, v{G3}, s[%d:%d]" % (S_C3, S_C3+1),
     "v_exp_f32 v{w2}, v{w6}",
     "v_mul_f32 v{w4}, %d, v{w4}" % f2u(1.0/512),
     "v_exp_f32 v{w3}, -v{w6}",
     "v_fma_f32 v{w4}, -v{w5}, v{w5}, v{w4}",
     "v_add_f32 v{w2}, 1.0, v{w2}",
     "v_max_f32 v{w4}, 0, v{w4}",
     "v_add_f32 v{w3}, 1.0, v{w3}",
     "v_add_f32 v{w4}, %d, v{w4}" % f2u(1e-5),
     "v_min_f32 v{w2}, %d, v{w2}" % f2u(1e30),
     "v_rsq_f32 v{w0}, v{w4}",
     "v_rcp_f32 v{w3}, v{w3}",
     "v_mul_f32 v{w1}, -v{w5}, v{w0}",
    ]
    for ln in seq:
        for f in range(2):
            d = {f"w{i}": w[f]+i for i in range(8)}
            d.update({f"G{i}": aGR+4*f+i for i in range(4)}); d.update(S0=aSM+4*f, S1=aSM+4*f+1)
            e(ln.format(**d))
    e(f"""s_mov_b32 exec_lo, 0x00f0000f
    s_mov_b32 exec_hi, 0xf0000f00
    ds_write_b128 v{vSw}, {vr(w[0],4)}
    ds_write_b128 v{vSw}, {vr(w[1],4)} offset:256
    v_rcp_f32 v{w[0]+7}, v{w[0]+2}
    v_rcp_f32 v{w[1]+7}, v{w[1]+2}""")
    if not OPT['qfirst']:
        e.wait_all(vm=False)
        e("s_barrier")
    e(f"buffer_store_dword v{w[0]+7}, v{vOw}, {sr(R_WS,4)}, 0 offen sc1")
    e(f"buffer_store_dword v{w[1]+7}, v{vOw}, {sr(R_WS,4)}, 0 offen offset:64 sc1")
    e("s_mov_b64 exec, -1")
    if not OPT['qfirst']: stamp("xchg_bar")
    if OPT['aprio']: e("s_setprio 2")
    pk = v.alloc(24, 4)
    def pack(j):
        A = aQ + 8*j; P = pk + 4*j
        if j < 4:
            if OPT['qfirst']:
                for i in range(8): e(f"v_mul_f32 v{A+i}, s{S_SC}, v{A+i}")
            else:
                for p in range(4): e(f"v_pk_mul_f32 {vr(A+2*p,2)}, {vr(A+2*p,2)}, s[{S_SC}:{S_SC+1}] op_sel_hi:[1,0]")
        for i in range(4): e(f"v_cvt_pk_bf16_f32 v{P+i}, v{A+2*i}, v{A+2*i+1}")
    def swap(j):
        P = pk + 4*j; n = 16 if j < 4 else 32
        e(f"v_permlane{n}_swap_b32 v{P}, v{P+2}\nv_permlane{n}_swap_b32 v{P+1}, v{P+3}")
    def store(j): return e(f"buffer_store_dwordx4 {vr(pk+4*j,4)}, v{vL16}, {sr(R_WS,4)}, s{S_SO+j} offen sc1")
    for j in range(6):
        pack(j)
        if j > 0: swap(j-1); store(j-1)
    swap(5); tq = store(5)
    stamp("qkv_issued")
    if OPT['qfirst']:
        e.wait_all(vm=False)
        e("s_barrier")
        stamp("xchg_bar")
    keep = pk + 24
    v.release(common_mark)
    S_HEAD, S_TQ, S_KB, S_NV = S_R4, S_C4, S_MX, S_MW
    vF = v.alloc(1); vFt = v.alloc(1); vVo = v.alloc(1); vGt = v.alloc(2); vM = v.alloc(2); vPM = v.alloc(8)
    e.wait(vm=tN[0])
    get_nonce(vN)
    K = v.alloc(40, 4); Q = v.alloc(8, 4)
    D = [v.alloc(16, 4) for _ in range(2)]; Mg = v.alloc(16, 4); C = v.alloc(16, 4); O = v.alloc(16, 4)
    Pb = [v.alloc(8, 4) for _ in range(2)]
    Vv = v.alloc(80, 4)
    e(f"""s_and_b32 s{S_T0}, s{S_TG}, 1
    s_lshl_b32 s{S_HEAD}, s{S_CB}, 1
    s_add_u32 s{S_HEAD}, s{S_HEAD}, s{S_T0}
    s_and_b32 s{S_T0}, s{S_TG}, 2
    s_lshl_b32 s{S_TQ}, s{S_RB}, 2
    s_add_u32 s{S_TQ}, s{S_TQ}, s{S_T0}""")
    for kind in range(3):
        if kind < 2: e(f"s_lshr_b32 s{S_T0}, s{S_CB}, 1\ns_lshl_b32 s{S_T0}, s{S_T0}, 8\ns_add_u32 s{S_T0}, s{S_T0}, {WS_FLG + 2048*kind}")
        else: e(f"s_lshl_b32 s{S_T0}, s{S_CB}, 8\ns_add_u32 s{S_T0}, s{S_T0}, {WS_FLG}")
        for d in range(1 if kind == 0 else 3):
            e(f"""s_sub_i32 s{S_T1}, s{S_RB}, {d}
            s_max_i32 s{S_T1}, s{S_T1}, 0
            s_lshl_b32 s{S_T1}, s{S_T1}, 12
            s_add_u32 s{S_T1}, s{S_T1}, s{S_T0}""")
            if kind == 0: e(f"v_mov_b32 v{vF}, s{S_T1}")
            else: e(f"v_writelane_b32 v{vF}, s{S_T1}, {1 + 3*(kind-1) + d}")
    e(f"""v_and_b32 v{vT}, 31, v{vL}
    s_and_b32 s{S_T0}, s{S_TG}, 2
    s_lshl_b32 s{S_T0}, s{S_T0}, 9
    s_add_u32 s{S_T0}, s{S_T0}, {L_STATS + 12}
    v_lshlrev_b32 v{vT+1}, 4, v{vT}
    v_add_u32 v{vT+1}, s{S_T0}, v{vT+1}
    ds_read_b32 v{vGt}, v{vT+1}
    ds_read_b32 v{vGt+1}, v{vT+1} offset:512""")
    if OPT['aprio']: e("s_setprio 0")
    e.wait(vm=tq)
    publish(0, 4, 0, vT+2, vT+3)
    stamp("pub_qkv")
    if OPT['wopf']:
        e(f"""s_lshr_b32 s{S_T0}, s2, 3
        s_lshl_b32 s{S_T0}, s{S_T0}, 2
        s_add_u32 s{S_T0}, s{S_T0}, s{S_TG}
        s_lshl_b32 s{S_T0}, s{S_T0}, 12
        v_lshlrev_b32 v{vT+2}, 7, v{vT}
        buffer_load_dword v{vFt}, v{vT+2}, {sr(R_WO,4)}, s{S_T0} offen""")
    e(f"""v_lshrrev_b32 v{vT+2}, 5, v{vL}
    v_lshlrev_b32 v{vT+3}, 2, v{vT+2}
    v_sub_u32 v{vT+3}, v{vT}, v{vT+3}""")
    for r in range(16):
        e(f"v_cmp_le_i32 s[{S_MASK+2*r}:{S_MASK+2*r+1}], {8*(r//4) + r%4}, v{vT+3}")
    e(f"v_mov_b32 v{vT+4}, 0xffff\nv_mov_b32 v{vT+5}, 0xffff0000")
    for i in range(8):
        e(f"""v_cndmask_b32 v{vPM+i}, 0, v{vT+4}, s[{S_MASK+4*i}:{S_MASK+4*i+1}]
        v_cndmask_b32 v{vVo}, 0, v{vT+5}, s[{S_MASK+4*i+2}:{S_MASK+4*i+3}]
        v_or_b32 v{vPM+i}, v{vPM+i}, v{vVo}""")
    e(f"""v_and_b32 v{vVo}, 15, v{vL}
    v_lshl_add_u32 v{vVo}, v{vT+2}, 4, v{vVo}
    v_lshlrev_b32 v{vVo}, 4, v{vVo}
    s_lshl_b32 s{S_KB}, s{S_HEAD}, 6
    s_add_u32 s{S_KB}, s{S_KB}, s{S_TQ}
    s_lshl_b32 s{S_KB}, s{S_KB}, 10
    s_sub_i32 s{S_NV}, 8, s{S_TQ}
    s_max_i32 s{S_NV}, s{S_NV}, 0""")
    for i in range(10):
        e(f"s_cmp_gt_u32 s{S_NV}, {i}\ns_cselect_b32 s{S_T0}, 0, 0x3f803f80\nv_mov_b32 v{Vv+8*i}, s{S_T0}")
        for k in range(1, 8): e(f"v_mov_b32 v{Vv+8*i+k}, v{Vv+8*i}")
    poll(vF, vFt)
    stamp("qkv_seen")
    if OPT['aprio']: e("s_setprio 2")
    def guard(i):
        if i >= 8: return lambda: None
        L = e.newlabel("L_sk")
        e.flush_haz()
        e(f"s_cmp_gt_u32 s{S_NV}, {i}\ns_cbranch_scc1 {L}")
        def close():
            e.flush_haz(); e(f"{L}:")
        return close
    kt = {}; vt = {}; qt = {}
    def off(base, i):
        e(f"s_add_u32 s{S_T0}, s{S_KB}, {(base*64 - 8 + i)*1024}")
        if i < 8: e(f"s_cmp_gt_u32 s{S_NV}, {i}\ns_cselect_b32 s{S_T0}, {WS_SIZE}, s{S_T0}")
    def ldq(u): qt[u] = e(f"buffer_load_dwordx4 {vr(Q+4*u,4)}, v{vL16}, {sr(R_WS,4)}, s{S_KB} offen offset:{1024*u} sc1")
    def ldk(i):
        off(32, i)
        kt[i] = e(f"buffer_load_dwordx4 {vr(K+4*i,4)}, v{vL16}, {sr(R_WS,4)}, s{S_T0} offen sc1")
    def ldv(i):
        off(64, i)
        e(f"s_mov_b32 exec_lo, 0xffff\ns_mov_b32 exec_hi, 0xffff")
        e(f"buffer_load_dwordx4 {vr(Vv+8*i,4)}, v{vVo}, {sr(R_WS,4)}, s{S_T0} offen sc1")
        vt[i] = e(f"buffer_load_dwordx4 {vr(Vv+8*i+4,4)}, v{vVo}, {sr(R_WS,4)}, s{S_T0} offen offset:512 sc1")
        e("s_mov_b64 exec, -1")
    LD = [(ldq,0),(ldk,8),(ldk,0),(ldk,1),(ldk,2),(ldv,0),(ldv,8),(ldk,3),(ldv,1),(ldk,4),(ldv,2),(ldk,5),(ldv,3),(ldk,6),(ldv,4),(ldk,7),(ldv,5),(ldv,6),(ldq,1),(ldk,9),(ldv,7),(ldv,9)]
    def ld_more(n):
        for _ in range(n):
            if LD:
                f, i = LD.pop(0); f(i)
    def finalize(u):
        e(f"""s_add_u32 s{S_T0}, s{S_TQ}, {u}
        s_mul_i32 s{S_T0}, s{S_T0}, 144
        s_add_u32 s{S_T0}, s{S_T0}, s{S_HEAD}
        s_add_u32 s{S_T0}, s{S_T0}, 112
        s_lshl_b32 s{S_T0}, s{S_T0}, 10
        s_add_u32 s{S_T0}, s{S_T0}, {WS_ACT}
        v_rcp_f32 v{vM}, v{O+8}
        v_mul_f32 v{vM}, v{vM}, v{vGt+u}""")
        for r in range(8): e(f"v_mul_f32 v{O+r}, v{O+r}, v{vM}")
        P = C + 4*u
        for k in range(4): e(f"v_cvt_pk_bf16_f32 v{P+k}, v{O+2*k}, v{O+2*k+1}")
        e(f"buffer_store_dwordx4 {vr(P,4)}, v{vL16}, {sr(R_WS,4)}, s{S_T0} offen sc1")
    def merged_tail():
        for r in range(16):
            e(f"v_exp_f32 v{Mg+r}, v{Mg+r}")
            if r % 4 == 3: ld_more(1)
        for i in range(8): e(f"v_cvt_pk_bf16_f32 v{Mg+i}, v{Mg+2*i}, v{Mg+2*i+1}")
        for i in range(8): e(f"v_and_b32 v{Mg+8+i}, v{Mg+i}, v{vPM+i}")
        for i in range(8): e(f"v_xor_b32 v{Mg+i}, v{Mg+i}, v{Mg+8+i}")
    ld_more(OPT['nld0'] if OPT['fast'] else 99)
    e.wait(lg=e.lgq)
    if OPT['fast']:
        for u in range(2):
            q = vr(Q+4*u, 4); first = [True]
            def qk(i, dst):
                while i not in kt: ld_more(1)
                e.wait(vm=max(kt[i], qt[u]))
                e(f"{MF32} {vr(dst,16)}, {vr(K+4*i,4)}, {q}, 0")
            def pv1(i, P, sidx):
                while i not in vt: ld_more(1)
                e.wait(vm=vt[i])
                e(f"{MF32} {vr(O,16)}, {vr(Vv+8*i+4*sidx,4)}, {vr(P+4*sidx,4)}, {'0' if first[0] else vr(O,16)}")
                first[0] = False
            far, diag = u, u + 8; mids = list(range(u+1, u+8))
            if u == 0:
                qk(diag, D[1]); qk(far, Mg)
            qk(mids[0], D[0])
            for r in range(16):
                e(f"v_cndmask_b32 v{Mg+r}, v{Mg+r}, v{D[1]+r}, s[{S_MASK+2*r}:{S_MASK+2*r+1}]")
            merged_tail()
            fstamp(f"mg{u}")
            pend = [(far, Mg, 0), (far, Mg, 1), (diag, Mg+8, 0), (diag, Mg+8, 1)]
            for n, i in enumerate(mids):
                b = D[n % 2]; P = Pb[n % 2]; mf = []
                if n + 1 < 7: mf.append(lambda n=n: qk(mids[n+1], D[(n+1) % 2]))
                take = 3 if len(pend) > 2 else len(pend)
                for x in pend[:take]: mf.append(lambda x=x: pv1(*x))
                pend = pend[take:]
                if n == 6 and u == 0:
                    def nxt(i2, dst):
                        e.wait(vm=max(kt[i2], qt[1]))
                        e(f"{MF32} {vr(dst,16)}, {vr(K+4*i2,4)}, {vr(Q+4,4)}, 0")
                    mf += [lambda: nxt(9, D[1]), lambda: nxt(1, Mg)]
                slots = {4*k: f for k, f in enumerate(mf)}
                for r in range(16):
                    if r in slots: slots[r]()
                    e(f"v_exp_f32 v{b+r}, v{b+r}")
                    if r % 4 == 2: ld_more(1)
                for k in range(8):
                    e(f"v_cvt_pk_bf16_f32 v{P+k}, v{b+2*k}, v{b+2*k+1}")
                    if n == 6 and k == 5: pv1(i, P, 0)
                pend += [(i, P, 0), (i, P, 1)] if n < 6 else [(i, P, 1)]
            for x in pend: pv1(*x)
            assert not LD
            lo, hi = (2.0**-64, 2.0**64) if not OPT['forcefb'] else (2.0**60, 2.0**64)
            e(f"""v_cmp_gt_f32 vcc, {f2u(lo)}, v{O+8}
            s_mov_b64 s[{S_EX}:{S_EX+1}], vcc
            v_cmp_nge_f32 vcc, {f2u(hi)}, v{O+8}
            s_or_b64 vcc, vcc, s[{S_EX}:{S_EX+1}]
            s_cbranch_vccnz L_att_gen""")
            finalize(u)
            stamp(f"unit{u}")
    else:
        e("s_branch L_att_gen")
    e("L_att_pub:")
    e.wait_all(lg=False)
    publish(2, 4, 2, vT, vT+1)
    stamp_flush()
    e("s_endpgm")
    e("L_att_gen:")
    e("s_nop 15")
    e.wait_all()
    for u in range(2):
        q = vr(Q+4*u, 4); first = [True]
        def qk(i, dst, c): e(f"{MF32} {vr(dst,16)}, {vr(K+4*i,4)}, {q}, {c}")
        def pv(i, P):
            for s in range(2):
                e(f"{MF32} {vr(O,16)}, {vr(Vv+8*i+4*s,4)}, {vr(P+4*s,4)}, {'0' if first[0] else vr(O,16)}")
                first[0] = False
        far, diag = u, u + 8; mids = list(range(u+1, u+8))
        qk(diag, D[0], "0")
        for r in range(16): e(f"v_mov_b32 v{D[1]+r}, 0xff800000")
        cl = guard(far); qk(far, D[1], "0"); cl()
        for r in range(16):
            e(f"v_cndmask_b32 v{Mg+r}, v{D[1]+r}, v{D[0]+r}, s[{S_MASK+2*r}:{S_MASK+2*r+1}]")
        e(f"v_max_f32 v{vM}, v{Mg}, v{Mg+1}\nv_max_f32 v{vM+1}, v{Mg+2}, v{Mg+3}")
        for r in range(4, 16, 4):
            e(f"v_max3_f32 v{vM}, v{vM}, v{Mg+r}, v{Mg+r+1}\nv_max3_f32 v{vM+1}, v{vM+1}, v{Mg+r+2}, v{Mg+r+3}")
        for n, i in enumerate(mids):
            b = D[n % 2]
            cl = guard(i)
            qk(i, b, "0")
            for r in range(0, 16, 4):
                e(f"v_max3_f32 v{vM}, v{vM}, v{b+r}, v{b+r+1}\nv_max3_f32 v{vM+1}, v{vM+1}, v{b+r+2}, v{b+r+3}")
            cl()
        e(f"""v_max_f32 v{vM}, v{vM}, v{vM+1}
        v_mov_b32 v{vM+1}, v{vM}
        v_permlane32_swap_b32 v{vM}, v{vM+1}
        v_max_f32 v{vM}, v{vM}, v{vM+1}""")
        for r in range(16): e(f"v_sub_f32 v{C+r}, 0, v{vM}")
        for r in range(16): e(f"v_add_f32 v{Mg+r}, v{Mg+r}, v{C}")
        merged_tail()
        pv(diag, Mg+8)
        cl = guard(far); pv(far, Mg); cl()
        for n, i in enumerate(mids):
            b = D[n % 2]; P = Pb[n % 2]
            cl = guard(i)
            qk(i, b, vr(C, 16))
            for r in range(16): e(f"v_exp_f32 v{b+r}, v{b+r}")
            for k in range(8): e(f"v_cvt_pk_bf16_f32 v{P+k}, v{b+2*k}, v{b+2*k+1}")
            pv(i, P)
            cl()
        finalize(u)
    e("s_branch L_att_pub")

g_stream()
e.restore(common_state); v.release(common_mark)
e("L_streamA:")
cur_stream[0] = "A"
a_stream()
body = e.text() + "".join("\n".join((l if l.strip().endswith(":") else "    " + l.strip()).rstrip() if not l.strip().endswith(":") else l.strip() for l in t.split("\n") if l.strip()) + "\n" for t in tail) + "L_end:\n    s_endpgm\n"

hdr = open("gated_mix__sliding_block__mixer_channel_mlp__prompt.s.ref").read().split("; Override launch")[0]
txt = hdr + f"""; Generated by my own generator script (single persistent launch; hand-off flags in d_ws carry a per-launch nonce).
; @launch grid=(256,1,1) block=(512,1,1) lds=163840
.amdgcn_target "amdgcn-amd-amdhsa--gfx950"
.text
.globl {NAME}
.p2align 8
.type {NAME},@function
{NAME}:
""" + body + f""".section .rodata,"a"
.p2align 6
.amdhsa_kernel {NAME}
  .amdhsa_next_free_vgpr 256
  .amdhsa_next_free_sgpr 102
  .amdhsa_accum_offset 256
  .amdhsa_group_segment_fixed_size 0
  .amdhsa_kernarg_size 96
  .amdhsa_user_sgpr_count 2
  .amdhsa_user_sgpr_kernarg_segment_ptr 1
  .amdhsa_system_sgpr_workgroup_id_x 1
.end_amdhsa_kernel
"""
out = sys.argv[1]
open(out, "w").write(txt)
if STAMP:
    import json; json.dump(stamp_names, open(out + ".names.json", "w"))
print("vgpr high water", v.hw, "nops", e.nops, "lines", txt.count("\n"), file=sys.stderr)
```

```python
import sys, math, struct
from emit import *

NAME = "gated_mix__sliding_block__mixer_channel_mlp__prompt_kernel"
STAMP = "--stamp" in sys.argv
ECHO = [a.split("=")[1] for a in sys.argv if a.startswith("--echo=")]
ECHO = ECHO[0] if ECHO else None
OPT = dict(rot=2, nreg=9, codepf=1, aprio=1, sleep=2, fine=0, npro=3, krot=3, n5=6, n6=6, wopf=0, fast=1, forcefb=0, gp=1, pf2=3, pfrot=1, kprio=1, nld0=22, qfirst=1, ntl=1, pf0=0, hsplit=1, aload=0, await_=1, outsc=0, nearly=6, kvsc=1, nt0=0, apoll=1)
for a in sys.argv:
    if a.startswith("--o:"):
        k, vv = a[4:].split("="); assert k in OPT, k; OPT[k] = int(vv)

def f2u(x): return struct.unpack("<I", struct.pack("<f", x))[0]
LOG2E = 1.4426950408889634
QSCALE = f2u(0.25 * LOG2E)
GC0 = -2.0 * math.sqrt(2.0 / math.pi) * LOG2E
GC1 = GC0 * 0.044715

WS_QKV = 0
WS_ACT = 8 << 20
WS_OMG = 20 << 20
WS_FLG = 21 << 20
WS_DBG = 24 << 20
WS_SIZE = 32 << 20
L_X, L_WQ, L_WH, L_MISC = 0, 49152, 98304, 147456
L_GW = L_MISC; L_ONES = L_MISC + 1152; L_STATS = L_MISC + 2304; L_CS = L_MISC + 4352; L_CNT = L_MISC + 4864
L_VSCR = L_MISC + 8192
RING = [4, 5, 10, 11, 16, 17, 0, 1, 6, 7, 12, 13, 2, 3, 8, 9, 14, 15]
NRING = 18
DACT = 8
SPIN = 200000

S_FO = 3
P_X, P_WQKV, P_WO, P_W1, P_B1, P_W2, P_B2, P_GW, P_OUT, P_DBG, P_WS = 4, 6, 8, 12, 14, 16, 18, 20, 22, 24, 26
S_ST = 10
R_X, R_WA, R_WS, R_W2, R_WO, R_OUT = 28, 32, 36, 40, 44, 88
S_SH, S_MH, S_PG = 71, 72, 73
S_W, S_TG, S_RB, S_CB, S_R4, S_C4, S_NONCE = 52, 53, 54, 55, 56, 57, 58
S_T0, S_T1, S_T2, S_T3, S_T4 = 59, 60, 61, 62, 63
S_MASK = 64
S_SO = 64
S_SC = 70
S_VM = 76
S_C1, S_C2, S_C3 = 12, 14, 16
A_SO, A_SC, A_KB, A_NV = 40, 46, 47, 98
A_FO = [4, 5, 6, 7, 8, 9, 18]; A_FD = [19, 22, 23, 60, 61, 62, 63]; A_SQ, A_SOo = 100, 101
G_FB, G_FD, G_SH = 74, [92, 93, 94, 95], 87
S_GW, S_GA, S_OFFO = 84, 85, 86
S_SX, S_SW, S_KO, S_KG = 48, 49, 50, 51
S_MX, S_MW, S_MG = 96, 97, 98
S_SPIN = 99
S_EX = 100

e = Em()
stamp_names = {}
cur_stream = ["G"]
def stamp(name, real=False):
    if ECHO == name and cur_stream[0] == "G": e("s_memtime s[78:79]")
    if not STAMP: return
    d = stamp_names.setdefault(cur_stream[0], [])
    if name in d: idx = d.index(name)
    else: d.append(name); idx = len(d) - 1
    assert idx < 64
    e(f"""{'s_memrealtime' if real else 's_memtime'} s[{S_ST}:{S_ST+1}]
    s_waitcnt lgkmcnt(0)
    v_writelane_b32 v255, s{S_ST}, {idx}""")
    e.lg_done = e.lgq
def fstamp(name):
    if OPT['fine']: stamp(name)
def stamp_flush():
    if ECHO and cur_stream[0] == "G":
        stamp("end")
        L = e.newlabel("L_echo")
        e(f"""s_memtime s[80:81]
        s_waitcnt lgkmcnt(0)
        s_sub_u32 s78, s78, s76
        s_min_u32 s78, s78, 400000
        {L}:
        s_memtime s[82:83]
        s_waitcnt lgkmcnt(0)
        s_sub_u32 s82, s82, s80
        s_cmp_lt_u32 s82, s78
        s_cbranch_scc1 {L}""")
    if not STAMP: return
    stamp("end"); stamp("rt_end", True)
    e(f"""s_lshl_b32 s{S_ST}, s2, 3
    s_add_u32 s{S_ST}, s{S_ST}, s{S_W}
    s_lshl_b32 s{S_ST}, s{S_ST}, 8
    s_add_u32 s{S_ST}, s{S_ST}, {WS_DBG}
    v_lshlrev_b32 v254, 2, v{vL}
    buffer_store_dword v255, v254, {sr(R_WS,4)}, s{S_ST} offen""")

def srd(r, p, size):
    e(f"""s_mov_b32 s{r}, s{p}
    s_mov_b32 s{r+1}, s{p+1}
    s_mov_b32 s{r+2}, {size}
    s_mov_b32 s{r+3}, 0x20000""")

def opt_vm(text):
    q = e.vmq; e(text); e.vmq = q

def get_nonce(vN):
    Ln = e.newlabel("L_n"); Lk = e.newlabel("L_nk")
    st = e.state()
    e(f"""v_readfirstlane_b32 s{S_NONCE}, v{vN}
    s_mov_b32 s{S_SPIN}, {SPIN}
    s_cmp_lg_u32 s{S_NONCE}, 0
    s_cbranch_scc0 {Ln}
    {Lk}:""")
    tail.append(f"""{Ln}:
    global_load_dword v{vN}, v{vZ}, {sr(P_DBG,2)} sc1
    s_waitcnt vmcnt(0)
    v_readfirstlane_b32 s{S_NONCE}, v{vN}
    s_sub_u32 s{S_SPIN}, s{S_SPIN}, 1
    s_cmp_eq_u32 s{S_SPIN}, 0
    s_cbranch_scc1 {Lk}
    s_cmp_lg_u32 s{S_NONCE}, 0
    s_cbranch_scc1 {Lk}
    s_branch {Ln}""")
tail = []

def stale_read(sdst, stage):
    e(f"s_add_u32 s{S_T0}, s{S_FO}, {stage*65536}\ns_mov_b32 s{sdst}, 0")
    e(f"s_atomic_add s{sdst}, {sr(P_WS,2)}, s{S_T0} glc")
def publish(sstale, stage):
    e(f"""s_sub_u32 s{S_T1}, s{S_NONCE}, s{sstale}
    s_sub_u32 s{S_T1}, s{S_T1}, 3
    s_cmp_eq_u32 s{S_TG}, 0
    s_cselect_b32 s{sstale}, s{S_T1}, 1
    s_add_u32 s{S_T0}, s{S_FO}, {stage*65536}
    s_atomic_add s{sstale}, {sr(P_WS,2)}, s{S_T0}""")
def flag_read(offs, dsts, base):
    return "\n".join(f"s_mov_b32 s{d}, 0\ns_atomic_add s{d}, {sr(base,2)}, {o} glc" for o, d in zip(offs, dsts))
def flag_test(dsts):
    t = [f"s_xor_b32 s{d}, s{d}, s{S_NONCE}" for d in dsts] + [f"s_or_b32 s{dsts[0]}, s{dsts[0]}, s{d}" for d in dsts[1:]]
    return "\n".join(t)
def poll(offs, dsts, base, issued=False):
    L = e.newlabel("L_poll"); Lo = e.newlabel("L_pout")
    if not issued: e(flag_read(offs, dsts, base))
    e(f"s_mov_b32 s{S_SPIN}, {SPIN}")
    e.wait_all(vm=False)
    e(flag_test(dsts))
    e(f"s_cbranch_scc1 {L}\n{Lo}:")
    tail.append(f"""{L}:
    {('s_sleep %d' % OPT['sleep']) if OPT['sleep'] else ''}
    {flag_read(offs, dsts, base)}
    s_sub_u32 s{S_SPIN}, s{S_SPIN}, 1
    s_waitcnt lgkmcnt(0)
    s_cbranch_scc1 {Lo}
    {flag_test(dsts)}
    s_cbranch_scc1 {L}
    s_branch {Lo}""")
def lds_wait(vaddr, vtmp):
    Lw = e.newlabel("L_lw")
    e(f"""s_mov_b32 s{S_SPIN}, {SPIN*8}
    {Lw}:
    s_sleep 2
    ds_read_b32 v{vtmp}, v{vaddr}
    s_sub_u32 s{S_SPIN}, s{S_SPIN}, 1""")
    e.wait_all(vm=False)
    e(f"""v_readfirstlane_b32 s{S_T0}, v{vtmp}
    s_cselect_b32 s{S_T0}, 1, s{S_T0}
    s_cmp_eq_u32 s{S_T0}, 0
    s_cbranch_scc1 {Lw}""")

v = Regs(1, 254 if STAMP else 256)
vL = v.alloc(); vL16 = v.alloc(); vZ = v.alloc()
vT = v.alloc(6, 2)
common_mark = v.mark()
vPF = 0
if ECHO: e("s_memtime s[76:77]")
e(f"""s_cmp_ge_u32 s2, 256
s_cbranch_scc1 L_end
s_load_dwordx16 s[4:19], s[0:1], 0
s_load_dwordx8 s[20:27], s[0:1], 64
v_lshrrev_b32 v{vT}, 6, v0
v_and_b32 v{vL}, 63, v0
v_readfirstlane_b32 s{S_W}, v{vT}
v_lshlrev_b32 v{vL16}, 4, v{vL}
v_mov_b32 v{vZ}, 0
s_and_b32 s{S_T0}, s2, 1
s_lshl_b32 s{S_T0}, s{S_T0}, 3
s_lshr_b32 s{S_T1}, s2, 3
s_and_b32 s{S_T2}, s{S_T1}, 7
s_add_u32 s{S_RB}, s{S_T0}, s{S_T2}
s_lshr_b32 s{S_T0}, s2, 1
s_and_b32 s{S_T0}, s{S_T0}, 3
s_lshl_b32 s{S_T0}, s{S_T0}, 2
s_lshr_b32 s{S_T2}, s2, 6
s_add_u32 s{S_CB}, s{S_T0}, s{S_T2}
s_and_b32 s{S_TG}, s{S_W}, 3
""")
if OPT['codepf']:
    e(f"""s_cmp_lg_u32 s{S_W}, 7
    s_cbranch_scc1 L_nocpf
    s_getpc_b64 s[{S_EX}:{S_EX+1}]
    L_pc:
    v_and_b32 v{vT}, 15, v{vL}
    s_lshl_b32 s{S_T0}, s{S_T1}, 4
    v_add_u32 v{vT}, s{S_T0}, v{vT}
    v_lshlrev_b32 v{vT}, 7, v{vT}
    v_min_u32 v{vT}, L_end-L_pc, v{vT}""")
    opt_vm(f"global_load_dword v{vPF}, v{vT}, s[{S_EX}:{S_EX+1}]")
    e("L_nocpf:")
KROT = {0: f"s_mov_b32 s{S_KO}, 0",
        2: f"s_add_u32 s{S_KO}, s{S_RB}, s{S_CB}\ns_and_b32 s{S_KO}, s{S_KO}, 3\ns_lshl_b32 s{S_KO}, s{S_KO}, 8\ns_lshr_b32 s{S_T0}, s2, 1\ns_xor_b32 s{S_T0}, s{S_T0}, s2\ns_and_b32 s{S_T0}, s{S_T0}, 1\ns_lshl_b32 s{S_T0}, s{S_T0}, 7\ns_add_u32 s{S_KO}, s{S_KO}, s{S_T0}",
        3: f"s_lshl_b32 s{S_KO}, s{S_CB}, 1\ns_add_u32 s{S_KO}, s{S_KO}, s{S_RB}\ns_and_b32 s{S_KO}, s{S_KO}, 7\ns_lshl_b32 s{S_KO}, s{S_KO}, 7",
        5: f"s_lshl_b32 s{S_KO}, s{S_CB}, 1\ns_add_u32 s{S_KO}, s{S_KO}, s{S_RB}\ns_lshr_b32 s{S_T0}, s{S_CB}, 2\ns_and_b32 s{S_T0}, s{S_T0}, 1\ns_add_u32 s{S_KO}, s{S_KO}, s{S_T0}\ns_and_b32 s{S_KO}, s{S_KO}, 7\ns_lshl_b32 s{S_KO}, s{S_KO}, 7",
        }[OPT['krot']]
e(f"""{KROT}
s_cmp_ge_u32 s{S_W}, 4
s_cbranch_scc1 L_streamA
""")
common_state = e.state()

def kperm_code(vrho, vk, vt):
    e(f"""v_and_b32 v{vk}, 0x23, v{vrho}
    v_lshrrev_b32 v{vt}, 2, v{vrho}
    v_and_b32 v{vt}, 3, v{vt}
    v_lshl_add_u32 v{vk}, v{vt}, 3, v{vk}
    v_lshrrev_b32 v{vt}, 4, v{vrho}
    v_and_b32 v{vt}, 1, v{vt}
    v_lshl_add_u32 v{vk}, v{vt}, 2, v{vk}""")

def dma_setup(fh):
    NW = 3 if fh == 0 else 4
    vXs = v.alloc(2); vWs = v.alloc(NW)
    e(f"""s_lshl_b32 s{S_T0}, s{S_RB}, 7
    s_lshl_b32 s{S_T1}, s{S_W}, 4
    s_add_u32 s{S_T0}, s{S_T0}, s{S_T1}
    v_lshrrev_b32 v{vT}, 3, v{vL}
    v_add_u32 v{vT}, s{S_T0}, v{vT}
    v_lshlrev_b32 v{vT}, 10, v{vT}
    v_lshrrev_b32 v{vT+1}, 4, v{vL}
    v_and_b32 v{vT+2}, 7, v{vL}
    v_xor_b32 v{vT+2}, v{vT+2}, v{vT+1}
    v_lshlrev_b32 v{vT+2}, 4, v{vT+2}
    v_add_u32 v{vXs}, v{vT}, v{vT+2}
    v_xor_b32 v{vT+2}, 64, v{vT+2}
    v_add_u32 v{vXs+1}, v{vT}, v{vT+2}
    v_add_u32 v{vXs+1}, 7168, v{vXs+1}
    s_lshl_b32 s{S_MX}, s{S_W}, 11""")
    for j in range(NW):
        if fh == 0:
            e(f"""s_mul_i32 s{S_T0}, s{S_TG}, 192
            s_add_u32 s{S_T0}, s{S_T0}, {64*j}
            v_add_u32 v{vT}, s{S_T0}, v{vL}
            v_mul_u32_u24 v{vT+1}, 43691, v{vT}
            v_lshrrev_b32 v{vT+1}, 19, v{vT+1}
            v_mul_u32_u24 v{vT+2}, 12, v{vT+1}
            v_sub_u32 v{vT+2}, v{vT}, v{vT+2}""")
            kperm_code(vT+1, vT+3, vT+4)
            e(f"""v_lshrrev_b32 v{vT+4}, 1, v{vT+1}
            v_and_b32 v{vT+4}, 2, v{vT+4}
            v_xor_b32 v{vT+2}, v{vT+2}, v{vT+4}
            v_mul_u32_u24 v{vT+3}, 3072, v{vT+3}
            v_lshl_add_u32 v{vT+3}, v{vT+2}, 4, v{vT+3}
            v_lshrrev_b32 v{vT+4}, 3, v{vT+2}
            s_lshl_b32 s{S_T1}, s{S_CB}, 6
            s_sub_u32 s{S_T1}, 1920, s{S_T1}
            v_mad_u32_u24 v{vT+3}, v{vT+4}, s{S_T1}, v{vT+3}
            s_lshl_b32 s{S_T0}, s{S_CB}, 7
            s_sub_u32 s{S_T0}, s{S_T0}, {1024*j}
            v_add_u32 v{vWs+j}, s{S_T0}, v{vT+3}""")
        else:
            e(f"""s_lshl_b32 s{S_T0}, s{S_TG}, 8
            s_add_u32 s{S_T0}, s{S_T0}, {64*j}
            v_add_u32 v{vT}, s{S_T0}, v{vL}
            v_mul_u32_u24 v{vT+1}, 4682, v{vT}
            v_lshrrev_b32 v{vT+1}, 16, v{vT+1}
            v_mul_u32_u24 v{vT+2}, 14, v{vT+1}
            v_sub_u32 v{vT+2}, v{vT}, v{vT+2}""")
            kperm_code(vT+1, vT+3, vT+4)
            e(f"""v_mul_u32_u24 v{vT+3}, 3584, v{vT+3}
            v_lshl_add_u32 v{vT+3}, v{vT+2}, 4, v{vT+3}
            v_and_b32 v{vT+4}, 64, v{vT+1}
            v_lshl_add_u32 v{vT+3}, v{vT+4}, 20, v{vT+3}
            s_mul_i32 s{S_T0}, s{S_CB}, 224
            s_sub_u32 s{S_T0}, s{S_T0}, {1024*j}
            v_add_u32 v{vWs+j}, s{S_T0}, v{vT+3}""")
    if fh == 0: e(f"s_mul_i32 s{S_MW}, s{S_TG}, 3072\ns_add_u32 s{S_MW}, s{S_MW}, {L_WQ}")
    else:       e(f"s_lshl_b32 s{S_MW}, s{S_TG}, 12\ns_add_u32 s{S_MW}, s{S_MW}, {L_WH}")
    e("s_waitcnt lgkmcnt(0)")
    stamp("rt0", True); stamp("t0")
    srd(R_X, P_X, 2048*512*2)
    if fh == 0: srd(R_WA, P_WQKV, 512*1536*2)
    else:       srd(R_WA, P_W1, 512*1792*2)
    wstride = 3072 if fh == 0 else 3584
    dma_t = {}
    def dma_ops(c):
        s = c % 3; ops = []
        def one(mb, mo, so, va, R, off, first):
            def f():
                if off == 0:
                    e(f"s_add_u32 m0, s{mb}, {mo}")
                    if first: e(f"s_add_u32 s{S_SX}, s{S_KO}, {128*c}\ns_and_b32 s{S_SX}, s{S_SX}, 1023")
                    else: e(f"s_mul_i32 s{S_SW}, s{S_SX}, {wstride//2}")
                nt = " nt" if (OPT['ntl'] and (c == 7 or (c == 6 and first))) or c < OPT['nt0'] else ""
                dma_t[c] = e(f"buffer_load_dwordx4 v{va}, {sr(R,4)}, s{so} offen offset:{off}{nt} lds")
            return f
        for j in range(2): ops.append(one(S_MX, L_X + 16384*s, S_SX, vXs+j, R_X, 1024*j, True))
        for j in range(NW): ops.append(one(S_MW, 16384*s, S_SW, vWs+j, R_WA, 1024*j, False))
        return ops
    return dma_ops, dma_t

def xread_setup():
    vXr = v.alloc(2); vG = v.alloc(1)
    e(f"""v_lshrrev_b32 v{vG}, 4, v{vL}
    v_and_b32 v{vT}, 15, v{vL}
    v_lshrrev_b32 v{vT+1}, 1, v{vT}
    v_xor_b32 v{vT+1}, v{vT+1}, v{vG}
    v_lshlrev_b32 v{vT+1}, 4, v{vT+1}
    v_lshl_add_u32 v{vT+1}, v{vT}, 7, v{vT+1}
    s_lshl_b32 s{S_T0}, s{S_TG}, 12
    v_add_u32 v{vXr}, s{S_T0}, v{vT+1}
    v_xor_b32 v{vXr+1}, 64, v{vXr}
    v_lshrrev_b32 v{vT+2}, 2, v{vL}
    v_and_b32 v{vT+3}, 3, v{vL}
    v_lshlrev_b32 v{vT+3}, 3, v{vT+3}
    s_lshl_b32 s{S_T0}, s{S_RB}, 12
    s_lshl_b32 s{S_T1}, s{S_CB}, 8
    s_add_u32 s{S_FO}, s{S_T0}, s{S_T1}
    s_add_u32 s{S_FO}, s{S_FO}, {WS_FLG}""")
    return vXr, vG

def kloop(reads, mfmas, dma_ops, dma_t, extras, head, tailx):
    tick = {}
    def block(ks, extra):
        R = reads(ks+1) if ks < 15 else []
        M = mfmas(ks)
        nx = len(extra); done = 0
        if ks > 0: e.wait(lg=e.lgq)
        for i, (deps, tx) in enumerate(M):
            e.wait(lg=max(tick[(ks, d)] for d in deps))
            e(tx)
            for _ in range(2 if i < 2 else 1):
                if R:
                    nm, rt = R.pop(0); tick[(ks+1, nm)] = e(rt)
            while done < nx and (2*done+1)*len(M) <= 2*(i+1)*nx:
                extra[done](); done += 1
        for nm, rt in R: tick[(ks+1, nm)] = e(rt)
        for x in extra[done:]: x()
    stamp("setup_done")
    t_c0 = dma_t[0]
    d1 = dma_ops(1)
    for f in d1[:OPT['npro']]: f()
    e.wait(vm=t_c0); e.wait_all(vm=False)
    e("s_barrier")
    stamp("c0_landed")
    for nm, tx in reads(0): tick[(0, nm)] = e(tx)
    for f in d1[OPT['npro']:]: f()
    pend = dma_ops(2); last = []
    for c in range(8):
        block(2*c, pend)
        ex = []
        if c < 7:
            tailx(c)
            e.wait(vm=dma_t[c+1]); e.wait_all(vm=False)
            e("s_barrier")
            if OPT['fine'] or c in (0, 6): stamp(f"b{c}b")
            head(c)
            if c + 3 < 8: ex = dma_ops(c+3)
            ex = ex + extras(c)
        if c == 6:
            h = (len(ex) + 2) // 3; last = ex[2*h:]; ex = ex[:2*h]
        if c == 7: ex = last + last
        h = (len(ex) + 1) // 2
        block(2*c+1, ex[:h]); pend = ex[h:]
    stamp("kloop_end")

MF16 = "v_mfma_f32_16x16x32_bf16"
MF32 = "v_mfma_f32_32x32x16_bf16"

def w2_setup(vw2, first):
    e(f"""s_lshr_b32 s{S_T1}, s2, 3
    s_and_b32 s{S_T0}, s2, 7
    s_lshl_b32 s{S_T0}, s{S_T0}, 2
    s_and_b32 s{S_T2}, s{S_T1}, 3
    s_add_u32 s{S_R4}, s{S_T0}, s{S_T2}
    s_lshr_b32 s{S_C4}, s{S_T1}, 2
    v_lshrrev_b32 v{vT}, 2, v{vL}
    v_and_b32 v{vT}, 4, v{vT}
    v_and_b32 v{vT+1}, 7, v{vL}
    v_xor_b32 v{vT}, v{vT}, v{vT+1}
    v_lshlrev_b32 v{vT}, 4, v{vT}
    s_lshl_b32 s{S_T0}, s{S_C4}, 7
    v_add_u32 v{vT}, s{S_T0}, v{vT}
    v_lshrrev_b32 v{vT+1}, 3, v{vL}
    s_mul_i32 s{S_T0}, s{S_TG}, 448
    v_add_u32 v{vT+2}, s{S_T0}, v{vT+1}
    v_lshl_add_u32 v{vw2}, v{vT+2}, 10, v{vT}
    v_add_u32 v{vw2+1}, {8192-1024}, v{vw2}
    s_lshl_b32 s{S_MG}, s{S_TG}, 11""")
    e({0: f"s_mov_b32 s{S_OFFO}, 0",
       2: f"s_and_b32 s{S_T0}, s{S_C4}, 1\ns_lshl_b32 s{S_T0}, s{S_T0}, 2\ns_add_u32 s{S_OFFO}, s{S_T0}, s2\ns_and_b32 s{S_OFFO}, s{S_OFFO}, 7",
       3: f"s_lshl_b32 s{S_T0}, s{S_C4}, 1\ns_add_u32 s{S_OFFO}, s{S_T0}, s2\ns_and_b32 s{S_OFFO}, s{S_OFFO}, 7",
       4: f"s_and_b32 s{S_OFFO}, s2, 7",
       5: f"s_add_u32 s{S_OFFO}, s{S_C4}, s2\ns_and_b32 s{S_OFFO}, s{S_OFFO}, 7"}[OPT['rot']])
    e(f"""s_mul_i32 s{S_T1}, s{S_OFFO}, 7
    s_lshr_b32 s{S_T1}, s{S_T1}, 1
    s_lshl_b32 s{S_GW}, s{S_T1}, 14
    s_lshl_b32 s{S_GA}, s{S_T1}, 10""")
    if first: gw_advance(first)
def gw_advance(n):
    e(f"s_add_u32 s{S_GW}, s{S_GW}, {16384*n}\ns_cmp_lt_u32 s{S_GW}, {28*16384}\ns_cselect_b32 s{S_T0}, 0, {28*16384}\ns_sub_u32 s{S_GW}, s{S_GW}, s{S_T0}")
NPRE = 12

def g_stream():
    NREG = OPT['nreg']
    g = {'w2': v.alloc(2), 'wo': v.alloc(2), 't': {}}
    vR = v.alloc(6)
    FR = v.alloc(72, 4)
    g_mark = v.mark()
    fX = [FR, FR + 36]; fW = [FR + 8, FR + 44]
    dma_ops, dma_t = dma_setup(0)
    for f in dma_ops(0): f()
    stamp("r0_issued")
    srd(R_WS, P_WS, WS_SIZE)
    L1 = e.newlabel()
    e(f"""s_or_b32 s{S_T0}, s2, s{S_W}
    s_cmp_lg_u32 s{S_T0}, 0
    s_cbranch_scc1 {L1}
    s_memrealtime s[{S_EX}:{S_EX+1}]
    s_waitcnt lgkmcnt(0)
    s_or_b32 s{S_T0}, s{S_EX}, 1
    v_mov_b32 v{vT}, s{S_T0}""")
    opt_vm(f"global_store_dword v{vZ}, v{vT}, {sr(P_DBG,2)} sc1")
    e(f"{L1}:")
    vXr, vG = xread_setup()
    stale_read(G_SH, 1)
    vWh = v.alloc(7); vCs = v.alloc(7); vSt = v.alloc(1); vN = v.alloc(1); vB1 = v.alloc(14, 2)
    e(f"""v_mul_u32_u24 v{vT+4}, 224, v{vT+2}
    v_add_u32 v{vT+4}, v{vT+4}, v{vT+3}
    v_add_u32 v{vT+4}, {L_WH}, v{vT+4}
    v_lshlrev_b32 v{vT}, 3, v{vG}
    v_lshlrev_b32 v{vT+1}, 4, v{vG}
    v_add_u32 v{vT+1}, {L_CS}, v{vT+1}
    s_lshl_b32 s{S_T2}, s{S_RB}, 2
    s_add_u32 s{S_T2}, s{S_T2}, s{S_TG}
    s_mul_i32 s{S_T2}, s{S_T2}, 144
    s_mul_i32 s{S_T1}, s{S_CB}, 7
    s_add_u32 s{S_T2}, s{S_T2}, s{S_T1}
    s_mul_i32 s{S_T3}, s{S_CB}, 224""")
    for j, d in enumerate([0, 4, 1, 2, 3, 5, 6]):
        e(f"""s_add_u32 s{S_T4}, s{S_TG}, {d}
        s_cmp_ge_u32 s{S_T4}, 7
        s_cselect_b32 s{S_T0}, 7, 0
        s_sub_u32 s{S_T4}, s{S_T4}, s{S_T0}
        s_lshl_b32 s{S_T0}, s{S_T4}, 5
        v_add_u32 v{vWh+j}, s{S_T0}, v{vT+4}
        s_add_u32 s{S_T1}, s{S_T0}, s{S_T3}
        v_add_u32 v{vB1+2*j}, s{S_T1}, v{vT}
        s_lshl_b32 s{S_T0}, s{S_T0}, 1
        v_add_u32 v{vCs+j}, s{S_T0}, v{vT+1}
        s_add_u32 s{S_T4}, s{S_T4}, s{S_T2}
        s_lshl_b32 s{S_T4}, s{S_T4}, 10
        s_add_u32 s{S_SO+j}, s{S_T4}, {WS_ACT}""")
    e(f"""v_and_b32 v{vT}, 15, v{vL}
    s_lshl_b32 s{S_T0}, s{S_TG}, 9
    s_add_u32 s{S_T0}, s{S_T0}, {L_STATS}
    v_lshlrev_b32 v{vT}, 4, v{vT}
    v_add_u32 v{vSt}, s{S_T0}, v{vT}""")
    aH = v.alloc(56, 4); aCS = v.alloc(8, 4); vOnes = v.alloc(4, 4); cC = v.alloc(2, 2)
    for i in range(4): e(f"v_mov_b32 v{vOnes+i}, 0x3f803f80")
    e(f"v_mov_b32 v{cC}, {f2u(GC0)}\nv_mov_b32 v{cC+1}, {f2u(GC1)}")
    srd(R_W2, P_W2, 1792*512*2); srd(R_WO, P_WO, 512*512*2); srd(R_OUT, P_OUT, 2048*512*2)
    w2_setup(g['w2'], 0)
    e(f"""v_and_b32 v{vT+1}, 3, v{vT+1}
    v_lshrrev_b32 v{vT+2}, 5, v{vL}
    v_lshl_add_u32 v{vT+1}, v{vT+2}, 3, v{vT+1}
    s_lshl_b32 s{S_T0}, s{S_W}, 7
    v_add_u32 v{vT+1}, s{S_T0}, v{vT+1}
    v_lshl_add_u32 v{g['wo']}, v{vT+1}, 10, v{vT}
    v_add_u32 v{g['wo']+1}, {4096-1024}, v{g['wo']}""")
    e(f"""v_lshrrev_b32 v{vT}, 5, v{vL}
    v_lshlrev_b32 v{vT}, 10, v{vT}
    v_lshrrev_b32 v{vT+1}, 2, v{vL}
    v_and_b32 v{vT+1}, 3, v{vT+1}
    v_lshl_add_u32 v{vT}, v{vT+1}, 7, v{vT}
    v_and_b32 v{vT+1}, 2, v{vT+1}
    v_lshl_add_u32 v{vT}, v{vT+1}, 5, v{vT}
    v_and_b32 v{vT+1}, 16, v{vL}
    v_lshl_add_u32 v{vT}, v{vT+1}, 1, v{vT}
    v_and_b32 v{vT+1}, 3, v{vL}
    v_lshl_add_u32 v{vT}, v{vT+1}, 3, v{vT}
    s_and_b32 s{S_T0}, s{S_W}, 1
    s_lshl_b32 s{S_T0}, s{S_T0}, 6
    v_xor_b32 v{vT}, s{S_T0}, v{vT}
    v_add_u32 v{vR}, s{S_MG}, v{vT}
    v_xor_b32 v{vR+1}, 64, v{vR}
    v_add_u32 v{vR+2}, 49152, v{vR}
    v_add_u32 v{vR+3}, 49152, v{vR+1}
    v_add_u32 v{vR+4}, 98304, v{vR}
    v_add_u32 v{vR+5}, 98304, v{vR+1}""")
    def g_dma(s):
        gam = RING[s % NRING]
        e(f"s_add_u32 m0, s{S_MG}, {8192*gam}")
        if s < 28: vv, R, so = g['w2'], R_W2, S_GW
        else:
            vv, R, so = g['wo'], R_WO, S_T4
            e(f"s_add_u32 s{S_T4}, s{S_OFFO}, {s-28}\ns_and_b32 s{S_T4}, s{S_T4}, 7\ns_lshl_b32 s{S_T4}, s{S_T4}, 14")
        e(f"buffer_load_dwordx4 v{vv}, {sr(R,4)}, s{so} offen lds")
        g['t'][s] = e(f"buffer_load_dwordx4 v{vv+1}, {sr(R,4)}, s{so} offen offset:1024 lds")
        if s < 27:
            e(f"s_add_u32 s{S_GW}, s{S_GW}, 16384\ns_cmp_lt_u32 s{S_GW}, {28*16384}\ns_cselect_b32 s{S_GW}, s{S_GW}, 0")
    def reads(ks):
        c, kk = divmod(ks, 2); s = c % 3; b = ks % 2
        R = [("x0", f"ds_read_b128 {vr(fX[b],4)}, v{vXr+kk} offset:{L_X+16384*s}"),
             ("x1", f"ds_read_b128 {vr(fX[b]+4,4)}, v{vXr+kk} offset:{L_X+16384*s+2048}")]
        for j in range(7):
            for h2 in range(2):
                R.append((f"w{j}", f"ds_read_b64_tr_b16 {vr(fW[b]+4*j+2*h2,2)}, v{vWh+j} offset:{16384*s+7168*kk+3584*h2}"))
        return R
    def mfmas(ks):
        b = ks % 2; c0 = (lambda r: "0") if ks == 0 else (lambda r: vr(r, 4))
        M = []
        for j in range(7):
            if j < 2: M.append(((f"w{j}",), f"{MF16} {vr(aCS+4*j,4)}, {vr(fW[b]+4*j,4)}, {vr(vOnes,4)}, {c0(aCS+4*j)}"))
            for f in range(2):
                acc = aH + 8*j + 4*f
                M.append(((f"w{j}", "x0", "x1"), f"{MF16} {vr(acc,4)}, {vr(fW[b]+4*j,4)}, {vr(fX[b]+4*f,4)}, {c0(acc)}"))
        return M
    b1t = []; tN = []
    def b1_load(j): b1t.append(e(f"global_load_dwordx2 {vr(vB1+2*j,2)}, v{vB1+2*j}, {sr(P_B1,2)}"))
    vP2 = v.alloc(2)
    e(f"""s_lshr_b32 s{S_T0}, s2, 3
    s_and_b32 s{S_PG}, s{S_T0}, 3
    s_lshr_b32 s{S_T0}, s{S_GA}, 10
    s_lshl_b32 s{S_T1}, s{S_PG}, 2
    s_add_u32 s{S_T0}, s{S_T0}, s{S_T1}
    s_add_u32 s{S_T0}, s{S_T0}, 12
    v_add_u32 v{vT}, s{S_T0}, v{vG}
    v_subrev_u32 v{vT+1}, 28, v{vT}
    v_min_u32 v{vT}, v{vT}, v{vT+1}
    v_and_b32 v{vT+1}, 15, v{vL}
    v_lshl_add_u32 v{vT}, v{vT}, 4, v{vT+1}
    s_mul_i32 s{S_T0}, s{S_W}, 448
    v_add_u32 v{vT}, s{S_T0}, v{vT}
    s_lshl_b32 s{S_T1}, s{S_C4}, 7
    v_lshlrev_b32 v{vT}, 10, v{vT}
    v_add_u32 v{vP2}, s{S_T1}, v{vT}
    s_lshl_b32 s{S_T0}, s{S_W}, 2
    s_add_u32 s{S_T0}, s{S_T0}, s{S_PG}
    s_lshl_b32 s{S_T0}, s{S_T0}, 15
    s_add_u32 s{S_T0}, s{S_T0}, s{S_T1}
    v_lshlrev_b32 v{vT}, 10, v{vL}
    v_add_u32 v{vP2+1}, s{S_T0}, v{vT}
    s_add_u32 s{S_PG}, s{S_PG}, s{S_C4}
    s_and_b32 s{S_PG}, s{S_PG}, 3""")
    def pf2(t):
        t -= OPT['pf0']
        if not OPT['pf2'] or not 0 <= t < 4*OPT['pf2']: return
        bu, gam = divmod(t, 4)
        e(f"s_cmp_eq_u32 s{S_PG}, {gam}")
        if bu == 0:   e(f"s_cselect_b32 exec_lo, -1, 0\ns_mov_b32 exec_hi, 0\nbuffer_load_dword v{vPF}, v{vP2}, {sr(R_W2,4)}, 0 offen")
        elif bu == 1: e(f"s_cselect_b32 exec_hi, -1, 0\ns_mov_b32 exec_lo, 0\nbuffer_load_dword v{vPF}, v{vP2}, {sr(R_W2,4)}, 0 offen")
        else:         e(f"s_cselect_b32 exec_lo, -1, 0\ns_mov_b32 exec_hi, 0\nbuffer_load_dword v{vPF}, v{vP2+1}, {sr(R_WO,4)}, 0 offen")
        e("s_mov_b64 exec, -1")
    def extras(c):
        if c == 5: return [(lambda s=s: g_dma(s)) for s in range(OPT['n5'])]
        if c == 6: return [(lambda s=s: g_dma(s)) for s in range(OPT['n5'], OPT['n5'] + OPT['n6'])]
        return []
    def tailx(c):
        pf2(2*c - 1)
        if c == 2:
            for j in range(7): b1_load(j)
        if c == 4: tN.append(e(f"global_load_dword v{vN}, v{vZ}, {sr(P_DBG,2)} sc1"))
    kloop(reads, mfmas, dma_ops, dma_t, extras, lambda c: pf2(2*c), tailx)
    assert OPT['n5'] + OPT['n6'] == NPRE
    rt = {}
    fa = [0, 0]
    def wreg(s): return FR + 8*s if s < NREG else fa[s % 2]
    def tr_reads(s):
        gam = RING[s % NRING]; win = gam // 6; off = 8192*gam - 49152*win
        if s in g['t']: e.wait(vm=g['t'][s])
        for ch in range(2):
            for h2 in range(2):
                rt[s] = e(f"ds_read_b64_tr_b16 {vr(wreg(s)+4*ch+2*h2,2)}, v{vR+2*win+ch} offset:{off+512*h2}")
    e(f"""s_mov_b32 exec_lo, 0x00010001
    s_mov_b32 exec_hi, 0x00010001
    ds_write_b128 v{vCs}, {vr(aCS,4)}
    ds_write_b128 v{vCs+1}, {vr(aCS+4,4)}
    s_mov_b64 exec, -1""")
    if OPT['aload']:
        for s in range(NREG): tr_reads(s)
    e.wait(vm=tN[0])
    get_nonce(vN)
    if OPT['aload']: gw_advance(NRING + NREG - NPRE)
    e.wait_all(vm=False)
    e("s_barrier")
    stamp("xchg_bar")
    stt = v.alloc(8, 4); cs = v.alloc(28, 4); bb = vOnes; tm = v.alloc(8, 2)
    e(f"ds_read_b128 {vr(stt,4)}, v{vSt}")
    tst = e(f"ds_read_b128 {vr(stt+4,4)}, v{vSt} offset:256")
    tcs = [e(f"ds_read_b128 {vr(cs+4*j,4)}, v{vCs+j}") for j in range(7)]
    th = None; nst = 0
    for j in range(7):
        A = aH + 8*j
        e(f"""v_lshlrev_b32 v{bb}, 16, v{vB1+2*j}
        v_and_b32 v{bb+1}, 0xffff0000, v{vB1+2*j}
        v_lshlrev_b32 v{bb+2}, 16, v{vB1+2*j+1}
        v_and_b32 v{bb+3}, 0xffff0000, v{vB1+2*j+1}""")
        e.wait(lg=tcs[j])
        P4 = range(4)
        S4 = lambda p: stt + 4*(p//2)
        for p in P4: e(f"v_pk_fma_f32 {vr(tm+2*p,2)}, {vr(cs+4*j+2*(p%2),2)}, {vr(S4(p),2)}, {vr(bb+2*(p%2),2)} op_sel:[0,1,0] op_sel_hi:[1,1,1]")
        for p in P4: e(f"v_pk_fma_f32 {vr(A+2*p,2)}, {vr(A+2*p,2)}, {vr(S4(p),2)}, {vr(tm+2*p,2)} op_sel_hi:[1,0,1]")
        for p in P4: e(f"v_pk_mul_f32 {vr(tm+2*p,2)}, {vr(A+2*p,2)}, {vr(A+2*p,2)}")
        for p in P4: e(f"v_pk_fma_f32 {vr(tm+2*p,2)}, {vr(tm+2*p,2)}, {vr(cC,2)}, {vr(cC,2)} op_sel:[0,1,0] op_sel_hi:[1,1,0]")
        for p in P4: e(f"v_pk_mul_f32 {vr(tm+2*p,2)}, {vr(tm+2*p,2)}, {vr(A+2*p,2)}")
        for i in range(8): e(f"v_exp_f32 v{tm+i}, v{tm+i}")
        for p in P4: e(f"v_pk_fma_f32 {vr(tm+2*p,2)}, {vr(tm+2*p,2)}, {vr(S4(p)+2,2)}, {vr(S4(p)+2,2)} op_sel_hi:[1,0,0]")
        for i in range(8): e(f"v_rcp_f32 v{tm+i}, v{tm+i}")
        for p in P4: e(f"v_pk_mul_f32 {vr(A+2*p,2)}, {vr(A+2*p,2)}, {vr(tm+2*p,2)}")
        P = cs + 4*j
        for i in range(4): e(f"v_cvt_pk_bf16_f32 v{P+i}, v{A+2*i}, v{A+2*i+1}")
        e(f"v_permlane16_swap_b32 v{P}, v{P+2}\nv_permlane16_swap_b32 v{P+1}, v{P+3}")
        if j + 1 >= OPT['hsplit']:
            while nst <= j:
                th = e(f"buffer_store_dwordx4 {vr(cs+4*nst,4)}, v{vL16}, {sr(R_WS,4)}, s{S_SO+nst} offen sc1"); nst += 1
        if j == 6 - 1: fstamp("gelu5")
    stamp("gelu_end")
    v.release(g_mark)
    vA = v.alloc(2); vOm = v.alloc(1); vB2 = v.alloc(8, 2)
    acc = v.alloc(64, 4); fa[0] = v.alloc(8, 4); fa[1] = v.alloc(8, 4); ab = v.alloc(8*DACT, 4)
    assert cs >= vB2 + 8
    e(f"""s_lshr_b32 s{S_T0}, s{S_R4}, 1
    s_lshl_b32 s{S_T0}, s{S_T0}, 2
    s_add_u32 s{S_T0}, s{S_T0}, s{S_W}
    s_lshl_b32 s{S_T0}, s{S_T0}, 10
    s_add_u32 s{S_T0}, s{S_T0}, {WS_FLG + 65536}
    s_add_u32 s{G_FB}, s{P_WS}, s{S_T0}
    s_addc_u32 s{G_FB+1}, s{P_WS+1}, 0
    s_mul_i32 s{S_T0}, s{S_R4}, 288
    s_mul_i32 s{S_T1}, s{S_W}, 28
    s_add_u32 s{S_T0}, s{S_T0}, s{S_T1}
    s_lshl_b32 s{S_T0}, s{S_T0}, 10
    s_add_u32 s{S_T0}, s{S_T0}, {WS_ACT}
    s_add_u32 s{S_T1}, s{S_T0}, {144*1024}
    s_cmp_ge_u32 s{S_W}, 2
    s_cselect_b32 s{S_T2}, s{S_T1}, s{S_T0}
    s_cselect_b32 s{S_T3}, s{S_T0}, s{S_T1}
    v_add_u32 v{vA}, s{S_T2}, v{vL16}
    v_add_u32 v{vA+1}, s{S_T3}, v{vL16}
    s_and_b32 s{S_T0}, s{S_W}, 1
    s_lshl_b32 s{S_T0}, s{S_T0}, 6
    s_lshl_b32 s{S_T1}, s{S_C4}, 7
    s_add_u32 s{S_T0}, s{S_T0}, s{S_T1}
    v_lshrrev_b32 v{vT+2}, 5, v{vL}
    v_lshlrev_b32 v{vT+2}, 3, v{vT+2}
    v_add_u32 v{vT+2}, s{S_T0}, v{vT+2}""")
    for gi in range(4): e(f"global_load_dwordx2 {vr(vB2+2*gi,2)}, v{vT+2}, {sr(P_B2,2)} offset:{16*gi}")
    for s in range(NREG): tr_reads(s)
    e.wait_all(vm=False)
    e.wait(vm=th)
    publish(G_SH, 1)
    stamp("pub_h")
    def wait_partner():
        e(f"s_lshl_b32 s{S_T0}, s{S_TG}, 2\ns_add_u32 s{S_T0}, s{S_T0}, {L_CNT + 16}\nv_mov_b32 v{vT}, s{S_T0}")
        lds_wait(vT, vT+1)
    if not OPT['aload']:
        for s in range(NPRE, NPRE + OPT['nearly']): g_dma(s)
        if OPT['await_']: wait_partner()
        stamp("a_iss")
        for s in range(NPRE + OPT['nearly'], NRING + NREG): g_dma(s)
    stamp("wpre")
    poll([256*i for i in range(4)], G_FD, G_FB)
    stamp("h_seen")
    at = {}
    def act_load(s):
        sl = ab + 8*(s % DACT)
        if s == 28:
            e(f"""s_mul_i32 s{S_T0}, s{S_W}, {-20*1024}
            s_add_u32 s{S_T0}, s{S_T0}, {112*1024}
            v_add_u32 v{vA}, s{S_T0}, v{vA}
            v_add_u32 v{vA+1}, s{S_T0}, v{vA+1}""")
        if s >= 28:
            e(f"s_add_u32 s{S_GA}, s{S_OFFO}, {s-28}\ns_and_b32 s{S_GA}, s{S_GA}, 7\ns_lshl_b32 s{S_GA}, s{S_GA}, 10")
        e(f"buffer_load_dwordx4 {vr(sl,4)}, v{vA}, {sr(R_WS,4)}, s{S_GA} offen sc1")
        at[s] = e(f"buffer_load_dwordx4 {vr(sl+4,4)}, v{vA+1}, {sr(R_WS,4)}, s{S_GA} offen sc1")
        if s < 27:
            e(f"s_add_u32 s{S_GA}, s{S_GA}, 1024\ns_cmp_lt_u32 s{S_GA}, {28*1024}\ns_cselect_b32 s{S_GA}, s{S_GA}, 0")
    for s in range(DACT): act_load(s)
    if OPT['aload']: wait_partner()
    if NREG == 0: tr_reads(0)
    tf = None
    for s in range(36):
        if NREG <= s + 1 < 36: tr_reads(s+1)
        e.wait(vm=at[s], lg=rt[s])
        sl = ab + 8*(s % DACT)
        for ch in range(2):
            for tk in range(2):
                a = acc + 16*(2*tk + ch)
                e(f"{MF32} {vr(a,16)}, {vr(wreg(s)+4*ch,4)}, {vr(sl+4*tk,4)}, {'0' if s == 0 else vr(a,16)}")
        if s in (0, 4, 8, 12, 16, 24, 28, 32): stamp(f"g{s}")
        if s == 28 - DACT - 4:
            e(flag_read([65536 + 256*i for i in range(4)], G_FD, G_FB))
        if s + DACT == 28:
            stamp("pre_opoll")
            poll([65536 + 256*i for i in range(4)], G_FD, G_FB, True)
            stamp("o_seen")
            e(f"""s_lshr_b32 s{S_T0}, s{S_W}, 1
            s_lshl_b32 s{S_T0}, s{S_T0}, 7
            s_lshl_b32 s{S_T1}, s{S_R4}, 8
            s_add_u32 s{S_T0}, s{S_T0}, s{S_T1}
            s_lshl_b32 s{S_T1}, s{S_W}, 13
            s_add_u32 s{S_T0}, s{S_T0}, s{S_T1}
            s_add_u32 s{S_T0}, s{S_T0}, {WS_OMG}
            v_and_b32 v{vT}, 31, v{vL}
            v_lshlrev_b32 v{vT}, 2, v{vT}""")
            e(f"buffer_load_dword v{vOm}, v{vT}, {sr(R_WS,4)}, s{S_T0} offen sc1")
        if s + DACT < 36: act_load(s + DACT)
        if s >= NREG and s + NRING < 36: g_dma(s + NRING)
    stamp("g_loop_end")
    vW = vR; red = ab; bb = FR
    e(f"v_add_u32 v{vW}, s{S_MG}, v{vL16}")
    for j in range(1, 4): e(f"v_xor_b32 v{vW+j}, {2048*j}, v{vW}")
    for gi in range(4):
        e(f"""v_lshlrev_b32 v{bb+4*gi}, 16, v{vB2+2*gi}
        v_and_b32 v{bb+4*gi+1}, 0xffff0000, v{vB2+2*gi}
        v_lshlrev_b32 v{bb+4*gi+2}, 16, v{vB2+2*gi+1}
        v_and_b32 v{bb+4*gi+3}, 0xffff0000, v{vB2+2*gi+1}""")
    for j in (2, 1, 3):
        for gi in range(4):
            e(f"ds_write_b128 v{vW}, {vr(acc+16*j+4*gi,4)} offset:{8192*(2*j+gi//2)+1024*(gi%2)}")
    fin = acc
    for i in range(16): e(f"v_fma_f32 v{fin+i}, v{vOm}, v{bb+i}, v{fin+i}")
    e(f"""s_lshr_b32 s{S_T0}, s{S_W}, 1
    s_lshl_b32 s{S_T0}, s{S_T0}, 5
    s_lshl_b32 s{S_T1}, s{S_R4}, 6
    s_add_u32 s{S_T0}, s{S_T0}, s{S_T1}
    s_lshl_b32 s{S_T0}, s{S_T0}, 10
    s_lshl_b32 s{S_T1}, s{S_C4}, 7
    s_add_u32 s{S_T0}, s{S_T0}, s{S_T1}
    s_and_b32 s{S_T1}, s{S_W}, 1
    s_lshl_b32 s{S_T1}, s{S_T1}, 6
    s_add_u32 s{S_T0}, s{S_T0}, s{S_T1}
    v_and_b32 v{vT}, 31, v{vL}
    v_lshlrev_b32 v{vT}, 10, v{vT}
    v_lshrrev_b32 v{vT+1}, 5, v{vL}
    v_lshl_add_u32 v{vT}, v{vT+1}, 4, v{vT}""")
    e.wait_all(vm=False)
    e("s_barrier")
    stamp("red_bar")
    tks = []
    for j in range(1, 4):
        for gi in range(4):
            tks.append(e(f"ds_read_b128 {vr(red+16*(j-1)+4*gi,4)}, v{vW+j} offset:{8192*(2*j+gi//2)+1024*(gi%2)}"))
    for j in range(3):
        for gi in range(4):
            e.wait(lg=tks[4*j+gi])
            for i in (4*gi, 4*gi+2): e(f"v_pk_add_f32 {vr(fin+i,2)}, {vr(fin+i,2)}, {vr(red+16*j+i,2)}")
    P = FR + 16
    for i in range(8): e(f"v_cvt_pk_bf16_f32 v{P+i}, v{fin+2*i}, v{fin+2*i+1}")
    e(f"""v_permlane32_swap_b32 v{P}, v{P+2}
    v_permlane32_swap_b32 v{P+1}, v{P+3}
    v_permlane32_swap_b32 v{P+4}, v{P+6}
    v_permlane32_swap_b32 v{P+5}, v{P+7}
    buffer_store_dwordx4 {vr(P,4)}, v{vT}, {sr(R_OUT,4)}, s{S_T0} offen{["", " sc1", " nt"][OPT['outsc']]}
    buffer_store_dwordx4 {vr(P+4,4)}, v{vT}, {sr(R_OUT,4)}, s{S_T0} offen offset:32{["", " sc1", " nt"][OPT['outsc']]}""")
    stamp_flush()
    e("s_endpgm")

def a_stream():
    vVo = v.alloc(1); vGa = v.alloc(1); vFl = v.alloc(1); vPM = v.alloc(8); a_mark = v.mark()
    S_SO, S_SC, S_KB, S_NV, S_HEAD, S_TQ = A_SO, A_SC, A_KB, A_NV, S_R4, S_C4
    Vv = 172
    dma_ops, dma_t = dma_setup(1)
    L1 = e.newlabel()
    e(f"s_cmp_lg_u32 s{S_W}, 4\ns_cbranch_scc1 {L1}\ns_mov_b32 m0, {L_GW}")
    opt_vm(f"global_load_lds_dwordx4 v{vL16}, {sr(P_GW,2)}")
    e(f"{L1}:")
    for f in dma_ops(0): f()
    stamp("r0_issued")
    srd(R_WS, P_WS, WS_SIZE)
    L1 = e.newlabel()
    q = e.lgq
    e(f"""s_cmp_lg_u32 s{S_W}, 5
    s_cbranch_scc1 {L1}
    v_mov_b32 v{vT}, 0x3f803f80
    v_mov_b32 v{vT+1}, 0x3f803f80
    v_lshlrev_b32 v{vT+2}, 3, v{vL}
    v_add_u32 v{vT+2}, {L_ONES}, v{vT+2}
    ds_write_b64 v{vT+2}, v[{vT}:{vT+1}]
    ds_write_b64 v{vT+2}, v[{vT}:{vT+1}] offset:512
    v_lshlrev_b32 v{vT+4}, 2, v{vL}
    v_add_u32 v{vT+4}, {L_CNT}, v{vT+4}
    ds_write_b32 v{vT+4}, v{vZ}
    s_waitcnt lgkmcnt(0)
    {L1}:""")
    e.lgq = q
    vXr, vG = xread_setup()
    stale_read(A_SQ, 0); stale_read(A_SOo, 2)
    vWq = v.alloc(2); vGw = v.alloc(2); vSw = v.alloc(1); vOw = v.alloc(1); vN = v.alloc(1)
    e(f"""v_mul_u32_u24 v{vT+4}, 192, v{vT+2}
    v_add_u32 v{vT+4}, v{vT+4}, v{vT+3}
    v_add_u32 v{vT+4}, {L_WQ}, v{vT+4}
    v_and_b32 v{vT+5}, 1, v{vG}
    v_lshlrev_b32 v{vT+5}, 5, v{vT+5}
    v_add_u32 v{vWq}, v{vT+4}, v{vT+5}
    v_sub_u32 v{vWq+1}, v{vT+4}, v{vT+5}
    v_and_b32 v{vT}, 1, v{vL}
    v_mul_u32_u24 v{vT}, {L_ONES-L_GW}, v{vT}
    v_lshlrev_b32 v{vT+1}, 4, v{vG}
    v_sub_u32 v{vT+1}, v{vT+1}, v{vT}
    v_add_u32 v{vGw}, {L_ONES}, v{vT+1}
    v_and_b32 v{vT}, 15, v{vL}
    s_lshl_b32 s{S_T0}, s{S_TG}, 5
    v_add_u32 v{vT+1}, s{S_T0}, v{vT}
    v_lshlrev_b32 v{vSw}, 4, v{vT+1}
    v_add_u32 v{vSw}, {L_STATS}, v{vSw}
    s_lshl_b32 s{S_T0}, s{S_RB}, 9
    s_add_u32 s{S_T0}, s{S_T0}, {WS_OMG}
    s_lshl_b32 s{S_T1}, s{S_CB}, 11
    s_add_u32 s{S_T0}, s{S_T0}, s{S_T1}
    s_and_b32 s{S_T1}, s{S_CB}, 3
    s_cselect_b32 s{S_T0}, {WS_SIZE}, s{S_T0}
    v_lshlrev_b32 v{vOw}, 2, v{vT+1}
    v_add_u32 v{vOw}, s{S_T0}, v{vOw}
    s_lshl_b32 s{S_T1}, s{S_RB}, 2
    s_add_u32 s{S_T1}, s{S_T1}, s{S_TG}
    s_lshl_b32 s{S_T0}, s{S_CB}, 8
    s_add_u32 s{S_T0}, s{S_T0}, s{S_T1}
    s_lshl_b32 s{S_SO}, s{S_T0}, 10
    s_lshl_b32 s{S_T0}, s{S_CB}, 7
    s_add_u32 s{S_T0}, s{S_T0}, s{S_T1}
    s_add_u32 s{S_T0}, s{S_T0}, 4096
    s_lshl_b32 s{S_SO+4}, s{S_T0}, 10
    s_add_u32 s{S_SO+5}, s{S_SO+4}, 65536
    s_cmp_lt_u32 s{S_CB}, 8
    s_cselect_b32 s{S_SC}, {QSCALE}, 1.0""")
    for j in range(1, 4): e(f"s_add_u32 s{S_SO+j}, s{S_SO}, {65536*j}")
    for r, m in ((S_C1, 0x22222222), (S_C2, 0x44444444), (S_C3, 0x88888888)):
        e(f"s_mov_b32 s{r}, {hex(m)}\ns_mov_b32 s{r+1}, {hex(m)}")
    aQ = v.alloc(48, 4); aGR = v.alloc(8, 4); aSM = v.alloc(8, 4)
    fm = v.mark()
    fX = [v.alloc(8, 4) for _ in range(2)]; fW = [v.alloc(24, 4) for _ in range(2)]; fG = [v.alloc(4, 4) for _ in range(2)]
    k_top = v.mark(); assert k_top <= Vv + 7
    e(f"""s_and_b32 s{S_T0}, s{S_TG}, 1
    s_lshl_b32 s{S_HEAD}, s{S_CB}, 1
    s_add_u32 s{S_HEAD}, s{S_HEAD}, s{S_T0}
    s_and_b32 s{S_T0}, s{S_TG}, 2
    s_lshl_b32 s{S_TQ}, s{S_RB}, 2
    s_add_u32 s{S_TQ}, s{S_TQ}, s{S_T0}""")
    for kind in range(3):
        if kind < 2: e(f"s_lshr_b32 s{S_T0}, s{S_CB}, 1\ns_lshl_b32 s{S_T0}, s{S_T0}, 8\ns_add_u32 s{S_T0}, s{S_T0}, {WS_FLG + 2048*kind}")
        else: e(f"s_lshl_b32 s{S_T0}, s{S_CB}, 8\ns_add_u32 s{S_T0}, s{S_T0}, {WS_FLG}")
        for d in range(1 if kind == 0 else 3):
            e(f"""s_sub_i32 s{S_T1}, s{S_RB}, {d}
            s_max_i32 s{S_T1}, s{S_T1}, 0
            s_lshl_b32 s{S_T1}, s{S_T1}, 12
            s_add_u32 s{A_FO[0 if kind == 0 else 1 + 3*(kind-1) + d]}, s{S_T1}, s{S_T0}""")
    e(f"""v_and_b32 v{vT}, 31, v{vL}
    s_and_b32 s{S_T0}, s{S_TG}, 2
    s_lshl_b32 s{S_T0}, s{S_T0}, 9
    s_add_u32 s{S_T0}, s{S_T0}, {L_STATS + 12}
    v_lshlrev_b32 v{vT+1}, 4, v{vT}
    v_add_u32 v{vGa}, s{S_T0}, v{vT+1}
    s_lshl_b32 s{S_T0}, s{S_TG}, 2
    s_add_u32 s{S_T0}, s{S_T0}, {L_CNT + 16}
    v_mov_b32 v{vFl}, s{S_T0}
    v_lshrrev_b32 v{vT+2}, 5, v{vL}
    v_lshlrev_b32 v{vT+3}, 2, v{vT+2}
    v_sub_u32 v{vT+3}, v{vT}, v{vT+3}""")
    for r in range(16):
        e(f"v_cmp_le_i32 s[{S_MASK+2*r}:{S_MASK+2*r+1}], {8*(r//4) + r%4}, v{vT+3}")
    e(f"v_mov_b32 v{vT+4}, 0xffff\nv_mov_b32 v{vT+5}, 0xffff0000")
    for i in range(8):
        e(f"""v_cndmask_b32 v{vPM+i}, 0, v{vT+4}, s[{S_MASK+4*i}:{S_MASK+4*i+1}]
        v_cndmask_b32 v{vVo}, 0, v{vT+5}, s[{S_MASK+4*i+2}:{S_MASK+4*i+3}]
        v_or_b32 v{vPM+i}, v{vPM+i}, v{vVo}""")
    e(f"""v_and_b32 v{vVo}, 15, v{vL}
    v_lshl_add_u32 v{vVo}, v{vT+2}, 4, v{vVo}
    v_lshlrev_b32 v{vVo}, 4, v{vVo}
    s_lshl_b32 s{S_KB}, s{S_HEAD}, 6
    s_add_u32 s{S_KB}, s{S_KB}, s{S_TQ}
    s_lshl_b32 s{S_KB}, s{S_KB}, 10
    s_sub_i32 s{S_NV}, 8, s{S_TQ}
    s_max_i32 s{S_NV}, s{S_NV}, 0""")
    for i in range(10):
        e(f"s_cmp_gt_u32 s{S_NV}, {i}\ns_cselect_b32 s{S_T0}, 0, 0x3f803f80\nv_mov_b32 v{Vv+8*i+7}, s{S_T0}")
        for k in range(7):
            if Vv+8*i+k >= k_top: e(f"v_mov_b32 v{Vv+8*i+k}, v{Vv+8*i+7}")
    def reads(ks):
        c, kk = divmod(ks, 2); s = c % 3; b = ks % 2
        R = [("x0", f"ds_read_b128 {vr(fX[b],4)}, v{vXr+kk} offset:{L_X+16384*s}"),
             ("x1", f"ds_read_b128 {vr(fX[b]+4,4)}, v{vXr+kk} offset:{L_X+16384*s+2048}")]
        pre = f"s_add_u32 s{S_KG}, s{S_KO}, {128*c}\ns_and_b32 s{S_KG}, s{S_KG}, 1023\nv_add_u32 v{vGw+1}, s{S_KG}, v{vGw}\n" if kk == 0 else ""
        R.append(("g", pre + f"ds_read_b128 {vr(fG[b],4)}, v{vGw+1} offset:{64*kk}"))
        for t in range(6):
            for h2 in range(2):
                R.append((f"w{t}", f"ds_read_b64_tr_b16 {vr(fW[b]+4*t+2*h2,2)}, v{vWq+(t&1)} offset:{16384*s+6144*kk+3072*h2+32*t}"))
        return R
    def mfmas(ks):
        b = ks % 2; c0 = (lambda r: "0") if ks == 0 else (lambda r: vr(r, 4))
        M = []
        for f in range(2): M.append(((f"x{f}",), f"{MF16} {vr(aGR+4*f,4)}, {vr(fX[b]+4*f,4)}, {vr(fX[b]+4*f,4)}, {c0(aGR+4*f)}"))
        for f in range(2): M.append((("g",), f"{MF16} {vr(aSM+4*f,4)}, {vr(fG[b],4)}, {vr(fX[b]+4*f,4)}, {c0(aSM+4*f)}"))
        for t in range(6):
            for f in range(2):
                acc = aQ + 8*t + 4*f
                opA, opB = vr(fW[b]+4*t,4), vr(fX[b]+4*f,4)
                if t >= 4: opA, opB = opB, opA
                M.append(((f"w{t}",), f"{MF16} {vr(acc,4)}, {opA}, {opB}, {c0(acc)}"))
        return M
    if OPT['kprio']: e("s_setprio 1")
    tN = []
    def head(c):
        if c == 6: tN.append(e(f"global_load_dword v{vN}, v{vZ}, {sr(P_DBG,2)} sc1"))
    kloop(reads, mfmas, dma_ops, dma_t, lambda c: [], head, lambda c: None)
    v.release(fm)
    w = [v.alloc(8, 4) for _ in range(2)]
    seq = [
     "v_cndmask_b32 v{w4}, v{G0}, v{G1}, s[%d:%d]" % (S_C1, S_C1+1),
     "v_mul_f32 v{w6}, %d, v{S1}" % f2u(LOG2E),
     "v_cndmask_b32 v{w4}, v{w4}, v{G2}, s[%d:%d]" % (S_C2, S_C2+1),
     "v_mul_f32 v{w5}, %d, v{S0}" % f2u(1.0/512),
     "v_cndmask_b32 v{w4}, v{w4}, v{G3}, s[%d:%d]" % (S_C3, S_C3+1),
     "v_exp_f32 v{w2}, v{w6}",
     "v_mul_f32 v{w4}, %d, v{w4}" % f2u(1.0/512),
     "v_exp_f32 v{w3}, -v{w6}",
     "v_fma_f32 v{w4}, -v{w5}, v{w5}, v{w4}",
     "v_add_f32 v{w2}, 1.0, v{w2}",
     "v_max_f32 v{w4}, 0, v{w4}",
     "v_add_f32 v{w3}, 1.0, v{w3}",
     "v_add_f32 v{w4}, %d, v{w4}" % f2u(1e-5),
     "v_min_f32 v{w2}, %d, v{w2}" % f2u(1e30),
     "v_rsq_f32 v{w0}, v{w4}",
     "v_rcp_f32 v{w3}, v{w3}",
     "v_mul_f32 v{w1}, -v{w5}, v{w0}",
    ]
    for ln in seq:
        for f in range(2):
            d = {f"w{i}": w[f]+i for i in range(8)}
            d.update({f"G{i}": aGR+4*f+i for i in range(4)}); d.update(S0=aSM+4*f, S1=aSM+4*f+1)
            e(ln.format(**d))
    e(f"""s_mov_b32 exec_lo, 0x00f0000f
    s_mov_b32 exec_hi, 0xf0000f00
    ds_write_b128 v{vSw}, {vr(w[0],4)}
    ds_write_b128 v{vSw}, {vr(w[1],4)} offset:256
    v_rcp_f32 v{w[0]+7}, v{w[0]+2}
    v_rcp_f32 v{w[1]+7}, v{w[1]+2}""")
    if not OPT['qfirst']:
        e.wait_all(vm=False)
        e("s_barrier")
    e(f"buffer_store_dword v{w[0]+7}, v{vOw}, {sr(R_WS,4)}, 0 offen sc1")
    e(f"buffer_store_dword v{w[1]+7}, v{vOw}, {sr(R_WS,4)}, 0 offen offset:64 sc1")
    e("s_mov_b64 exec, -1")
    if not OPT['qfirst']: stamp("xchg_bar")
    if OPT['aprio']: e("s_setprio 2")
    pk = v.alloc(24, 4)
    def pack(j):
        A = aQ + 8*j; P = pk + 4*j
        if j < 4:
            if OPT['qfirst']:
                for i in range(8): e(f"v_mul_f32 v{A+i}, s{S_SC}, v{A+i}")
            else:
                for p in range(4): e(f"v_pk_mul_f32 {vr(A+2*p,2)}, {vr(A+2*p,2)}, s[{S_SC}:{S_SC+1}] op_sel_hi:[1,0]")
        for i in range(4): e(f"v_cvt_pk_bf16_f32 v{P+i}, v{A+2*i}, v{A+2*i+1}")
    def swap(j):
        P = pk + 4*j; n = 16 if j < 4 else 32
        e(f"v_permlane{n}_swap_b32 v{P}, v{P+2}\nv_permlane{n}_swap_b32 v{P+1}, v{P+3}")
    def store(j): return e(f"buffer_store_dwordx4 {vr(pk+4*j,4)}, v{vL16}, {sr(R_WS,4)}, s{S_SO+j} offen sc1")
    for j in range(6):
        pack(j)
        if j > 0: swap(j-1); store(j-1)
    swap(5); tq = store(5)
    stamp("qkv_issued")
    if OPT['qfirst']:
        e.wait_all(vm=False)
        e("s_barrier")
        stamp("xchg_bar")
    v.release(a_mark)
    vFt = v.alloc(1); vGt = v.alloc(2); vM = v.alloc(2)
    e.wait(vm=tN[0])
    get_nonce(vN)
    K = v.alloc(40, 4); Q = v.alloc(8, 4)
    D = [v.alloc(16, 4) for _ in range(2)]; Mg = v.alloc(16, 4); C = v.alloc(16, 4); O = v.alloc(16, 4)
    Pb = [v.alloc(8, 4) for _ in range(2)]
    assert v.mark() <= Vv
    v.alloc(Vv + 80 - v.mark())
    e(f"ds_read_b32 v{vGt}, v{vGa}\nds_read_b32 v{vGt+1}, v{vGa} offset:512")
    for r in range(Vv, k_top): e(f"v_mov_b32 v{r}, v{Vv+7}")
    e(f"v_mov_b32 v{vT+5}, 1")
    e.wait(vm=tq)
    publish(A_SQ, 0)
    if OPT['aprio']: e("s_setprio 0")
    stamp("pub_qkv")
    e(f"v_mov_b32 v{vT+4}, {L_CNT + 32}\ns_cmp_lg_u32 s{S_W}, 4\ns_cbranch_scc1 L_a_np")
    poll([f"s{r}" for r in A_FO], A_FD, P_WS)
    e(f"ds_write_b32 v{vT+4}, v{vT+5}")
    e("L_a_np:")
    lds_wait(vT+4, vFt)
    stamp("qkv_seen")
    if OPT['aprio']: e("s_setprio 2")
    def guard(i):
        if i >= 8: return lambda: None
        L = e.newlabel("L_sk")
        e.flush_haz()
        e(f"s_cmp_gt_u32 s{S_NV}, {i}\ns_cbranch_scc1 {L}")
        def close():
            e.flush_haz(); e(f"{L}:")
        return close
    kt = {}; vt = {}; qt = {}
    KV = ' sc1' if OPT['kvsc'] else ''
    def off(base, i):
        e(f"s_add_u32 s{S_T0}, s{S_KB}, {(base*64 - 8 + i)*1024}")
        if i < 8: e(f"s_cmp_gt_u32 s{S_NV}, {i}\ns_cselect_b32 s{S_T0}, {WS_SIZE}, s{S_T0}")
    def ldq(u): qt[u] = e(f"buffer_load_dwordx4 {vr(Q+4*u,4)}, v{vL16}, {sr(R_WS,4)}, s{S_KB} offen offset:{1024*u}{KV}")
    def ldk(i):
        off(32, i)
        kt[i] = e(f"buffer_load_dwordx4 {vr(K+4*i,4)}, v{vL16}, {sr(R_WS,4)}, s{S_T0} offen{KV}")
    def ldv(i):
        off(64, i)
        e(f"s_mov_b32 exec_lo, 0xffff\ns_mov_b32 exec_hi, 0xffff")
        e(f"buffer_load_dwordx4 {vr(Vv+8*i,4)}, v{vVo}, {sr(R_WS,4)}, s{S_T0} offen{KV}")
        vt[i] = e(f"buffer_load_dwordx4 {vr(Vv+8*i+4,4)}, v{vVo}, {sr(R_WS,4)}, s{S_T0} offen offset:512{KV}")
        e("s_mov_b64 exec, -1")
    LD = [(ldq,0),(ldk,8),(ldk,0),(ldk,1),(ldk,2),(ldv,0),(ldv,8),(ldk,3),(ldv,1),(ldk,4),(ldv,2),(ldk,5),(ldv,3),(ldk,6),(ldv,4),(ldk,7),(ldv,5),(ldv,6),(ldq,1),(ldk,9),(ldv,7),(ldv,9)]
    def ld_more(n):
        for _ in range(n):
            if LD:
                f, i = LD.pop(0); f(i)
                if not LD: e(f"ds_write_b32 v{vFl}, v{vT+5}")
    def finalize(u, P):
        e(f"v_rcp_f32 v{vM}, v{O+8}\nv_mul_f32 v{vM}, v{vM}, v{vGt+u}")
        for r in range(8): e(f"v_mul_f32 v{O+r}, v{O+r}, v{vM}")
        for k in range(4): e(f"v_cvt_pk_bf16_f32 v{P+k}, v{O+2*k}, v{O+2*k+1}")
    def o_store(u, P):
        e(f"""s_add_u32 s{S_T0}, s{S_TQ}, {u}
        s_mul_i32 s{S_T0}, s{S_T0}, 144
        s_add_u32 s{S_T0}, s{S_T0}, s{S_HEAD}
        s_add_u32 s{S_T0}, s{S_T0}, 112
        s_lshl_b32 s{S_T0}, s{S_T0}, 10
        s_add_u32 s{S_T0}, s{S_T0}, {WS_ACT}""")
        e(f"buffer_store_dwordx4 {vr(P,4)}, v{vL16}, {sr(R_WS,4)}, s{S_T0} offen sc1")
    def merged_tail():
        for r in range(16):
            e(f"v_exp_f32 v{Mg+r}, v{Mg+r}")
            if r % 4 == 3: ld_more(1)
        for i in range(8): e(f"v_cvt_pk_bf16_f32 v{Mg+i}, v{Mg+2*i}, v{Mg+2*i+1}")
        for i in range(8): e(f"v_and_b32 v{Mg+8+i}, v{Mg+i}, v{vPM+i}")
        for i in range(8): e(f"v_xor_b32 v{Mg+i}, v{Mg+i}, v{Mg+8+i}")
    ld_more(OPT['nld0'] if OPT['fast'] else 99)
    e.wait(lg=e.lgq)
    if OPT['fast']:
        for u in range(2):
            q = vr(Q+4*u, 4); first = [True]
            def qk(i, dst):
                while i not in kt: ld_more(1)
                e.wait(vm=max(kt[i], qt[u]))
                e(f"{MF32} {vr(dst,16)}, {vr(K+4*i,4)}, {q}, 0")
            def pv1(i, P, sidx):
                while i not in vt: ld_more(1)
                e.wait(vm=vt[i])
                e(f"{MF32} {vr(O,16)}, {vr(Vv+8*i+4*sidx,4)}, {vr(P+4*sidx,4)}, {'0' if first[0] else vr(O,16)}")
                first[0] = False
            far, diag = u, u + 8; mids = list(range(u+1, u+8))
            if u == 0:
                qk(diag, D[1]); qk(far, Mg)
            qk(mids[0], D[0])
            for r in range(16):
                e(f"v_cndmask_b32 v{Mg+r}, v{Mg+r}, v{D[1]+r}, s[{S_MASK+2*r}:{S_MASK+2*r+1}]")
            merged_tail()
            fstamp(f"mg{u}")
            pend = [(far, Mg, 0), (far, Mg, 1), (diag, Mg+8, 0), (diag, Mg+8, 1)]
            for n, i in enumerate(mids):
                b = D[n % 2]; P = Pb[n % 2]; mf = []
                if n + 1 < 7: mf.append(lambda n=n: qk(mids[n+1], D[(n+1) % 2]))
                take = 3 if len(pend) > 2 else len(pend)
                for x in pend[:take]: mf.append(lambda x=x: pv1(*x))
                pend = pend[take:]
                if n == 6 and u == 0:
                    def nxt(i2, dst):
                        e.wait(vm=max(kt[i2], qt[1]))
                        e(f"{MF32} {vr(dst,16)}, {vr(K+4*i2,4)}, {vr(Q+4,4)}, 0")
                    mf += [lambda: nxt(9, D[1]), lambda: nxt(1, Mg)]
                slots = {4*k: f for k, f in enumerate(mf)}
                for r in range(16):
                    if r in slots: slots[r]()
                    e(f"v_exp_f32 v{b+r}, v{b+r}")
                    if r % 4 == 2: ld_more(1)
                for k in range(8):
                    e(f"v_cvt_pk_bf16_f32 v{P+k}, v{b+2*k}, v{b+2*k+1}")
                    if n == 6 and k == 5: pv1(i, P, 0)
                pend += [(i, P, 0), (i, P, 1)] if n < 6 else [(i, P, 1)]
            for x in pend: pv1(*x)
            assert not LD
            lo, hi = (2.0**-64, 2.0**64) if not OPT['forcefb'] else (2.0**60, 2.0**64)
            e(f"""v_cmp_gt_f32 vcc, {f2u(lo)}, v{O+8}
            s_mov_b64 s[60:61], vcc
            v_cmp_nge_f32 vcc, {f2u(hi)}, v{O+8}
            s_or_b64 vcc, vcc, s[60:61]
            s_cbranch_vccnz L_att_gen""")
            if u == 1: o_store(0, C)
            finalize(u, C + 4*u)
            if u == 1: o_store(1, C + 4)
            stamp(f"unit{u}")
    else:
        e("s_branch L_att_gen")
    e("L_att_pub:")
    e.wait_all(lg=False)
    publish(A_SOo, 2)
    stamp_flush()
    e("s_endpgm")
    e("L_att_gen:")
    e("s_nop 15")
    e.wait_all()
    for u in range(2):
        q = vr(Q+4*u, 4); first = [True]
        def qk(i, dst, c): e(f"{MF32} {vr(dst,16)}, {vr(K+4*i,4)}, {q}, {c}")
        def pv(i, P):
            for s in range(2):
                e(f"{MF32} {vr(O,16)}, {vr(Vv+8*i+4*s,4)}, {vr(P+4*s,4)}, {'0' if first[0] else vr(O,16)}")
                first[0] = False
        far, diag = u, u + 8; mids = list(range(u+1, u+8))
        qk(diag, D[0], "0")
        for r in range(16): e(f"v_mov_b32 v{D[1]+r}, 0xff800000")
        cl = guard(far); qk(far, D[1], "0"); cl()
        for r in range(16):
            e(f"v_cndmask_b32 v{Mg+r}, v{D[1]+r}, v{D[0]+r}, s[{S_MASK+2*r}:{S_MASK+2*r+1}]")
        e(f"v_max_f32 v{vM}, v{Mg}, v{Mg+1}\nv_max_f32 v{vM+1}, v{Mg+2}, v{Mg+3}")
        for r in range(4, 16, 4):
            e(f"v_max3_f32 v{vM}, v{vM}, v{Mg+r}, v{Mg+r+1}\nv_max3_f32 v{vM+1}, v{vM+1}, v{Mg+r+2}, v{Mg+r+3}")
        for n, i in enumerate(mids):
            b = D[n % 2]
            cl = guard(i)
            qk(i, b, "0")
            for r in range(0, 16, 4):
                e(f"v_max3_f32 v{vM}, v{vM}, v{b+r}, v{b+r+1}\nv_max3_f32 v{vM+1}, v{vM+1}, v{b+r+2}, v{b+r+3}")
            cl()
        e(f"""v_max_f32 v{vM}, v{vM}, v{vM+1}
        v_mov_b32 v{vM+1}, v{vM}
        v_permlane32_swap_b32 v{vM}, v{vM+1}
        v_max_f32 v{vM}, v{vM}, v{vM+1}""")
        for r in range(16): e(f"v_sub_f32 v{C+r}, 0, v{vM}")
        for r in range(16): e(f"v_add_f32 v{Mg+r}, v{Mg+r}, v{C}")
        merged_tail()
        pv(diag, Mg+8)
        cl = guard(far); pv(far, Mg); cl()
        for n, i in enumerate(mids):
            b = D[n % 2]; P = Pb[n % 2]
            cl = guard(i)
            qk(i, b, vr(C, 16))
            for r in range(16): e(f"v_exp_f32 v{b+r}, v{b+r}")
            for k in range(8): e(f"v_cvt_pk_bf16_f32 v{P+k}, v{b+2*k}, v{b+2*k+1}")
            pv(i, P)
            cl()
        finalize(u, C); o_store(u, C)
    e("s_branch L_att_pub")

g_stream()
e.restore(common_state); v.release(common_mark)
e("L_streamA:")
cur_stream[0] = "A"
a_stream()
body = e.text() + "".join("\n".join((l if l.strip().endswith(":") else "    " + l.strip()).rstrip() if not l.strip().endswith(":") else l.strip() for l in t.split("\n") if l.strip()) + "\n" for t in tail) + "L_end:\n    s_endpgm\n"

hdr = open("gated_mix__sliding_block__mixer_channel_mlp__prompt.s.ref").read().split("; Override launch")[0]
txt = hdr + f"""; Generated by my own generator script (single persistent launch; hand-off flags in d_ws carry a per-launch nonce).
; @launch grid=(256,1,1) block=(512,1,1) lds=163840
.amdgcn_target "amdgcn-amd-amdhsa--gfx950"
.text
.globl {NAME}
.p2align 8
.type {NAME},@function
{NAME}:
""" + body + f""".section .rodata,"a"
.p2align 6
.amdhsa_kernel {NAME}
  .amdhsa_next_free_vgpr 256
  .amdhsa_next_free_sgpr 102
  .amdhsa_accum_offset 256
  .amdhsa_group_segment_fixed_size 0
  .amdhsa_kernarg_size 96
  .amdhsa_user_sgpr_count 2
  .amdhsa_user_sgpr_kernarg_segment_ptr 1
  .amdhsa_system_sgpr_workgroup_id_x 1
.end_amdhsa_kernel
"""
out = sys.argv[1]
open(out, "w").write(txt)
if STAMP:
    import json; json.dump(stamp_names, open(out + ".names.json", "w"))
print("vgpr high water", v.hw, "nops", e.nops, "lines", txt.count("\n"), file=sys.stderr)
```

```python
import sys, math, struct
from emit import *

NAME = "gated_mix__sliding_block__mixer_channel_mlp__prompt_kernel"
STAMP = "--stamp" in sys.argv
ECHO = [a.split("=")[1] for a in sys.argv if a.startswith("--echo=")]
ECHO = ECHO[0] if ECHO else None
OPT = dict(rot=2, nreg=9, codepf=1, aprio=1, sleep=2, fine=0, npro=3, krot=3, n5=6, n6=6, wopf=0, fast=1, forcefb=0, gp=1, pf2=3, pfrot=1, kprio=1, nld0=22, qfirst=1, ntl=1, pf0=0, hsplit=1, aload=0, await_=1, outsc=0, nearly=6, kvsc=1, nt0=0, apoll=1, fullout=1, hearly=1)
for a in sys.argv:
    if a.startswith("--o:"):
        k, vv = a[4:].split("="); assert k in OPT, k; OPT[k] = int(vv)

def f2u(x): return struct.unpack("<I", struct.pack("<f", x))[0]
LOG2E = 1.4426950408889634
QSCALE = f2u(0.25 * LOG2E)
GC0 = -2.0 * math.sqrt(2.0 / math.pi) * LOG2E
GC1 = GC0 * 0.044715

WS_QKV = 0
WS_ACT = 8 << 20
WS_OMG = 20 << 20
WS_FLG = 21 << 20
WS_DBG = 24 << 20
WS_SIZE = 32 << 20
L_X, L_WQ, L_WH, L_MISC = 0, 49152, 98304, 147456
L_GW = L_MISC; L_ONES = L_MISC + 1152; L_STATS = L_MISC + 2304; L_CS = L_MISC + 4352; L_CNT = L_MISC + 4864
L_VSCR = L_MISC + 8192
RING = [4, 5, 10, 11, 16, 17, 0, 1, 6, 7, 12, 13, 2, 3, 8, 9, 14, 15]
NRING = 18
DACT = 8
SPIN = 200000

S_FO = 3
P_X, P_WQKV, P_WO, P_W1, P_B1, P_W2, P_B2, P_GW, P_OUT, P_DBG, P_WS = 4, 6, 8, 12, 14, 16, 18, 20, 22, 24, 26
S_ST = 10
R_X, R_WA, R_WS, R_W2, R_WO, R_OUT = 28, 32, 36, 40, 44, 88
S_SH, S_MH, S_PG = 71, 72, 73
S_W, S_TG, S_RB, S_CB, S_R4, S_C4, S_NONCE = 52, 53, 54, 55, 56, 57, 58
S_T0, S_T1, S_T2, S_T3, S_T4 = 59, 60, 61, 62, 63
S_MASK = 64
S_SO = 64
S_SC = 70
S_VM = 76
S_C1, S_C2, S_C3 = 12, 14, 16
A_SO, A_SC, A_KB, A_NV = 40, 46, 47, 98
A_FO = [4, 5, 6, 7, 8, 9, 18]; A_FD = [19, 22, 23, 60, 61, 62, 63]; A_SQ, A_SOo = 100, 101
G_FB, G_FD, G_SH = 74, [92, 93, 94, 95], 87
S_GW, S_GA, S_OFFO = 84, 85, 86
S_SX, S_SW, S_KO, S_KG = 48, 49, 50, 51
S_MX, S_MW, S_MG = 96, 97, 98
S_SPIN = 99
S_EX = 100

e = Em()
stamp_names = {}
cur_stream = ["G"]
def stamp(name, real=False):
    if ECHO == name and cur_stream[0] == "G": e("s_memtime s[78:79]")
    if not STAMP: return
    d = stamp_names.setdefault(cur_stream[0], [])
    if name in d: idx = d.index(name)
    else: d.append(name); idx = len(d) - 1
    assert idx < 64
    e(f"""{'s_memrealtime' if real else 's_memtime'} s[{S_ST}:{S_ST+1}]
    s_waitcnt lgkmcnt(0)
    v_writelane_b32 v255, s{S_ST}, {idx}""")
    e.lg_done = e.lgq
def fstamp(name):
    if OPT['fine']: stamp(name)
def stamp_flush():
    if ECHO and cur_stream[0] == "G":
        stamp("end")
        L = e.newlabel("L_echo")
        e(f"""s_memtime s[80:81]
        s_waitcnt lgkmcnt(0)
        s_sub_u32 s78, s78, s76
        s_min_u32 s78, s78, 400000
        {L}:
        s_memtime s[82:83]
        s_waitcnt lgkmcnt(0)
        s_sub_u32 s82, s82, s80
        s_cmp_lt_u32 s82, s78
        s_cbranch_scc1 {L}""")
    if not STAMP: return
    stamp("end"); stamp("rt_end", True)
    e(f"""s_lshl_b32 s{S_ST}, s2, 3
    s_add_u32 s{S_ST}, s{S_ST}, s{S_W}
    s_lshl_b32 s{S_ST}, s{S_ST}, 8
    s_add_u32 s{S_ST}, s{S_ST}, {WS_DBG}
    v_lshlrev_b32 v254, 2, v{vL}
    buffer_store_dword v255, v254, {sr(R_WS,4)}, s{S_ST} offen""")

def srd(r, p, size):
    e(f"""s_mov_b32 s{r}, s{p}
    s_mov_b32 s{r+1}, s{p+1}
    s_mov_b32 s{r+2}, {size}
    s_mov_b32 s{r+3}, 0x20000""")

def opt_vm(text):
    q = e.vmq; e(text); e.vmq = q

def get_nonce(vN):
    Ln = e.newlabel("L_n"); Lk = e.newlabel("L_nk")
    st = e.state()
    e(f"""v_readfirstlane_b32 s{S_NONCE}, v{vN}
    s_mov_b32 s{S_SPIN}, {SPIN}
    s_cmp_lg_u32 s{S_NONCE}, 0
    s_cbranch_scc0 {Ln}
    {Lk}:""")
    tail.append(f"""{Ln}:
    global_load_dword v{vN}, v{vZ}, {sr(P_DBG,2)} sc1
    s_waitcnt vmcnt(0)
    v_readfirstlane_b32 s{S_NONCE}, v{vN}
    s_sub_u32 s{S_SPIN}, s{S_SPIN}, 1
    s_cmp_eq_u32 s{S_SPIN}, 0
    s_cbranch_scc1 {Lk}
    s_cmp_lg_u32 s{S_NONCE}, 0
    s_cbranch_scc1 {Lk}
    s_branch {Ln}""")
tail = []

def stale_read(sdst, stage):
    e(f"s_add_u32 s{S_T0}, s{S_FO}, {stage*65536}\ns_mov_b32 s{sdst}, 0")
    e(f"s_atomic_add s{sdst}, {sr(P_WS,2)}, s{S_T0} glc")
def publish(sstale, stage):
    e(f"""s_sub_u32 s{S_T1}, s{S_NONCE}, s{sstale}
    s_sub_u32 s{S_T1}, s{S_T1}, 3
    s_cmp_eq_u32 s{S_TG}, 0
    s_cselect_b32 s{sstale}, s{S_T1}, 1
    s_add_u32 s{S_T0}, s{S_FO}, {stage*65536}
    s_atomic_add s{sstale}, {sr(P_WS,2)}, s{S_T0}""")
def flag_read(offs, dsts, base):
    return "\n".join(f"s_mov_b32 s{d}, 0\ns_atomic_add s{d}, {sr(base,2)}, {o} glc" for o, d in zip(offs, dsts))
def flag_test(dsts):
    t = [f"s_xor_b32 s{d}, s{d}, s{S_NONCE}" for d in dsts] + [f"s_or_b32 s{dsts[0]}, s{dsts[0]}, s{d}" for d in dsts[1:]]
    return "\n".join(t)
def poll(offs, dsts, base, issued=False):
    L = e.newlabel("L_poll"); Lo = e.newlabel("L_pout")
    if not issued: e(flag_read(offs, dsts, base))
    e(f"s_mov_b32 s{S_SPIN}, {SPIN}")
    e.wait_all(vm=False)
    e(flag_test(dsts))
    e(f"s_cbranch_scc1 {L}\n{Lo}:")
    tail.append(f"""{L}:
    {('s_sleep %d' % OPT['sleep']) if OPT['sleep'] else ''}
    {flag_read(offs, dsts, base)}
    s_sub_u32 s{S_SPIN}, s{S_SPIN}, 1
    s_waitcnt lgkmcnt(0)
    s_cbranch_scc1 {Lo}
    {flag_test(dsts)}
    s_cbranch_scc1 {L}
    s_branch {Lo}""")
def lds_wait(vaddr, vtmp):
    Lw = e.newlabel("L_lw")
    e(f"""s_mov_b32 s{S_SPIN}, {SPIN*8}
    {Lw}:
    s_sleep 2
    ds_read_b32 v{vtmp}, v{vaddr}
    s_sub_u32 s{S_SPIN}, s{S_SPIN}, 1""")
    e.wait_all(vm=False)
    e(f"""v_readfirstlane_b32 s{S_T0}, v{vtmp}
    s_cselect_b32 s{S_T0}, 1, s{S_T0}
    s_cmp_eq_u32 s{S_T0}, 0
    s_cbranch_scc1 {Lw}""")

v = Regs(1, 254 if STAMP else 256)
vL = v.alloc(); vL16 = v.alloc(); vZ = v.alloc()
vT = v.alloc(6, 2)
common_mark = v.mark()
vPF = 0
if ECHO: e("s_memtime s[76:77]")
e(f"""s_cmp_ge_u32 s2, 256
s_cbranch_scc1 L_end
s_load_dwordx16 s[4:19], s[0:1], 0
s_load_dwordx8 s[20:27], s[0:1], 64
v_lshrrev_b32 v{vT}, 6, v0
v_and_b32 v{vL}, 63, v0
v_readfirstlane_b32 s{S_W}, v{vT}
v_lshlrev_b32 v{vL16}, 4, v{vL}
v_mov_b32 v{vZ}, 0
s_and_b32 s{S_T0}, s2, 1
s_lshl_b32 s{S_T0}, s{S_T0}, 3
s_lshr_b32 s{S_T1}, s2, 3
s_and_b32 s{S_T2}, s{S_T1}, 7
s_add_u32 s{S_RB}, s{S_T0}, s{S_T2}
s_lshr_b32 s{S_T0}, s2, 1
s_and_b32 s{S_T0}, s{S_T0}, 3
s_lshl_b32 s{S_T0}, s{S_T0}, 2
s_lshr_b32 s{S_T2}, s2, 6
s_add_u32 s{S_CB}, s{S_T0}, s{S_T2}
s_and_b32 s{S_TG}, s{S_W}, 3
""")
if OPT['codepf']:
    e(f"""s_cmp_lg_u32 s{S_W}, 7
    s_cbranch_scc1 L_nocpf
    s_getpc_b64 s[{S_EX}:{S_EX+1}]
    L_pc:
    v_and_b32 v{vT}, 15, v{vL}
    s_lshl_b32 s{S_T0}, s{S_T1}, 4
    v_add_u32 v{vT}, s{S_T0}, v{vT}
    v_lshlrev_b32 v{vT}, 7, v{vT}
    v_min_u32 v{vT}, L_end-L_pc, v{vT}""")
    opt_vm(f"global_load_dword v{vPF}, v{vT}, s[{S_EX}:{S_EX+1}]")
    e("L_nocpf:")
KROT = {0: f"s_mov_b32 s{S_KO}, 0",
        2: f"s_add_u32 s{S_KO}, s{S_RB}, s{S_CB}\ns_and_b32 s{S_KO}, s{S_KO}, 3\ns_lshl_b32 s{S_KO}, s{S_KO}, 8\ns_lshr_b32 s{S_T0}, s2, 1\ns_xor_b32 s{S_T0}, s{S_T0}, s2\ns_and_b32 s{S_T0}, s{S_T0}, 1\ns_lshl_b32 s{S_T0}, s{S_T0}, 7\ns_add_u32 s{S_KO}, s{S_KO}, s{S_T0}",
        3: f"s_lshl_b32 s{S_KO}, s{S_CB}, 1\ns_add_u32 s{S_KO}, s{S_KO}, s{S_RB}\ns_and_b32 s{S_KO}, s{S_KO}, 7\ns_lshl_b32 s{S_KO}, s{S_KO}, 7",
        5: f"s_lshl_b32 s{S_KO}, s{S_CB}, 1\ns_add_u32 s{S_KO}, s{S_KO}, s{S_RB}\ns_lshr_b32 s{S_T0}, s{S_CB}, 2\ns_and_b32 s{S_T0}, s{S_T0}, 1\ns_add_u32 s{S_KO}, s{S_KO}, s{S_T0}\ns_and_b32 s{S_KO}, s{S_KO}, 7\ns_lshl_b32 s{S_KO}, s{S_KO}, 7",
        }[OPT['krot']]
e(f"""{KROT}
s_cmp_ge_u32 s{S_W}, 4
s_cbranch_scc1 L_streamA
""")
common_state = e.state()

def kperm_code(vrho, vk, vt):
    e(f"""v_and_b32 v{vk}, 0x23, v{vrho}
    v_lshrrev_b32 v{vt}, 2, v{vrho}
    v_and_b32 v{vt}, 3, v{vt}
    v_lshl_add_u32 v{vk}, v{vt}, 3, v{vk}
    v_lshrrev_b32 v{vt}, 4, v{vrho}
    v_and_b32 v{vt}, 1, v{vt}
    v_lshl_add_u32 v{vk}, v{vt}, 2, v{vk}""")

def dma_setup(fh):
    NW = 3 if fh == 0 else 4
    vXs = v.alloc(2); vWs = v.alloc(NW)
    e(f"""s_lshl_b32 s{S_T0}, s{S_RB}, 7
    s_lshl_b32 s{S_T1}, s{S_W}, 4
    s_add_u32 s{S_T0}, s{S_T0}, s{S_T1}
    v_lshrrev_b32 v{vT}, 3, v{vL}
    v_add_u32 v{vT}, s{S_T0}, v{vT}
    v_lshlrev_b32 v{vT}, 10, v{vT}
    v_lshrrev_b32 v{vT+1}, 4, v{vL}
    v_and_b32 v{vT+2}, 7, v{vL}
    v_xor_b32 v{vT+2}, v{vT+2}, v{vT+1}
    v_lshlrev_b32 v{vT+2}, 4, v{vT+2}
    v_add_u32 v{vXs}, v{vT}, v{vT+2}
    v_xor_b32 v{vT+2}, 64, v{vT+2}
    v_add_u32 v{vXs+1}, v{vT}, v{vT+2}
    v_add_u32 v{vXs+1}, 7168, v{vXs+1}
    s_lshl_b32 s{S_MX}, s{S_W}, 11""")
    for j in range(NW):
        if fh == 0:
            e(f"""s_mul_i32 s{S_T0}, s{S_TG}, 192
            s_add_u32 s{S_T0}, s{S_T0}, {64*j}
            v_add_u32 v{vT}, s{S_T0}, v{vL}
            v_mul_u32_u24 v{vT+1}, 43691, v{vT}
            v_lshrrev_b32 v{vT+1}, 19, v{vT+1}
            v_mul_u32_u24 v{vT+2}, 12, v{vT+1}
            v_sub_u32 v{vT+2}, v{vT}, v{vT+2}""")
            kperm_code(vT+1, vT+3, vT+4)
            e(f"""v_lshrrev_b32 v{vT+4}, 1, v{vT+1}
            v_and_b32 v{vT+4}, 2, v{vT+4}
            v_xor_b32 v{vT+2}, v{vT+2}, v{vT+4}
            v_mul_u32_u24 v{vT+3}, 3072, v{vT+3}
            v_lshl_add_u32 v{vT+3}, v{vT+2}, 4, v{vT+3}
            v_lshrrev_b32 v{vT+4}, 3, v{vT+2}
            s_lshl_b32 s{S_T1}, s{S_CB}, 6
            s_sub_u32 s{S_T1}, 1920, s{S_T1}
            v_mad_u32_u24 v{vT+3}, v{vT+4}, s{S_T1}, v{vT+3}
            s_lshl_b32 s{S_T0}, s{S_CB}, 7
            s_sub_u32 s{S_T0}, s{S_T0}, {1024*j}
            v_add_u32 v{vWs+j}, s{S_T0}, v{vT+3}""")
        else:
            e(f"""s_lshl_b32 s{S_T0}, s{S_TG}, 8
            s_add_u32 s{S_T0}, s{S_T0}, {64*j}
            v_add_u32 v{vT}, s{S_T0}, v{vL}
            v_mul_u32_u24 v{vT+1}, 4682, v{vT}
            v_lshrrev_b32 v{vT+1}, 16, v{vT+1}
            v_mul_u32_u24 v{vT+2}, 14, v{vT+1}
            v_sub_u32 v{vT+2}, v{vT}, v{vT+2}""")
            kperm_code(vT+1, vT+3, vT+4)
            e(f"""v_mul_u32_u24 v{vT+3}, 3584, v{vT+3}
            v_lshl_add_u32 v{vT+3}, v{vT+2}, 4, v{vT+3}
            v_and_b32 v{vT+4}, 64, v{vT+1}
            v_lshl_add_u32 v{vT+3}, v{vT+4}, 20, v{vT+3}
            s_mul_i32 s{S_T0}, s{S_CB}, 224
            s_sub_u32 s{S_T0}, s{S_T0}, {1024*j}
            v_add_u32 v{vWs+j}, s{S_T0}, v{vT+3}""")
    if fh == 0: e(f"s_mul_i32 s{S_MW}, s{S_TG}, 3072\ns_add_u32 s{S_MW}, s{S_MW}, {L_WQ}")
    else:       e(f"s_lshl_b32 s{S_MW}, s{S_TG}, 12\ns_add_u32 s{S_MW}, s{S_MW}, {L_WH}")
    e("s_waitcnt lgkmcnt(0)")
    stamp("rt0", True); stamp("t0")
    srd(R_X, P_X, 2048*512*2)
    if fh == 0: srd(R_WA, P_WQKV, 512*1536*2)
    else:       srd(R_WA, P_W1, 512*1792*2)
    wstride = 3072 if fh == 0 else 3584
    dma_t = {}
    def dma_ops(c):
        s = c % 3; ops = []
        def one(mb, mo, so, va, R, off, first):
            def f():
                if off == 0:
                    e(f"s_add_u32 m0, s{mb}, {mo}")
                    if first: e(f"s_add_u32 s{S_SX}, s{S_KO}, {128*c}\ns_and_b32 s{S_SX}, s{S_SX}, 1023")
                    else: e(f"s_mul_i32 s{S_SW}, s{S_SX}, {wstride//2}")
                nt = " nt" if (OPT['ntl'] and (c == 7 or (c == 6 and first))) or c < OPT['nt0'] else ""
                dma_t[c] = e(f"buffer_load_dwordx4 v{va}, {sr(R,4)}, s{so} offen offset:{off}{nt} lds")
            return f
        for j in range(2): ops.append(one(S_MX, L_X + 16384*s, S_SX, vXs+j, R_X, 1024*j, True))
        for j in range(NW): ops.append(one(S_MW, 16384*s, S_SW, vWs+j, R_WA, 1024*j, False))
        return ops
    return dma_ops, dma_t

def xread_setup():
    vXr = v.alloc(2); vG = v.alloc(1)
    e(f"""v_lshrrev_b32 v{vG}, 4, v{vL}
    v_and_b32 v{vT}, 15, v{vL}
    v_lshrrev_b32 v{vT+1}, 1, v{vT}
    v_xor_b32 v{vT+1}, v{vT+1}, v{vG}
    v_lshlrev_b32 v{vT+1}, 4, v{vT+1}
    v_lshl_add_u32 v{vT+1}, v{vT}, 7, v{vT+1}
    s_lshl_b32 s{S_T0}, s{S_TG}, 12
    v_add_u32 v{vXr}, s{S_T0}, v{vT+1}
    v_xor_b32 v{vXr+1}, 64, v{vXr}
    v_lshrrev_b32 v{vT+2}, 2, v{vL}
    v_and_b32 v{vT+3}, 3, v{vL}
    v_lshlrev_b32 v{vT+3}, 3, v{vT+3}
    s_lshl_b32 s{S_T0}, s{S_RB}, 12
    s_lshl_b32 s{S_T1}, s{S_CB}, 8
    s_add_u32 s{S_FO}, s{S_T0}, s{S_T1}
    s_add_u32 s{S_FO}, s{S_FO}, {WS_FLG}""")
    return vXr, vG

def kloop(reads, mfmas, dma_ops, dma_t, extras, head, tailx):
    tick = {}
    def block(ks, extra):
        R = reads(ks+1) if ks < 15 else []
        M = mfmas(ks)
        nx = len(extra); done = 0
        if ks > 0: e.wait(lg=e.lgq)
        for i, (deps, tx) in enumerate(M):
            e.wait(lg=max(tick[(ks, d)] for d in deps))
            e(tx)
            for _ in range(2 if i < 2 else 1):
                if R:
                    nm, rt = R.pop(0); tick[(ks+1, nm)] = e(rt)
            while done < nx and (2*done+1)*len(M) <= 2*(i+1)*nx:
                extra[done](); done += 1
        for nm, rt in R: tick[(ks+1, nm)] = e(rt)
        for x in extra[done:]: x()
    stamp("setup_done")
    t_c0 = dma_t[0]
    d1 = dma_ops(1)
    for f in d1[:OPT['npro']]: f()
    e.wait(vm=t_c0); e.wait_all(vm=False)
    e("s_barrier")
    stamp("c0_landed")
    for nm, tx in reads(0): tick[(0, nm)] = e(tx)
    for f in d1[OPT['npro']:]: f()
    pend = dma_ops(2); last = []
    for c in range(8):
        block(2*c, pend)
        ex = []
        if c < 7:
            tailx(c)
            e.wait(vm=dma_t[c+1]); e.wait_all(vm=False)
            e("s_barrier")
            if OPT['fine'] or c in (0, 6): stamp(f"b{c}b")
            head(c)
            if c + 3 < 8: ex = dma_ops(c+3)
            ex = ex + extras(c)
        if c == 6:
            h = (len(ex) + 2) // 3; last = ex[2*h:]; ex = ex[:2*h]
        if c == 7: ex = last + last
        h = (len(ex) + 1) // 2
        block(2*c+1, ex[:h]); pend = ex[h:]
    stamp("kloop_end")

MF16 = "v_mfma_f32_16x16x32_bf16"
MF32 = "v_mfma_f32_32x32x16_bf16"

def w2_setup(vw2, first):
    e(f"""s_lshr_b32 s{S_T1}, s2, 3
    s_and_b32 s{S_T0}, s2, 7
    s_lshl_b32 s{S_T0}, s{S_T0}, 2
    s_and_b32 s{S_T2}, s{S_T1}, 3
    s_add_u32 s{S_R4}, s{S_T0}, s{S_T2}
    s_lshr_b32 s{S_C4}, s{S_T1}, 2
    v_lshrrev_b32 v{vT}, 2, v{vL}
    v_and_b32 v{vT}, 4, v{vT}
    v_and_b32 v{vT+1}, 7, v{vL}
    v_xor_b32 v{vT}, v{vT}, v{vT+1}
    v_lshlrev_b32 v{vT}, 4, v{vT}
    s_lshl_b32 s{S_T0}, s{S_C4}, 7
    v_add_u32 v{vT}, s{S_T0}, v{vT}
    v_lshrrev_b32 v{vT+1}, 3, v{vL}
    s_mul_i32 s{S_T0}, s{S_TG}, 448
    v_add_u32 v{vT+2}, s{S_T0}, v{vT+1}
    v_lshl_add_u32 v{vw2}, v{vT+2}, 10, v{vT}
    v_add_u32 v{vw2+1}, {8192-1024}, v{vw2}
    s_lshl_b32 s{S_MG}, s{S_TG}, 11""")
    e({0: f"s_mov_b32 s{S_OFFO}, 0",
       2: f"s_and_b32 s{S_T0}, s{S_C4}, 1\ns_lshl_b32 s{S_T0}, s{S_T0}, 2\ns_add_u32 s{S_OFFO}, s{S_T0}, s2\ns_and_b32 s{S_OFFO}, s{S_OFFO}, 7",
       3: f"s_lshl_b32 s{S_T0}, s{S_C4}, 1\ns_add_u32 s{S_OFFO}, s{S_T0}, s2\ns_and_b32 s{S_OFFO}, s{S_OFFO}, 7",
       4: f"s_and_b32 s{S_OFFO}, s2, 7",
       5: f"s_add_u32 s{S_OFFO}, s{S_C4}, s2\ns_and_b32 s{S_OFFO}, s{S_OFFO}, 7"}[OPT['rot']])
    e(f"""s_mul_i32 s{S_T1}, s{S_OFFO}, 7
    s_lshr_b32 s{S_T1}, s{S_T1}, 1
    s_lshl_b32 s{S_GW}, s{S_T1}, 14
    s_lshl_b32 s{S_GA}, s{S_T1}, 10""")
    if first: gw_advance(first)
def gw_advance(n):
    e(f"s_add_u32 s{S_GW}, s{S_GW}, {16384*n}\ns_cmp_lt_u32 s{S_GW}, {28*16384}\ns_cselect_b32 s{S_T0}, 0, {28*16384}\ns_sub_u32 s{S_GW}, s{S_GW}, s{S_T0}")
NPRE = 12

def g_stream():
    NREG = OPT['nreg']
    g = {'w2': v.alloc(2), 'wo': v.alloc(2), 't': {}}
    vR = v.alloc(6)
    FR = v.alloc(72, 4)
    g_mark = v.mark()
    fX = [FR, FR + 36]; fW = [FR + 8, FR + 44]
    dma_ops, dma_t = dma_setup(0)
    for f in dma_ops(0): f()
    stamp("r0_issued")
    srd(R_WS, P_WS, WS_SIZE)
    L1 = e.newlabel()
    e(f"""s_or_b32 s{S_T0}, s2, s{S_W}
    s_cmp_lg_u32 s{S_T0}, 0
    s_cbranch_scc1 {L1}
    s_memrealtime s[{S_EX}:{S_EX+1}]
    s_waitcnt lgkmcnt(0)
    s_or_b32 s{S_T0}, s{S_EX}, 1
    v_mov_b32 v{vT}, s{S_T0}""")
    opt_vm(f"global_store_dword v{vZ}, v{vT}, {sr(P_DBG,2)} sc1")
    e(f"{L1}:")
    vXr, vG = xread_setup()
    stale_read(G_SH, 1)
    vWh = v.alloc(7); vCs = v.alloc(7); vSt = v.alloc(1); vN = v.alloc(1); vB1 = v.alloc(14, 2)
    e(f"""v_mul_u32_u24 v{vT+4}, 224, v{vT+2}
    v_add_u32 v{vT+4}, v{vT+4}, v{vT+3}
    v_add_u32 v{vT+4}, {L_WH}, v{vT+4}
    v_lshlrev_b32 v{vT}, 3, v{vG}
    v_lshlrev_b32 v{vT+1}, 4, v{vG}
    v_add_u32 v{vT+1}, {L_CS}, v{vT+1}
    s_lshl_b32 s{S_T2}, s{S_RB}, 2
    s_add_u32 s{S_T2}, s{S_T2}, s{S_TG}
    s_mul_i32 s{S_T2}, s{S_T2}, 144
    s_mul_i32 s{S_T1}, s{S_CB}, 7
    s_add_u32 s{S_T2}, s{S_T2}, s{S_T1}
    s_mul_i32 s{S_T3}, s{S_CB}, 224""")
    for j, d in enumerate([0, 4, 1, 2, 3, 5, 6]):
        e(f"""s_add_u32 s{S_T4}, s{S_TG}, {d}
        s_cmp_ge_u32 s{S_T4}, 7
        s_cselect_b32 s{S_T0}, 7, 0
        s_sub_u32 s{S_T4}, s{S_T4}, s{S_T0}
        s_lshl_b32 s{S_T0}, s{S_T4}, 5
        v_add_u32 v{vWh+j}, s{S_T0}, v{vT+4}
        s_add_u32 s{S_T1}, s{S_T0}, s{S_T3}
        v_add_u32 v{vB1+2*j}, s{S_T1}, v{vT}
        s_lshl_b32 s{S_T0}, s{S_T0}, 1
        v_add_u32 v{vCs+j}, s{S_T0}, v{vT+1}
        s_add_u32 s{S_T4}, s{S_T4}, s{S_T2}
        s_lshl_b32 s{S_T4}, s{S_T4}, 10
        s_add_u32 s{S_SO+j}, s{S_T4}, {WS_ACT}""")
    e(f"""v_and_b32 v{vT}, 15, v{vL}
    s_lshl_b32 s{S_T0}, s{S_TG}, 9
    s_add_u32 s{S_T0}, s{S_T0}, {L_STATS}
    v_lshlrev_b32 v{vT}, 4, v{vT}
    v_add_u32 v{vSt}, s{S_T0}, v{vT}""")
    aH = v.alloc(56, 4); aCS = v.alloc(8, 4); vOnes = v.alloc(4, 4); cC = v.alloc(2, 2)
    for i in range(4): e(f"v_mov_b32 v{vOnes+i}, 0x3f803f80")
    e(f"v_mov_b32 v{cC}, {f2u(GC0)}\nv_mov_b32 v{cC+1}, {f2u(GC1)}")
    srd(R_W2, P_W2, 1792*512*2); srd(R_WO, P_WO, 512*512*2); srd(R_OUT, P_OUT, 2048*512*2)
    w2_setup(g['w2'], 0)
    e(f"""v_and_b32 v{vT+1}, 3, v{vT+1}
    v_lshrrev_b32 v{vT+2}, 5, v{vL}
    v_lshl_add_u32 v{vT+1}, v{vT+2}, 3, v{vT+1}
    s_lshl_b32 s{S_T0}, s{S_W}, 7
    v_add_u32 v{vT+1}, s{S_T0}, v{vT+1}
    v_lshl_add_u32 v{g['wo']}, v{vT+1}, 10, v{vT}
    v_add_u32 v{g['wo']+1}, {4096-1024}, v{g['wo']}""")
    e(f"""v_lshrrev_b32 v{vT}, 5, v{vL}
    v_lshlrev_b32 v{vT}, 10, v{vT}
    v_lshrrev_b32 v{vT+1}, 2, v{vL}
    v_and_b32 v{vT+1}, 3, v{vT+1}
    v_lshl_add_u32 v{vT}, v{vT+1}, 7, v{vT}
    v_and_b32 v{vT+1}, 2, v{vT+1}
    v_lshl_add_u32 v{vT}, v{vT+1}, 5, v{vT}
    v_and_b32 v{vT+1}, 16, v{vL}
    v_lshl_add_u32 v{vT}, v{vT+1}, 1, v{vT}
    v_and_b32 v{vT+1}, 3, v{vL}
    v_lshl_add_u32 v{vT}, v{vT+1}, 3, v{vT}
    s_and_b32 s{S_T0}, s{S_W}, 1
    s_lshl_b32 s{S_T0}, s{S_T0}, 6
    v_xor_b32 v{vT}, s{S_T0}, v{vT}
    v_add_u32 v{vR}, s{S_MG}, v{vT}
    v_xor_b32 v{vR+1}, 64, v{vR}
    v_add_u32 v{vR+2}, 49152, v{vR}
    v_add_u32 v{vR+3}, 49152, v{vR+1}
    v_add_u32 v{vR+4}, 98304, v{vR}
    v_add_u32 v{vR+5}, 98304, v{vR+1}""")
    def g_dma(s):
        gam = RING[s % NRING]
        e(f"s_add_u32 m0, s{S_MG}, {8192*gam}")
        if s < 28: vv, R, so = g['w2'], R_W2, S_GW
        else:
            vv, R, so = g['wo'], R_WO, S_T4
            e(f"s_add_u32 s{S_T4}, s{S_OFFO}, {s-28}\ns_and_b32 s{S_T4}, s{S_T4}, 7\ns_lshl_b32 s{S_T4}, s{S_T4}, 14")
        e(f"buffer_load_dwordx4 v{vv}, {sr(R,4)}, s{so} offen lds")
        g['t'][s] = e(f"buffer_load_dwordx4 v{vv+1}, {sr(R,4)}, s{so} offen offset:1024 lds")
        if s < 27:
            e(f"s_add_u32 s{S_GW}, s{S_GW}, 16384\ns_cmp_lt_u32 s{S_GW}, {28*16384}\ns_cselect_b32 s{S_GW}, s{S_GW}, 0")
    def reads(ks):
        c, kk = divmod(ks, 2); s = c % 3; b = ks % 2
        R = [("x0", f"ds_read_b128 {vr(fX[b],4)}, v{vXr+kk} offset:{L_X+16384*s}"),
             ("x1", f"ds_read_b128 {vr(fX[b]+4,4)}, v{vXr+kk} offset:{L_X+16384*s+2048}")]
        for j in range(7):
            for h2 in range(2):
                R.append((f"w{j}", f"ds_read_b64_tr_b16 {vr(fW[b]+4*j+2*h2,2)}, v{vWh+j} offset:{16384*s+7168*kk+3584*h2}"))
        return R
    def mfmas(ks):
        b = ks % 2; c0 = (lambda r: "0") if ks == 0 else (lambda r: vr(r, 4))
        M = []
        for j in range(7):
            if j < 2: M.append(((f"w{j}",), f"{MF16} {vr(aCS+4*j,4)}, {vr(fW[b]+4*j,4)}, {vr(vOnes,4)}, {c0(aCS+4*j)}"))
            for f in range(2):
                acc = aH + 8*j + 4*f
                M.append(((f"w{j}", "x0", "x1"), f"{MF16} {vr(acc,4)}, {vr(fW[b]+4*j,4)}, {vr(fX[b]+4*f,4)}, {c0(acc)}"))
        return M
    b1t = []; tN = []
    def b1_load(j): b1t.append(e(f"global_load_dwordx2 {vr(vB1+2*j,2)}, v{vB1+2*j}, {sr(P_B1,2)}"))
    vP2 = v.alloc(2)
    e(f"""s_lshr_b32 s{S_T0}, s2, 3
    s_and_b32 s{S_PG}, s{S_T0}, 3
    s_lshr_b32 s{S_T0}, s{S_GA}, 10
    s_lshl_b32 s{S_T1}, s{S_PG}, 2
    s_add_u32 s{S_T0}, s{S_T0}, s{S_T1}
    s_add_u32 s{S_T0}, s{S_T0}, 12
    v_add_u32 v{vT}, s{S_T0}, v{vG}
    v_subrev_u32 v{vT+1}, 28, v{vT}
    v_min_u32 v{vT}, v{vT}, v{vT+1}
    v_and_b32 v{vT+1}, 15, v{vL}
    v_lshl_add_u32 v{vT}, v{vT}, 4, v{vT+1}
    s_mul_i32 s{S_T0}, s{S_W}, 448
    v_add_u32 v{vT}, s{S_T0}, v{vT}
    s_lshl_b32 s{S_T1}, s{S_C4}, 7
    v_lshlrev_b32 v{vT}, 10, v{vT}
    v_add_u32 v{vP2}, s{S_T1}, v{vT}
    s_lshl_b32 s{S_T0}, s{S_W}, 2
    s_add_u32 s{S_T0}, s{S_T0}, s{S_PG}
    s_lshl_b32 s{S_T0}, s{S_T0}, 15
    s_add_u32 s{S_T0}, s{S_T0}, s{S_T1}
    v_lshlrev_b32 v{vT}, 10, v{vL}
    v_add_u32 v{vP2+1}, s{S_T0}, v{vT}
    s_add_u32 s{S_PG}, s{S_PG}, s{S_C4}
    s_and_b32 s{S_PG}, s{S_PG}, 3""")
    def pf2(t):
        t -= OPT['pf0']
        if not OPT['pf2'] or not 0 <= t < 4*OPT['pf2']: return
        bu, gam = divmod(t, 4)
        e(f"s_cmp_eq_u32 s{S_PG}, {gam}")
        if bu == 0:   e(f"s_cselect_b32 exec_lo, -1, 0\ns_mov_b32 exec_hi, 0\nbuffer_load_dword v{vPF}, v{vP2}, {sr(R_W2,4)}, 0 offen")
        elif bu == 1: e(f"s_cselect_b32 exec_hi, -1, 0\ns_mov_b32 exec_lo, 0\nbuffer_load_dword v{vPF}, v{vP2}, {sr(R_W2,4)}, 0 offen")
        else:         e(f"s_cselect_b32 exec_lo, -1, 0\ns_mov_b32 exec_hi, 0\nbuffer_load_dword v{vPF}, v{vP2+1}, {sr(R_WO,4)}, 0 offen")
        e("s_mov_b64 exec, -1")
    def extras(c):
        if c == 5: return [(lambda s=s: g_dma(s)) for s in range(OPT['n5'])]
        if c == 6: return [(lambda s=s: g_dma(s)) for s in range(OPT['n5'], OPT['n5'] + OPT['n6'])]
        return []
    def tailx(c):
        pf2(2*c - 1)
        if c == 2:
            for j in range(7): b1_load(j)
        if c == 4: tN.append(e(f"global_load_dword v{vN}, v{vZ}, {sr(P_DBG,2)} sc1"))
    kloop(reads, mfmas, dma_ops, dma_t, extras, lambda c: pf2(2*c), tailx)
    assert OPT['n5'] + OPT['n6'] == NPRE
    rt = {}
    fa = [0, 0]
    def wreg(s): return FR + 8*s if s < NREG else fa[s % 2]
    def tr_reads(s):
        gam = RING[s % NRING]; win = gam // 6; off = 8192*gam - 49152*win
        if s in g['t']: e.wait(vm=g['t'][s])
        for ch in range(2):
            for h2 in range(2):
                rt[s] = e(f"ds_read_b64_tr_b16 {vr(wreg(s)+4*ch+2*h2,2)}, v{vR+2*win+ch} offset:{off+512*h2}")
    e(f"""s_mov_b32 exec_lo, 0x00010001
    s_mov_b32 exec_hi, 0x00010001
    ds_write_b128 v{vCs}, {vr(aCS,4)}
    ds_write_b128 v{vCs+1}, {vr(aCS+4,4)}
    s_mov_b64 exec, -1""")
    if OPT['aload']:
        for s in range(NREG): tr_reads(s)
    e.wait(vm=tN[0])
    get_nonce(vN)
    if OPT['aload']: gw_advance(NRING + NREG - NPRE)
    e.wait_all(vm=False)
    e("s_barrier")
    stamp("xchg_bar")
    stt = v.alloc(8, 4); cs = v.alloc(28, 4); bb = vOnes; tm = v.alloc(8, 2)
    e(f"ds_read_b128 {vr(stt,4)}, v{vSt}")
    tst = e(f"ds_read_b128 {vr(stt+4,4)}, v{vSt} offset:256")
    tcs = [e(f"ds_read_b128 {vr(cs+4*j,4)}, v{vCs+j}") for j in range(7)]
    th = None; nst = 0
    for j in range(7):
        A = aH + 8*j
        e(f"""v_lshlrev_b32 v{bb}, 16, v{vB1+2*j}
        v_and_b32 v{bb+1}, 0xffff0000, v{vB1+2*j}
        v_lshlrev_b32 v{bb+2}, 16, v{vB1+2*j+1}
        v_and_b32 v{bb+3}, 0xffff0000, v{vB1+2*j+1}""")
        e.wait(lg=tcs[j])
        P4 = range(4)
        S4 = lambda p: stt + 4*(p//2)
        for p in P4: e(f"v_pk_fma_f32 {vr(tm+2*p,2)}, {vr(cs+4*j+2*(p%2),2)}, {vr(S4(p),2)}, {vr(bb+2*(p%2),2)} op_sel:[0,1,0] op_sel_hi:[1,1,1]")
        for p in P4: e(f"v_pk_fma_f32 {vr(A+2*p,2)}, {vr(A+2*p,2)}, {vr(S4(p),2)}, {vr(tm+2*p,2)} op_sel_hi:[1,0,1]")
        for p in P4: e(f"v_pk_mul_f32 {vr(tm+2*p,2)}, {vr(A+2*p,2)}, {vr(A+2*p,2)}")
        for p in P4: e(f"v_pk_fma_f32 {vr(tm+2*p,2)}, {vr(tm+2*p,2)}, {vr(cC,2)}, {vr(cC,2)} op_sel:[0,1,0] op_sel_hi:[1,1,0]")
        for p in P4: e(f"v_pk_mul_f32 {vr(tm+2*p,2)}, {vr(tm+2*p,2)}, {vr(A+2*p,2)}")
        for i in range(8): e(f"v_exp_f32 v{tm+i}, v{tm+i}")
        for p in P4: e(f"v_pk_fma_f32 {vr(tm+2*p,2)}, {vr(tm+2*p,2)}, {vr(S4(p)+2,2)}, {vr(S4(p)+2,2)} op_sel_hi:[1,0,0]")
        for i in range(8): e(f"v_rcp_f32 v{tm+i}, v{tm+i}")
        for p in P4: e(f"v_pk_mul_f32 {vr(A+2*p,2)}, {vr(A+2*p,2)}, {vr(tm+2*p,2)}")
        P = cs + 4*j
        for i in range(4): e(f"v_cvt_pk_bf16_f32 v{P+i}, v{A+2*i}, v{A+2*i+1}")
        e(f"v_permlane16_swap_b32 v{P}, v{P+2}\nv_permlane16_swap_b32 v{P+1}, v{P+3}")
        if j + 1 >= OPT['hsplit']:
            while nst <= j:
                th = e(f"buffer_store_dwordx4 {vr(cs+4*nst,4)}, v{vL16}, {sr(R_WS,4)}, s{S_SO+nst} offen sc1"); nst += 1
        if j == 6 - 1: fstamp("gelu5")
    stamp("gelu_end")
    v.release(g_mark)
    vA = v.alloc(2); vOm = v.alloc(1); vB2 = v.alloc(8, 2)
    acc = v.alloc(64, 4); fa[0] = v.alloc(8, 4); fa[1] = v.alloc(8, 4); ab = v.alloc(8*DACT, 4)
    assert cs >= vB2 + 8
    e(f"""s_lshr_b32 s{S_T0}, s{S_R4}, 1
    s_lshl_b32 s{S_T0}, s{S_T0}, 2
    s_add_u32 s{S_T0}, s{S_T0}, s{S_W}
    s_lshl_b32 s{S_T0}, s{S_T0}, 10
    s_add_u32 s{S_T0}, s{S_T0}, {WS_FLG + 65536}
    s_add_u32 s{G_FB}, s{P_WS}, s{S_T0}
    s_addc_u32 s{G_FB+1}, s{P_WS+1}, 0
    s_mul_i32 s{S_T0}, s{S_R4}, 288
    s_mul_i32 s{S_T1}, s{S_W}, 28
    s_add_u32 s{S_T0}, s{S_T0}, s{S_T1}
    s_lshl_b32 s{S_T0}, s{S_T0}, 10
    s_add_u32 s{S_T0}, s{S_T0}, {WS_ACT}
    s_add_u32 s{S_T1}, s{S_T0}, {144*1024}
    s_cmp_ge_u32 s{S_W}, 2
    s_cselect_b32 s{S_T2}, s{S_T1}, s{S_T0}
    s_cselect_b32 s{S_T3}, s{S_T0}, s{S_T1}
    v_add_u32 v{vA}, s{S_T2}, v{vL16}
    v_add_u32 v{vA+1}, s{S_T3}, v{vL16}
    s_and_b32 s{S_T0}, s{S_W}, 1
    s_lshl_b32 s{S_T0}, s{S_T0}, 6
    s_lshl_b32 s{S_T1}, s{S_C4}, 7
    s_add_u32 s{S_T0}, s{S_T0}, s{S_T1}
    v_lshrrev_b32 v{vT+2}, 5, v{vL}
    v_lshlrev_b32 v{vT+2}, 3, v{vT+2}
    v_add_u32 v{vT+2}, s{S_T0}, v{vT+2}""")
    for gi in range(4): e(f"global_load_dwordx2 {vr(vB2+2*gi,2)}, v{vT+2}, {sr(P_B2,2)} offset:{16*gi}")
    for s in range(NREG): tr_reads(s)
    e.wait_all(vm=False)
    e.wait(vm=th)
    publish(G_SH, 1)
    stamp("pub_h")
    def wait_partner():
        e(f"s_lshl_b32 s{S_T0}, s{S_TG}, 2\ns_add_u32 s{S_T0}, s{S_T0}, {L_CNT + 16}\nv_mov_b32 v{vT}, s{S_T0}")
        lds_wait(vT, vT+1)
    if not OPT['aload']:
        for s in range(NPRE, NPRE + OPT['nearly']): g_dma(s)
        if OPT['await_']: wait_partner()
        stamp("a_iss")
        rest = list(range(NPRE + OPT['nearly'], NRING + NREG))
        for s in rest[:-6]: g_dma(s)
        if OPT['hearly']: e(flag_read([256*i for i in range(4)], G_FD, G_FB))
        for s in rest[-6:]: g_dma(s)
    stamp("wpre")
    poll([256*i for i in range(4)], G_FD, G_FB, OPT['hearly'])
    stamp("h_seen")
    at = {}
    def act_load(s):
        sl = ab + 8*(s % DACT)
        if s == 28:
            e(f"""s_mul_i32 s{S_T0}, s{S_W}, {-20*1024}
            s_add_u32 s{S_T0}, s{S_T0}, {112*1024}
            v_add_u32 v{vA}, s{S_T0}, v{vA}
            v_add_u32 v{vA+1}, s{S_T0}, v{vA+1}""")
        if s >= 28:
            e(f"s_add_u32 s{S_GA}, s{S_OFFO}, {s-28}\ns_and_b32 s{S_GA}, s{S_GA}, 7\ns_lshl_b32 s{S_GA}, s{S_GA}, 10")
        e(f"buffer_load_dwordx4 {vr(sl,4)}, v{vA}, {sr(R_WS,4)}, s{S_GA} offen sc1")
        at[s] = e(f"buffer_load_dwordx4 {vr(sl+4,4)}, v{vA+1}, {sr(R_WS,4)}, s{S_GA} offen sc1")
        if s < 27:
            e(f"s_add_u32 s{S_GA}, s{S_GA}, 1024\ns_cmp_lt_u32 s{S_GA}, {28*1024}\ns_cselect_b32 s{S_GA}, s{S_GA}, 0")
    for s in range(DACT): act_load(s)
    if OPT['aload']: wait_partner()
    if NREG == 0: tr_reads(0)
    tf = None
    for s in range(36):
        if NREG <= s + 1 < 36: tr_reads(s+1)
        e.wait(vm=at[s], lg=rt[s])
        sl = ab + 8*(s % DACT)
        for ch in range(2):
            for tk in range(2):
                a = acc + 16*(2*tk + ch)
                e(f"{MF32} {vr(a,16)}, {vr(wreg(s)+4*ch,4)}, {vr(sl+4*tk,4)}, {'0' if s == 0 else vr(a,16)}")
        if s in (0, 4, 8, 12, 16, 24, 28, 32): stamp(f"g{s}")
        if s == 28 - DACT - 4:
            e(flag_read([65536 + 256*i for i in range(4)], G_FD, G_FB))
        if s + DACT == 28:
            stamp("pre_opoll")
            poll([65536 + 256*i for i in range(4)], G_FD, G_FB, True)
            stamp("o_seen")
            e(f"""s_lshr_b32 s{S_T0}, s{S_W}, 1
            s_lshl_b32 s{S_T0}, s{S_T0}, 7
            s_lshl_b32 s{S_T1}, s{S_R4}, 8
            s_add_u32 s{S_T0}, s{S_T0}, s{S_T1}
            s_lshl_b32 s{S_T1}, s{S_W}, 13
            s_add_u32 s{S_T0}, s{S_T0}, s{S_T1}
            s_add_u32 s{S_T0}, s{S_T0}, {WS_OMG}
            v_and_b32 v{vT}, 31, v{vL}
            v_lshlrev_b32 v{vT}, 2, v{vT}""")
            e(f"buffer_load_dword v{vOm}, v{vT}, {sr(R_WS,4)}, s{S_T0} offen sc1")
        if s + DACT < 36: act_load(s + DACT)
        if s >= NREG and s + NRING < 36: g_dma(s + NRING)
    stamp("g_loop_end")
    vW = vR; red = ab; bb = FR
    e(f"v_add_u32 v{vW}, s{S_MG}, v{vL16}")
    for j in range(1, 4): e(f"v_xor_b32 v{vW+j}, {2048*j}, v{vW}")
    for gi in range(4):
        e(f"""v_lshlrev_b32 v{bb+4*gi}, 16, v{vB2+2*gi}
        v_and_b32 v{bb+4*gi+1}, 0xffff0000, v{vB2+2*gi}
        v_lshlrev_b32 v{bb+4*gi+2}, 16, v{vB2+2*gi+1}
        v_and_b32 v{bb+4*gi+3}, 0xffff0000, v{vB2+2*gi+1}""")
    for j in (2, 1, 3):
        for gi in range(4):
            e(f"ds_write_b128 v{vW}, {vr(acc+16*j+4*gi,4)} offset:{8192*(2*j+gi//2)+1024*(gi%2)}")
    fin = acc
    for i in range(16): e(f"v_fma_f32 v{fin+i}, v{vOm}, v{bb+i}, v{fin+i}")
    e(f"""v_and_b32 v{vT}, 31, v{vL}
    v_lshrrev_b32 v{vT+1}, 5, v{vL}
    s_and_b32 s{S_T1}, s{S_W}, 1
    s_lshl_b32 s{S_T1}, s{S_T1}, 2
    v_add_u32 v{vT+1}, s{S_T1}, v{vT+1}
    v_and_b32 v{vT+2}, 7, v{vL}
    v_xor_b32 v{vT+1}, v{vT+1}, v{vT+2}
    v_lshlrev_b32 v{vT+1}, 4, v{vT+1}
    v_lshl_add_u32 v{vT+1}, v{vT}, 7, v{vT+1}
    s_lshr_b32 s{S_T0}, s{S_W}, 1
    s_lshl_b32 s{S_T0}, s{S_T0}, 12
    s_add_u32 s{S_T0}, s{S_T0}, {L_VSCR}
    v_add_u32 v{vT+1}, s{S_T0}, v{vT+1}
    v_xor_b32 v{vT+3}, 32, v{vT+1}
    v_lshrrev_b32 v{vT}, 3, v{vL}
    v_xor_b32 v{vT+4}, v{vT}, v{vT+2}
    v_lshlrev_b32 v{vT+4}, 4, v{vT+4}
    v_lshl_add_u32 v{vT+4}, v{vT}, 7, v{vT+4}
    s_lshl_b32 s{S_T0}, s{S_W}, 11
    s_add_u32 s{S_T0}, s{S_T0}, {L_VSCR}
    v_add_u32 v{vT+4}, s{S_T0}, v{vT+4}
    v_lshlrev_b32 v{vT}, 10, v{vT}
    v_lshl_add_u32 v{vT}, v{vT+2}, 4, v{vT}
    s_lshl_b32 s{S_T0}, s{S_W}, 4
    s_lshl_b32 s{S_T1}, s{S_R4}, 6
    s_add_u32 s{S_T0}, s{S_T0}, s{S_T1}
    s_lshl_b32 s{S_T0}, s{S_T0}, 10
    s_lshl_b32 s{S_T1}, s{S_C4}, 7
    s_add_u32 s{S_T0}, s{S_T0}, s{S_T1}
    s_add_u32 s{S_T1}, s{S_T0}, 8192""")
    e.wait_all(vm=False)
    e("s_barrier")
    stamp("red_bar")
    tks = []
    for j in range(1, 4):
        for gi in range(4):
            tks.append(e(f"ds_read_b128 {vr(red+16*(j-1)+4*gi,4)}, v{vW+j} offset:{8192*(2*j+gi//2)+1024*(gi%2)}"))
    for j in range(3):
        for gi in range(4):
            e.wait(lg=tks[4*j+gi])
            for i in (4*gi, 4*gi+2): e(f"v_pk_add_f32 {vr(fin+i,2)}, {vr(fin+i,2)}, {vr(red+16*j+i,2)}")
    P = FR + 16
    for i in range(8): e(f"v_cvt_pk_bf16_f32 v{P+i}, v{fin+2*i}, v{fin+2*i+1}")
    e(f"""v_permlane32_swap_b32 v{P}, v{P+2}
    v_permlane32_swap_b32 v{P+1}, v{P+3}
    v_permlane32_swap_b32 v{P+4}, v{P+6}
    v_permlane32_swap_b32 v{P+5}, v{P+7}
    ds_write_b128 v{vT+1}, {vr(P,4)}
    ds_write_b128 v{vT+3}, {vr(P+4,4)}""")
    e.wait_all(vm=False)
    e("s_barrier")
    t0 = e(f"ds_read_b128 {vr(P,4)}, v{vT+4}")
    t1 = e(f"ds_read_b128 {vr(P+4,4)}, v{vT+4} offset:1024")
    osc = ["", " sc1", " nt"][OPT['outsc']]
    e.wait(lg=t0)
    e(f"buffer_store_dwordx4 {vr(P,4)}, v{vT}, {sr(R_OUT,4)}, s{S_T0} offen{osc}")
    e.wait(lg=t1)
    e(f"buffer_store_dwordx4 {vr(P+4,4)}, v{vT}, {sr(R_OUT,4)}, s{S_T1} offen{osc}")
    stamp_flush()
    e("s_endpgm")

def a_stream():
    vVo = v.alloc(1); vGa = v.alloc(1); vFl = v.alloc(1); vPM = v.alloc(8); a_mark = v.mark()
    S_SO, S_SC, S_KB, S_NV, S_HEAD, S_TQ = A_SO, A_SC, A_KB, A_NV, S_R4, S_C4
    Vv = 172
    dma_ops, dma_t = dma_setup(1)
    L1 = e.newlabel()
    e(f"s_cmp_lg_u32 s{S_W}, 4\ns_cbranch_scc1 {L1}\ns_mov_b32 m0, {L_GW}")
    opt_vm(f"global_load_lds_dwordx4 v{vL16}, {sr(P_GW,2)}")
    e(f"{L1}:")
    for f in dma_ops(0): f()
    stamp("r0_issued")
    srd(R_WS, P_WS, WS_SIZE)
    L1 = e.newlabel()
    q = e.lgq
    e(f"""s_cmp_lg_u32 s{S_W}, 5
    s_cbranch_scc1 {L1}
    v_mov_b32 v{vT}, 0x3f803f80
    v_mov_b32 v{vT+1}, 0x3f803f80
    v_lshlrev_b32 v{vT+2}, 3, v{vL}
    v_add_u32 v{vT+2}, {L_ONES}, v{vT+2}
    ds_write_b64 v{vT+2}, v[{vT}:{vT+1}]
    ds_write_b64 v{vT+2}, v[{vT}:{vT+1}] offset:512
    v_lshlrev_b32 v{vT+4}, 2, v{vL}
    v_add_u32 v{vT+4}, {L_CNT}, v{vT+4}
    ds_write_b32 v{vT+4}, v{vZ}
    s_waitcnt lgkmcnt(0)
    {L1}:""")
    e.lgq = q
    vXr, vG = xread_setup()
    stale_read(A_SQ, 0); stale_read(A_SOo, 2)
    vWq = v.alloc(2); vGw = v.alloc(2); vSw = v.alloc(1); vOw = v.alloc(1); vN = v.alloc(1)
    e(f"""v_mul_u32_u24 v{vT+4}, 192, v{vT+2}
    v_add_u32 v{vT+4}, v{vT+4}, v{vT+3}
    v_add_u32 v{vT+4}, {L_WQ}, v{vT+4}
    v_and_b32 v{vT+5}, 1, v{vG}
    v_lshlrev_b32 v{vT+5}, 5, v{vT+5}
    v_add_u32 v{vWq}, v{vT+4}, v{vT+5}
    v_sub_u32 v{vWq+1}, v{vT+4}, v{vT+5}
    v_and_b32 v{vT}, 1, v{vL}
    v_mul_u32_u24 v{vT}, {L_ONES-L_GW}, v{vT}
    v_lshlrev_b32 v{vT+1}, 4, v{vG}
    v_sub_u32 v{vT+1}, v{vT+1}, v{vT}
    v_add_u32 v{vGw}, {L_ONES}, v{vT+1}
    v_and_b32 v{vT}, 15, v{vL}
    s_lshl_b32 s{S_T0}, s{S_TG}, 5
    v_add_u32 v{vT+1}, s{S_T0}, v{vT}
    v_lshlrev_b32 v{vSw}, 4, v{vT+1}
    v_add_u32 v{vSw}, {L_STATS}, v{vSw}
    s_lshl_b32 s{S_T0}, s{S_RB}, 9
    s_add_u32 s{S_T0}, s{S_T0}, {WS_OMG}
    s_lshl_b32 s{S_T1}, s{S_CB}, 11
    s_add_u32 s{S_T0}, s{S_T0}, s{S_T1}
    s_and_b32 s{S_T1}, s{S_CB}, 3
    s_cselect_b32 s{S_T0}, {WS_SIZE}, s{S_T0}
    v_lshlrev_b32 v{vOw}, 2, v{vT+1}
    v_add_u32 v{vOw}, s{S_T0}, v{vOw}
    s_lshl_b32 s{S_T1}, s{S_RB}, 2
    s_add_u32 s{S_T1}, s{S_T1}, s{S_TG}
    s_lshl_b32 s{S_T0}, s{S_CB}, 8
    s_add_u32 s{S_T0}, s{S_T0}, s{S_T1}
    s_lshl_b32 s{S_SO}, s{S_T0}, 10
    s_lshl_b32 s{S_T0}, s{S_CB}, 7
    s_add_u32 s{S_T0}, s{S_T0}, s{S_T1}
    s_add_u32 s{S_T0}, s{S_T0}, 4096
    s_lshl_b32 s{S_SO+4}, s{S_T0}, 10
    s_add_u32 s{S_SO+5}, s{S_SO+4}, 65536
    s_cmp_lt_u32 s{S_CB}, 8
    s_cselect_b32 s{S_SC}, {QSCALE}, 1.0""")
    for j in range(1, 4): e(f"s_add_u32 s{S_SO+j}, s{S_SO}, {65536*j}")
    for r, m in ((S_C1, 0x22222222), (S_C2, 0x44444444), (S_C3, 0x88888888)):
        e(f"s_mov_b32 s{r}, {hex(m)}\ns_mov_b32 s{r+1}, {hex(m)}")
    aQ = v.alloc(48, 4); aGR = v.alloc(8, 4); aSM = v.alloc(8, 4)
    fm = v.mark()
    fX = [v.alloc(8, 4) for _ in range(2)]; fW = [v.alloc(24, 4) for _ in range(2)]; fG = [v.alloc(4, 4) for _ in range(2)]
    k_top = v.mark(); assert k_top <= Vv + 7
    e(f"""s_and_b32 s{S_T0}, s{S_TG}, 1
    s_lshl_b32 s{S_HEAD}, s{S_CB}, 1
    s_add_u32 s{S_HEAD}, s{S_HEAD}, s{S_T0}
    s_and_b32 s{S_T0}, s{S_TG}, 2
    s_lshl_b32 s{S_TQ}, s{S_RB}, 2
    s_add_u32 s{S_TQ}, s{S_TQ}, s{S_T0}""")
    for kind in range(3):
        if kind < 2: e(f"s_lshr_b32 s{S_T0}, s{S_CB}, 1\ns_lshl_b32 s{S_T0}, s{S_T0}, 8\ns_add_u32 s{S_T0}, s{S_T0}, {WS_FLG + 2048*kind}")
        else: e(f"s_lshl_b32 s{S_T0}, s{S_CB}, 8\ns_add_u32 s{S_T0}, s{S_T0}, {WS_FLG}")
        for d in range(1 if kind == 0 else 3):
            e(f"""s_sub_i32 s{S_T1}, s{S_RB}, {d}
            s_max_i32 s{S_T1}, s{S_T1}, 0
            s_lshl_b32 s{S_T1}, s{S_T1}, 12
            s_add_u32 s{A_FO[0 if kind == 0 else 1 + 3*(kind-1) + d]}, s{S_T1}, s{S_T0}""")
    e(f"""v_and_b32 v{vT}, 31, v{vL}
    s_and_b32 s{S_T0}, s{S_TG}, 2
    s_lshl_b32 s{S_T0}, s{S_T0}, 9
    s_add_u32 s{S_T0}, s{S_T0}, {L_STATS + 12}
    v_lshlrev_b32 v{vT+1}, 4, v{vT}
    v_add_u32 v{vGa}, s{S_T0}, v{vT+1}
    s_lshl_b32 s{S_T0}, s{S_TG}, 2
    s_add_u32 s{S_T0}, s{S_T0}, {L_CNT + 16}
    v_mov_b32 v{vFl}, s{S_T0}
    v_lshrrev_b32 v{vT+2}, 5, v{vL}
    v_lshlrev_b32 v{vT+3}, 2, v{vT+2}
    v_sub_u32 v{vT+3}, v{vT}, v{vT+3}""")
    for r in range(16):
        e(f"v_cmp_le_i32 s[{S_MASK+2*r}:{S_MASK+2*r+1}], {8*(r//4) + r%4}, v{vT+3}")
    e(f"v_mov_b32 v{vT+4}, 0xffff\nv_mov_b32 v{vT+5}, 0xffff0000")
    for i in range(8):
        e(f"""v_cndmask_b32 v{vPM+i}, 0, v{vT+4}, s[{S_MASK+4*i}:{S_MASK+4*i+1}]
        v_cndmask_b32 v{vVo}, 0, v{vT+5}, s[{S_MASK+4*i+2}:{S_MASK+4*i+3}]
        v_or_b32 v{vPM+i}, v{vPM+i}, v{vVo}""")
    e(f"""v_and_b32 v{vVo}, 15, v{vL}
    v_lshl_add_u32 v{vVo}, v{vT+2}, 4, v{vVo}
    v_lshlrev_b32 v{vVo}, 4, v{vVo}
    s_lshl_b32 s{S_KB}, s{S_HEAD}, 6
    s_add_u32 s{S_KB}, s{S_KB}, s{S_TQ}
    s_lshl_b32 s{S_KB}, s{S_KB}, 10
    s_sub_i32 s{S_NV}, 8, s{S_TQ}
    s_max_i32 s{S_NV}, s{S_NV}, 0""")
    for i in range(10):
        e(f"s_cmp_gt_u32 s{S_NV}, {i}\ns_cselect_b32 s{S_T0}, 0, 0x3f803f80\nv_mov_b32 v{Vv+8*i+7}, s{S_T0}")
        for k in range(7):
            if Vv+8*i+k >= k_top: e(f"v_mov_b32 v{Vv+8*i+k}, v{Vv+8*i+7}")
    def reads(ks):
        c, kk = divmod(ks, 2); s = c % 3; b = ks % 2
        R = [("x0", f"ds_read_b128 {vr(fX[b],4)}, v{vXr+kk} offset:{L_X+16384*s}"),
             ("x1", f"ds_read_b128 {vr(fX[b]+4,4)}, v{vXr+kk} offset:{L_X+16384*s+2048}")]
        pre = f"s_add_u32 s{S_KG}, s{S_KO}, {128*c}\ns_and_b32 s{S_KG}, s{S_KG}, 1023\nv_add_u32 v{vGw+1}, s{S_KG}, v{vGw}\n" if kk == 0 else ""
        R.append(("g", pre + f"ds_read_b128 {vr(fG[b],4)}, v{vGw+1} offset:{64*kk}"))
        for t in range(6):
            for h2 in range(2):
                R.append((f"w{t}", f"ds_read_b64_tr_b16 {vr(fW[b]+4*t+2*h2,2)}, v{vWq+(t&1)} offset:{16384*s+6144*kk+3072*h2+32*t}"))
        return R
    def mfmas(ks):
        b = ks % 2; c0 = (lambda r: "0") if ks == 0 else (lambda r: vr(r, 4))
        M = []
        for f in range(2): M.append(((f"x{f}",), f"{MF16} {vr(aGR+4*f,4)}, {vr(fX[b]+4*f,4)}, {vr(fX[b]+4*f,4)}, {c0(aGR+4*f)}"))
        for f in range(2): M.append((("g",), f"{MF16} {vr(aSM+4*f,4)}, {vr(fG[b],4)}, {vr(fX[b]+4*f,4)}, {c0(aSM+4*f)}"))
        for t in range(6):
            for f in range(2):
                acc = aQ + 8*t + 4*f
                opA, opB = vr(fW[b]+4*t,4), vr(fX[b]+4*f,4)
                if t >= 4: opA, opB = opB, opA
                M.append(((f"w{t}",), f"{MF16} {vr(acc,4)}, {opA}, {opB}, {c0(acc)}"))
        return M
    if OPT['kprio']: e("s_setprio 1")
    tN = []
    def head(c):
        if c == 6: tN.append(e(f"global_load_dword v{vN}, v{vZ}, {sr(P_DBG,2)} sc1"))
    kloop(reads, mfmas, dma_ops, dma_t, lambda c: [], head, lambda c: None)
    v.release(fm)
    w = [v.alloc(8, 4) for _ in range(2)]
    seq = [
     "v_cndmask_b32 v{w4}, v{G0}, v{G1}, s[%d:%d]" % (S_C1, S_C1+1),
     "v_mul_f32 v{w6}, %d, v{S1}" % f2u(LOG2E),
     "v_cndmask_b32 v{w4}, v{w4}, v{G2}, s[%d:%d]" % (S_C2, S_C2+1),
     "v_mul_f32 v{w5}, %d, v{S0}" % f2u(1.0/512),
     "v_cndmask_b32 v{w4}, v{w4}, v{G3}, s[%d:%d]" % (S_C3, S_C3+1),
     "v_exp_f32 v{w2}, v{w6}",
     "v_mul_f32 v{w4}, %d, v{w4}" % f2u(1.0/512),
     "v_exp_f32 v{w3}, -v{w6}",
     "v_fma_f32 v{w4}, -v{w5}, v{w5}, v{w4}",
     "v_add_f32 v{w2}, 1.0, v{w2}",
     "v_max_f32 v{w4}, 0, v{w4}",
     "v_add_f32 v{w3}, 1.0, v{w3}",
     "v_add_f32 v{w4}, %d, v{w4}" % f2u(1e-5),
     "v_min_f32 v{w2}, %d, v{w2}" % f2u(1e30),
     "v_rsq_f32 v{w0}, v{w4}",
     "v_rcp_f32 v{w3}, v{w3}",
     "v_mul_f32 v{w1}, -v{w5}, v{w0}",
    ]
    for ln in seq:
        for f in range(2):
            d = {f"w{i}": w[f]+i for i in range(8)}
            d.update({f"G{i}": aGR+4*f+i for i in range(4)}); d.update(S0=aSM+4*f, S1=aSM+4*f+1)
            e(ln.format(**d))
    e(f"""s_mov_b32 exec_lo, 0x00f0000f
    s_mov_b32 exec_hi, 0xf0000f00
    ds_write_b128 v{vSw}, {vr(w[0],4)}
    ds_write_b128 v{vSw}, {vr(w[1],4)} offset:256
    v_rcp_f32 v{w[0]+7}, v{w[0]+2}
    v_rcp_f32 v{w[1]+7}, v{w[1]+2}""")
    if not OPT['qfirst']:
        e.wait_all(vm=False)
        e("s_barrier")
    e(f"buffer_store_dword v{w[0]+7}, v{vOw}, {sr(R_WS,4)}, 0 offen sc1")
    e(f"buffer_store_dword v{w[1]+7}, v{vOw}, {sr(R_WS,4)}, 0 offen offset:64 sc1")
    e("s_mov_b64 exec, -1")
    if not OPT['qfirst']: stamp("xchg_bar")
    if OPT['aprio']: e("s_setprio 2")
    pk = v.alloc(24, 4)
    def pack(j):
        A = aQ + 8*j; P = pk + 4*j
        if j < 4:
            if OPT['qfirst']:
                for i in range(8): e(f"v_mul_f32 v{A+i}, s{S_SC}, v{A+i}")
            else:
                for p in range(4): e(f"v_pk_mul_f32 {vr(A+2*p,2)}, {vr(A+2*p,2)}, s[{S_SC}:{S_SC+1}] op_sel_hi:[1,0]")
        for i in range(4): e(f"v_cvt_pk_bf16_f32 v{P+i}, v{A+2*i}, v{A+2*i+1}")
    def swap(j):
        P = pk + 4*j; n = 16 if j < 4 else 32
        e(f"v_permlane{n}_swap_b32 v{P}, v{P+2}\nv_permlane{n}_swap_b32 v{P+1}, v{P+3}")
    def store(j): return e(f"buffer_store_dwordx4 {vr(pk+4*j,4)}, v{vL16}, {sr(R_WS,4)}, s{S_SO+j} offen sc1")
    for j in range(6):
        pack(j)
        if j > 0: swap(j-1); store(j-1)
    swap(5); tq = store(5)
    stamp("qkv_issued")
    if OPT['qfirst']:
        e.wait_all(vm=False)
        e("s_barrier")
        stamp("xchg_bar")
    v.release(a_mark)
    vFt = v.alloc(1); vGt = v.alloc(2); vM = v.alloc(2)
    e.wait(vm=tN[0])
    get_nonce(vN)
    K = v.alloc(40, 4); Q = v.alloc(8, 4)
    D = [v.alloc(16, 4) for _ in range(2)]; Mg = v.alloc(16, 4); C = v.alloc(16, 4); O = v.alloc(16, 4)
    Pb = [v.alloc(8, 4) for _ in range(2)]
    assert v.mark() <= Vv
    v.alloc(Vv + 80 - v.mark())
    e(f"ds_read_b32 v{vGt}, v{vGa}\nds_read_b32 v{vGt+1}, v{vGa} offset:512")
    for r in range(Vv, k_top): e(f"v_mov_b32 v{r}, v{Vv+7}")
    e(f"v_mov_b32 v{vT+5}, 1")
    e.wait(vm=tq)
    publish(A_SQ, 0)
    if OPT['aprio']: e("s_setprio 0")
    stamp("pub_qkv")
    e(f"v_mov_b32 v{vT+4}, {L_CNT + 32}\ns_cmp_lg_u32 s{S_W}, 4\ns_cbranch_scc1 L_a_np")
    poll([f"s{r}" for r in A_FO], A_FD, P_WS)
    e(f"ds_write_b32 v{vT+4}, v{vT+5}")
    e("L_a_np:")
    lds_wait(vT+4, vFt)
    stamp("qkv_seen")
    if OPT['aprio']: e("s_setprio 2")
    def guard(i):
        if i >= 8: return lambda: None
        L = e.newlabel("L_sk")
        e.flush_haz()
        e(f"s_cmp_gt_u32 s{S_NV}, {i}\ns_cbranch_scc1 {L}")
        def close():
            e.flush_haz(); e(f"{L}:")
        return close
    kt = {}; vt = {}; qt = {}
    KV = ' sc1' if OPT['kvsc'] else ''
    def off(base, i):
        e(f"s_add_u32 s{S_T0}, s{S_KB}, {(base*64 - 8 + i)*1024}")
        if i < 8: e(f"s_cmp_gt_u32 s{S_NV}, {i}\ns_cselect_b32 s{S_T0}, {WS_SIZE}, s{S_T0}")
    def ldq(u): qt[u] = e(f"buffer_load_dwordx4 {vr(Q+4*u,4)}, v{vL16}, {sr(R_WS,4)}, s{S_KB} offen offset:{1024*u}{KV}")
    def ldk(i):
        off(32, i)
        kt[i] = e(f"buffer_load_dwordx4 {vr(K+4*i,4)}, v{vL16}, {sr(R_WS,4)}, s{S_T0} offen{KV}")
    def ldv(i):
        off(64, i)
        e(f"s_mov_b32 exec_lo, 0xffff\ns_mov_b32 exec_hi, 0xffff")
        e(f"buffer_load_dwordx4 {vr(Vv+8*i,4)}, v{vVo}, {sr(R_WS,4)}, s{S_T0} offen{KV}")
        vt[i] = e(f"buffer_load_dwordx4 {vr(Vv+8*i+4,4)}, v{vVo}, {sr(R_WS,4)}, s{S_T0} offen offset:512{KV}")
        e("s_mov_b64 exec, -1")
    LD = [(ldq,0),(ldk,8),(ldk,0),(ldk,1),(ldk,2),(ldv,0),(ldv,8),(ldk,3),(ldv,1),(ldk,4),(ldv,2),(ldk,5),(ldv,3),(ldk,6),(ldv,4),(ldk,7),(ldv,5),(ldv,6),(ldq,1),(ldk,9),(ldv,7),(ldv,9)]
    def ld_more(n):
        for _ in range(n):
            if LD:
                f, i = LD.pop(0); f(i)
                if not LD: e(f"ds_write_b32 v{vFl}, v{vT+5}")
    def finalize(u, P):
        e(f"v_rcp_f32 v{vM}, v{O+8}\nv_mul_f32 v{vM}, v{vM}, v{vGt+u}")
        for r in range(8): e(f"v_mul_f32 v{O+r}, v{O+r}, v{vM}")
        for k in range(4): e(f"v_cvt_pk_bf16_f32 v{P+k}, v{O+2*k}, v{O+2*k+1}")
    def o_store(u, P):
        e(f"""s_add_u32 s{S_T0}, s{S_TQ}, {u}
        s_mul_i32 s{S_T0}, s{S_T0}, 144
        s_add_u32 s{S_T0}, s{S_T0}, s{S_HEAD}
        s_add_u32 s{S_T0}, s{S_T0}, 112
        s_lshl_b32 s{S_T0}, s{S_T0}, 10
        s_add_u32 s{S_T0}, s{S_T0}, {WS_ACT}""")
        e(f"buffer_store_dwordx4 {vr(P,4)}, v{vL16}, {sr(R_WS,4)}, s{S_T0} offen sc1")
    def merged_tail():
        for r in range(16):
            e(f"v_exp_f32 v{Mg+r}, v{Mg+r}")
            if r % 4 == 3: ld_more(1)
        for i in range(8): e(f"v_cvt_pk_bf16_f32 v{Mg+i}, v{Mg+2*i}, v{Mg+2*i+1}")
        for i in range(8): e(f"v_and_b32 v{Mg+8+i}, v{Mg+i}, v{vPM+i}")
        for i in range(8): e(f"v_xor_b32 v{Mg+i}, v{Mg+i}, v{Mg+8+i}")
    ld_more(OPT['nld0'] if OPT['fast'] else 99)
    e.wait(lg=e.lgq)
    if OPT['fast']:
        for u in range(2):
            q = vr(Q+4*u, 4); first = [True]
            def qk(i, dst):
                while i not in kt: ld_more(1)
                e.wait(vm=max(kt[i], qt[u]))
                e(f"{MF32} {vr(dst,16)}, {vr(K+4*i,4)}, {q}, 0")
            def pv1(i, P, sidx):
                while i not in vt: ld_more(1)
                e.wait(vm=vt[i])
                e(f"{MF32} {vr(O,16)}, {vr(Vv+8*i+4*sidx,4)}, {vr(P+4*sidx,4)}, {'0' if first[0] else vr(O,16)}")
                first[0] = False
            far, diag = u, u + 8; mids = list(range(u+1, u+8))
            if u == 0:
                qk(diag, D[1]); qk(far, Mg)
            qk(mids[0], D[0])
            for r in range(16):
                e(f"v_cndmask_b32 v{Mg+r}, v{Mg+r}, v{D[1]+r}, s[{S_MASK+2*r}:{S_MASK+2*r+1}]")
            merged_tail()
            fstamp(f"mg{u}")
            pend = [(far, Mg, 0), (far, Mg, 1), (diag, Mg+8, 0), (diag, Mg+8, 1)]
            for n, i in enumerate(mids):
                b = D[n % 2]; P = Pb[n % 2]; mf = []
                if n + 1 < 7: mf.append(lambda n=n: qk(mids[n+1], D[(n+1) % 2]))
                take = 3 if len(pend) > 2 else len(pend)
                for x in pend[:take]: mf.append(lambda x=x: pv1(*x))
                pend = pend[take:]
                if n == 6 and u == 0:
                    def nxt(i2, dst):
                        e.wait(vm=max(kt[i2], qt[1]))
                        e(f"{MF32} {vr(dst,16)}, {vr(K+4*i2,4)}, {vr(Q+4,4)}, 0")
                    mf += [lambda: nxt(9, D[1]), lambda: nxt(1, Mg)]
                slots = {4*k: f for k, f in enumerate(mf)}
                for r in range(16):
                    if r in slots: slots[r]()
                    e(f"v_exp_f32 v{b+r}, v{b+r}")
                    if r % 4 == 2: ld_more(1)
                for k in range(8):
                    e(f"v_cvt_pk_bf16_f32 v{P+k}, v{b+2*k}, v{b+2*k+1}")
                    if n == 6 and k == 5: pv1(i, P, 0)
                pend += [(i, P, 0), (i, P, 1)] if n < 6 else [(i, P, 1)]
            for x in pend: pv1(*x)
            assert not LD
            lo, hi = (2.0**-64, 2.0**64) if not OPT['forcefb'] else (2.0**60, 2.0**64)
            e(f"""v_cmp_gt_f32 vcc, {f2u(lo)}, v{O+8}
            s_mov_b64 s[60:61], vcc
            v_cmp_nge_f32 vcc, {f2u(hi)}, v{O+8}
            s_or_b64 vcc, vcc, s[60:61]
            s_cbranch_vccnz L_att_gen""")
            if u == 1: o_store(0, C)
            finalize(u, C + 4*u)
            if u == 1: o_store(1, C + 4)
            stamp(f"unit{u}")
    else:
        e("s_branch L_att_gen")
    e("L_att_pub:")
    e.wait_all(lg=False)
    publish(A_SOo, 2)
    stamp_flush()
    e("s_endpgm")
    e("L_att_gen:")
    e("s_nop 15")
    e.wait_all()
    for u in range(2):
        q = vr(Q+4*u, 4); first = [True]
        def qk(i, dst, c): e(f"{MF32} {vr(dst,16)}, {vr(K+4*i,4)}, {q}, {c}")
        def pv(i, P):
            for s in range(2):
                e(f"{MF32} {vr(O,16)}, {vr(Vv+8*i+4*s,4)}, {vr(P+4*s,4)}, {'0' if first[0] else vr(O,16)}")
                first[0] = False
        far, diag = u, u + 8; mids = list(range(u+1, u+8))
        qk(diag, D[0], "0")
        for r in range(16): e(f"v_mov_b32 v{D[1]+r}, 0xff800000")
        cl = guard(far); qk(far, D[1], "0"); cl()
        for r in range(16):
            e(f"v_cndmask_b32 v{Mg+r}, v{D[1]+r}, v{D[0]+r}, s[{S_MASK+2*r}:{S_MASK+2*r+1}]")
        e(f"v_max_f32 v{vM}, v{Mg}, v{Mg+1}\nv_max_f32 v{vM+1}, v{Mg+2}, v{Mg+3}")
        for r in range(4, 16, 4):
            e(f"v_max3_f32 v{vM}, v{vM}, v{Mg+r}, v{Mg+r+1}\nv_max3_f32 v{vM+1}, v{vM+1}, v{Mg+r+2}, v{Mg+r+3}")
        for n, i in enumerate(mids):
            b = D[n % 2]
            cl = guard(i)
            qk(i, b, "0")
            for r in range(0, 16, 4):
                e(f"v_max3_f32 v{vM}, v{vM}, v{b+r}, v{b+r+1}\nv_max3_f32 v{vM+1}, v{vM+1}, v{b+r+2}, v{b+r+3}")
            cl()
        e(f"""v_max_f32 v{vM}, v{vM}, v{vM+1}
        v_mov_b32 v{vM+1}, v{vM}
        v_permlane32_swap_b32 v{vM}, v{vM+1}
        v_max_f32 v{vM}, v{vM}, v{vM+1}""")
        for r in range(16): e(f"v_sub_f32 v{C+r}, 0, v{vM}")
        for r in range(16): e(f"v_add_f32 v{Mg+r}, v{Mg+r}, v{C}")
        merged_tail()
        pv(diag, Mg+8)
        cl = guard(far); pv(far, Mg); cl()
        for n, i in enumerate(mids):
            b = D[n % 2]; P = Pb[n % 2]
            cl = guard(i)
            qk(i, b, vr(C, 16))
            for r in range(16): e(f"v_exp_f32 v{b+r}, v{b+r}")
            for k in range(8): e(f"v_cvt_pk_bf16_f32 v{P+k}, v{b+2*k}, v{b+2*k+1}")
            pv(i, P)
            cl()
        finalize(u, C); o_store(u, C)
    e("s_branch L_att_pub")

g_stream()
e.restore(common_state); v.release(common_mark)
e("L_streamA:")
cur_stream[0] = "A"
a_stream()
body = e.text() + "".join("\n".join((l if l.strip().endswith(":") else "    " + l.strip()).rstrip() if not l.strip().endswith(":") else l.strip() for l in t.split("\n") if l.strip()) + "\n" for t in tail) + "L_end:\n    s_endpgm\n"

hdr = open("gated_mix__sliding_block__mixer_channel_mlp__prompt.s.ref").read().split("; Override launch")[0]
txt = hdr + f"""; Generated by my own generator script (single persistent launch; hand-off flags in d_ws carry a per-launch nonce).
; @launch grid=(256,1,1) block=(512,1,1) lds=163840
.amdgcn_target "amdgcn-amd-amdhsa--gfx950"
.text
.globl {NAME}
.p2align 8
.type {NAME},@function
{NAME}:
""" + body + f""".section .rodata,"a"
.p2align 6
.amdhsa_kernel {NAME}
  .amdhsa_next_free_vgpr 256
  .amdhsa_next_free_sgpr 102
  .amdhsa_accum_offset 256
  .amdhsa_group_segment_fixed_size 0
  .amdhsa_kernarg_size 96
  .amdhsa_user_sgpr_count 2
  .amdhsa_user_sgpr_kernarg_segment_ptr 1
  .amdhsa_system_sgpr_workgroup_id_x 1
.end_amdhsa_kernel
"""
out = sys.argv[1]
open(out, "w").write(txt)
if STAMP:
    import json; json.dump(stamp_names, open(out + ".names.json", "w"))
print("vgpr high water", v.hw, "nops", e.nops, "lines", txt.count("\n"), file=sys.stderr)
```

```python
import sys, math, struct
from emit import *

NAME = "gated_mix__sliding_block__mixer_channel_mlp__prompt_kernel"
STAMP = "--stamp" in sys.argv
ECHO = [a.split("=")[1] for a in sys.argv if a.startswith("--echo=")]
ECHO = ECHO[0] if ECHO else None
OPT = dict(rot=2, nreg=9, codepf=1, sleep=2, fine=0, krot=3, fast=1, forcefb=0, pf2=0, pfs=2, pf0=0, nld0=22, ntl=1, outsc=0,
           nearly=99, await_=0, kvsc=1, hearly=1, lw=18, npost=99, dact=8, npk=7, p1=3, p2=7, gprio=1, npro=1, adelay=1, bpf=0, pfa=0, alast=0, e1=3, p3=0, p2first=1, qearly=3)
for a in sys.argv:
    if a.startswith("--o:"):
        k, vv = a[4:].split("="); assert k in OPT, k; OPT[k] = int(vv)

def f2u(x): return struct.unpack("<I", struct.pack("<f", x))[0]
LOG2E = 1.4426950408889634
QSCALE = f2u(0.25 * LOG2E)
GC0 = -2.0 * math.sqrt(2.0 / math.pi) * LOG2E
GC1 = GC0 * 0.044715

WS_QKV = 0
WS_ACT = 8 << 20
WS_OMG = 20 << 20
WS_FLG = 21 << 20
WS_DBG = 24 << 20
WS_SIZE = 32 << 20
L_X, L_WQ, L_A, L_MISC = 0, 49152, 86016, 151552
L_B = [32768, 73728, 0, 49152]
L_GW = L_MISC; L_ONES = L_MISC + 1152; L_STATS = L_MISC + 2304; L_CS = L_MISC + 4352; L_CNT = L_MISC + 4864
L_VSCR = 65536
RING = [2, 3, 8, 11, 12, 13, 14, 15, 16, 17, 0, 1, 4, 5, 6, 7, 9, 10]
NRING = 18
DACT = OPT['dact']
SPIN = 200000

S_FO = 3
P_X, P_WQKV, P_WO, P_W1, P_B1, P_W2, P_B2, P_GW, P_OUT, P_DBG, P_WS = 4, 6, 8, 12, 14, 16, 18, 20, 22, 24, 26
S_ST = 10
R_X, R_WA, R_WS, R_W2, R_WO, R_OUT = 28, 32, 36, 40, 44, 88
S_SH, S_MA, S_PG = 71, 72, 73
R_W1 = 88
S_W, S_TG, S_RB, S_CB, S_R4, S_C4, S_NONCE = 52, 53, 54, 55, 56, 57, 58
S_T0, S_T1, S_T2, S_T3, S_T4 = 59, 60, 61, 62, 63
S_MASK = 64
S_SO = 64
S_SC = 70
S_VM = 76
S_C1, S_C2, S_C3 = 12, 14, 20
A_SO, A_SC, A_KB, A_NV = 40, 46, 47, 98
A_FO = [4, 5, 6, 7, 8, 9, 18]; A_FD = [19, 22, 23, 60, 61, 62, 63]; A_SQ, A_SOo = 100, 101
G_FB, G_FD, G_SH = 74, [92, 93, 94, 95], 87
S_GW, S_GA, S_OFFO = 84, 85, 86
S_SX, S_SW, S_KO, S_KG = 48, 49, 50, 51
S_MX, S_MW, S_MG = 96, 97, 98
S_SPIN = 99
S_EX = 100

e = Em()
stamp_names = {}
cur_stream = ["G"]
def stamp(name, real=False):
    if ECHO == name and cur_stream[0] == "G": e("s_memtime s[78:79]")
    if not STAMP: return
    d = stamp_names.setdefault(cur_stream[0], [])
    if name in d: idx = d.index(name)
    else: d.append(name); idx = len(d) - 1
    assert idx < 64
    e(f"""{'s_memrealtime' if real else 's_memtime'} s[{S_ST}:{S_ST+1}]
    s_waitcnt lgkmcnt(0)
    v_writelane_b32 v255, s{S_ST}, {idx}""")
    e.lg_done = e.lgq
def fstamp(name):
    if OPT['fine']: stamp(name)
def stamp_flush():
    if ECHO and cur_stream[0] == "G":
        stamp("end")
        L = e.newlabel("L_echo")
        e(f"""s_memtime s[80:81]
        s_waitcnt lgkmcnt(0)
        s_sub_u32 s78, s78, s76
        s_min_u32 s78, s78, 400000
        {L}:
        s_memtime s[82:83]
        s_waitcnt lgkmcnt(0)
        s_sub_u32 s82, s82, s80
        s_cmp_lt_u32 s82, s78
        s_cbranch_scc1 {L}""")
    if not STAMP: return
    stamp("end"); stamp("rt_end", True)
    e(f"""s_lshl_b32 s{S_ST}, s2, 3
    s_add_u32 s{S_ST}, s{S_ST}, s{S_W}
    s_lshl_b32 s{S_ST}, s{S_ST}, 8
    s_add_u32 s{S_ST}, s{S_ST}, {WS_DBG}
    v_lshlrev_b32 v254, 2, v{vL}
    buffer_store_dword v255, v254, {sr(R_WS,4)}, s{S_ST} offen""")

def srd(r, p, size):
    e(f"""s_mov_b32 s{r}, s{p}
    s_mov_b32 s{r+1}, s{p+1}
    s_mov_b32 s{r+2}, {size}
    s_mov_b32 s{r+3}, 0x20000""")

def opt_vm(text):
    q = e.vmq; e(text); e.vmq = q

def get_nonce(vN):
    Ln = e.newlabel("L_n"); Lk = e.newlabel("L_nk")
    st = e.state()
    e(f"""v_readfirstlane_b32 s{S_NONCE}, v{vN}
    s_mov_b32 s{S_SPIN}, {SPIN}
    s_cmp_lg_u32 s{S_NONCE}, 0
    s_cbranch_scc0 {Ln}
    {Lk}:""")
    tail.append(f"""{Ln}:
    global_load_dword v{vN}, v{vZ}, {sr(P_DBG,2)} sc1
    s_waitcnt vmcnt(0)
    v_readfirstlane_b32 s{S_NONCE}, v{vN}
    s_sub_u32 s{S_SPIN}, s{S_SPIN}, 1
    s_cmp_eq_u32 s{S_SPIN}, 0
    s_cbranch_scc1 {Lk}
    s_cmp_lg_u32 s{S_NONCE}, 0
    s_cbranch_scc1 {Lk}
    s_branch {Ln}""")
tail = []

def stale_read(sdst, stage):
    e(f"s_add_u32 s{S_T0}, s{S_FO}, {stage*65536}\ns_mov_b32 s{sdst}, 0")
    e(f"s_atomic_add s{sdst}, {sr(P_WS,2)}, s{S_T0} glc")
def publish(sstale, stage):
    e(f"""s_sub_u32 s{S_T1}, s{S_NONCE}, s{sstale}
    s_sub_u32 s{S_T1}, s{S_T1}, 3
    s_cmp_eq_u32 s{S_TG}, 0
    s_cselect_b32 s{sstale}, s{S_T1}, 1
    s_add_u32 s{S_T0}, s{S_FO}, {stage*65536}
    s_atomic_add s{sstale}, {sr(P_WS,2)}, s{S_T0}""")
def flag_read(offs, dsts, base):
    return "\n".join(f"s_mov_b32 s{d}, 0\ns_atomic_add s{d}, {sr(base,2)}, {o} glc" for o, d in zip(offs, dsts))
def flag_test(dsts):
    t = [f"s_xor_b32 s{d}, s{d}, s{S_NONCE}" for d in dsts] + [f"s_or_b32 s{dsts[0]}, s{dsts[0]}, s{d}" for d in dsts[1:]]
    return "\n".join(t)
def poll(offs, dsts, base, issued=False):
    L = e.newlabel("L_poll"); Lo = e.newlabel("L_pout")
    if not issued: e(flag_read(offs, dsts, base))
    e(f"s_mov_b32 s{S_SPIN}, {SPIN}")
    e.wait_all(vm=False)
    e(flag_test(dsts))
    e(f"s_cbranch_scc1 {L}\n{Lo}:")
    tail.append(f"""{L}:
    {('s_sleep %d' % OPT['sleep']) if OPT['sleep'] else ''}
    {flag_read(offs, dsts, base)}
    s_sub_u32 s{S_SPIN}, s{S_SPIN}, 1
    s_waitcnt lgkmcnt(0)
    s_cbranch_scc1 {Lo}
    {flag_test(dsts)}
    s_cbranch_scc1 {L}
    s_branch {Lo}""")
def lds_wait(vaddr, vtmp, target=1, off=0, issued=False):
    Lw = e.newlabel("L_lw"); Lo = e.newlabel("L_lo")
    if not issued: e(f"ds_read_b32 v{vtmp}, v{vaddr} offset:{off}")
    e.wait_all(vm=False)
    e(f"""v_readfirstlane_b32 s{S_T0}, v{vtmp}
    s_mov_b32 s{S_SPIN}, {SPIN*8}
    s_cmp_lt_u32 s{S_T0}, {target}
    s_cbranch_scc1 {Lw}
    {Lo}:""")
    tail.append(f"""{Lw}:
    s_sleep 2
    ds_read_b32 v{vtmp}, v{vaddr} offset:{off}
    s_sub_u32 s{S_SPIN}, s{S_SPIN}, 1
    s_waitcnt lgkmcnt(0)
    s_cbranch_scc1 {Lo}
    v_readfirstlane_b32 s{S_T0}, v{vtmp}
    s_nop 0
    s_cmp_lt_u32 s{S_T0}, {target}
    s_cbranch_scc1 {Lw}
    s_branch {Lo}""")
def lds_arrive(vaddr, vone, off):
    e(f"s_mov_b64 exec, 1\nds_add_u32 v{vaddr}, v{vone} offset:{off}\ns_mov_b64 exec, -1")
C_CSB, C_AFREE, C_GDONE, C_GELU, C_RISS, C_QKV = 0, 4, 8, 12, 16, 32

v = Regs(1, 254 if STAMP else 256)
vL = v.alloc(); vL16 = v.alloc(); vZ = v.alloc()
vT = v.alloc(6, 2)
common_mark = v.mark()
vPF = 0
if ECHO: e("s_memtime s[76:77]")
e(f"""s_cmp_ge_u32 s2, 256
s_cbranch_scc1 L_end
s_load_dwordx16 s[4:19], s[0:1], 0
s_load_dwordx8 s[20:27], s[0:1], 64
v_lshrrev_b32 v{vT}, 6, v0
v_and_b32 v{vL}, 63, v0
v_readfirstlane_b32 s{S_W}, v{vT}
v_lshlrev_b32 v{vL16}, 4, v{vL}
v_mov_b32 v{vZ}, 0
s_and_b32 s{S_T0}, s2, 1
s_lshl_b32 s{S_T0}, s{S_T0}, 3
s_lshr_b32 s{S_T1}, s2, 3
s_and_b32 s{S_T2}, s{S_T1}, 7
s_add_u32 s{S_RB}, s{S_T0}, s{S_T2}
s_lshr_b32 s{S_T0}, s2, 1
s_and_b32 s{S_T0}, s{S_T0}, 3
s_lshl_b32 s{S_T0}, s{S_T0}, 2
s_lshr_b32 s{S_T2}, s2, 6
s_add_u32 s{S_CB}, s{S_T0}, s{S_T2}
s_and_b32 s{S_TG}, s{S_W}, 3
""")
if OPT['codepf']:
    e(f"""s_cmp_lg_u32 s{S_W}, 7
    s_cbranch_scc1 L_nocpf
    s_getpc_b64 s[{S_EX}:{S_EX+1}]
    L_pc:
    v_and_b32 v{vT}, 15, v{vL}
    s_lshl_b32 s{S_T0}, s{S_T1}, 4
    v_add_u32 v{vT}, s{S_T0}, v{vT}
    v_lshlrev_b32 v{vT}, 7, v{vT}
    v_min_u32 v{vT}, L_end-L_pc, v{vT}""")
    opt_vm(f"global_load_dword v{vPF}, v{vT}, s[{S_EX}:{S_EX+1}]")
    e("L_nocpf:")
KROT = {0: f"s_mov_b32 s{S_KO}, 0",
        2: f"s_add_u32 s{S_KO}, s{S_RB}, s{S_CB}\ns_and_b32 s{S_KO}, s{S_KO}, 3\ns_lshl_b32 s{S_KO}, s{S_KO}, 8\ns_lshr_b32 s{S_T0}, s2, 1\ns_xor_b32 s{S_T0}, s{S_T0}, s2\ns_and_b32 s{S_T0}, s{S_T0}, 1\ns_lshl_b32 s{S_T0}, s{S_T0}, 7\ns_add_u32 s{S_KO}, s{S_KO}, s{S_T0}",
        3: f"s_lshl_b32 s{S_KO}, s{S_CB}, 1\ns_add_u32 s{S_KO}, s{S_KO}, s{S_RB}\ns_and_b32 s{S_KO}, s{S_KO}, 7\ns_lshl_b32 s{S_KO}, s{S_KO}, 7",
        5: f"s_lshl_b32 s{S_KO}, s{S_CB}, 1\ns_add_u32 s{S_KO}, s{S_KO}, s{S_RB}\ns_lshr_b32 s{S_T0}, s{S_CB}, 2\ns_and_b32 s{S_T0}, s{S_T0}, 1\ns_add_u32 s{S_KO}, s{S_KO}, s{S_T0}\ns_and_b32 s{S_KO}, s{S_KO}, 7\ns_lshl_b32 s{S_KO}, s{S_KO}, 7",
        }[OPT['krot']]
e(f"""{KROT}
s_cmp_ge_u32 s{S_W}, 4
s_cbranch_scc1 L_streamA
""")
common_state = e.state()

def kperm_code(vrho, vk, vt):
    e(f"""v_and_b32 v{vk}, 0x23, v{vrho}
    v_lshrrev_b32 v{vt}, 2, v{vrho}
    v_and_b32 v{vt}, 3, v{vt}
    v_lshl_add_u32 v{vk}, v{vt}, 3, v{vk}
    v_lshrrev_b32 v{vt}, 4, v{vrho}
    v_and_b32 v{vt}, 1, v{vt}
    v_lshl_add_u32 v{vk}, v{vt}, 2, v{vk}""")

def b_addr(vb):
    e(f"v_mul_u32_u24 v{vb}, 96, v{vT+2}\nv_add_u32 v{vb}, v{vb}, v{vT+3}\nv_add_u32 v{vb+1}, 49152, v{vb}")
def b_read(dst, vb, ks, h2, j):
    o = L_B[ks//4] + 3072*(ks % 4) + 1536*h2 + 32*j
    return f"ds_read_b64_tr_b16 {vr(dst,2)}, v{vb + (o >= 49152)} offset:{o - 49152*(o >= 49152)}"

def xread_setup():
    vXr = v.alloc(2); vG = v.alloc(1)
    e(f"""v_lshrrev_b32 v{vG}, 4, v{vL}
    v_and_b32 v{vT}, 15, v{vL}
    v_lshrrev_b32 v{vT+1}, 1, v{vT}
    v_xor_b32 v{vT+1}, v{vT+1}, v{vG}
    v_lshlrev_b32 v{vT+1}, 4, v{vT+1}
    v_lshl_add_u32 v{vT+1}, v{vT}, 7, v{vT+1}
    s_lshl_b32 s{S_T0}, s{S_TG}, 12
    v_add_u32 v{vXr}, s{S_T0}, v{vT+1}
    v_xor_b32 v{vXr+1}, 64, v{vXr}
    v_lshrrev_b32 v{vT+2}, 2, v{vL}
    v_and_b32 v{vT+3}, 3, v{vL}
    v_lshlrev_b32 v{vT+3}, 3, v{vT+3}
    s_lshl_b32 s{S_T0}, s{S_RB}, 12
    s_lshl_b32 s{S_T1}, s{S_CB}, 8
    s_add_u32 s{S_FO}, s{S_T0}, s{S_T1}
    s_add_u32 s{S_FO}, s{S_FO}, {WS_FLG}""")
    return vXr, vG

MF16 = "v_mfma_f32_16x16x32_bf16"
MF32 = "v_mfma_f32_32x32x16_bf16"

def w2_setup(vw2, first):
    e(f"""s_lshr_b32 s{S_T1}, s2, 3
    s_and_b32 s{S_T0}, s2, 7
    s_lshl_b32 s{S_T0}, s{S_T0}, 2
    s_and_b32 s{S_T2}, s{S_T1}, 3
    s_add_u32 s{S_R4}, s{S_T0}, s{S_T2}
    s_lshr_b32 s{S_C4}, s{S_T1}, 2
    v_lshrrev_b32 v{vT}, 2, v{vL}
    v_and_b32 v{vT}, 4, v{vT}
    v_and_b32 v{vT+1}, 7, v{vL}
    v_xor_b32 v{vT}, v{vT}, v{vT+1}
    v_lshlrev_b32 v{vT}, 4, v{vT}
    s_lshl_b32 s{S_T0}, s{S_C4}, 7
    v_add_u32 v{vT}, s{S_T0}, v{vT}
    v_lshrrev_b32 v{vT+1}, 3, v{vL}
    s_mul_i32 s{S_T0}, s{S_TG}, 448
    v_add_u32 v{vT+2}, s{S_T0}, v{vT+1}
    v_lshl_add_u32 v{vw2}, v{vT+2}, 10, v{vT}
    v_add_u32 v{vw2+1}, {8192-1024}, v{vw2}
    s_lshl_b32 s{S_MG}, s{S_TG}, 11""")
    e({0: f"s_mov_b32 s{S_OFFO}, 0",
       2: f"s_and_b32 s{S_T0}, s{S_C4}, 1\ns_lshl_b32 s{S_T0}, s{S_T0}, 2\ns_add_u32 s{S_OFFO}, s{S_T0}, s2\ns_and_b32 s{S_OFFO}, s{S_OFFO}, 7",
       3: f"s_lshl_b32 s{S_T0}, s{S_C4}, 1\ns_add_u32 s{S_OFFO}, s{S_T0}, s2\ns_and_b32 s{S_OFFO}, s{S_OFFO}, 7",
       4: f"s_and_b32 s{S_OFFO}, s2, 7",
       5: f"s_add_u32 s{S_OFFO}, s{S_C4}, s2\ns_and_b32 s{S_OFFO}, s{S_OFFO}, 7"}[OPT['rot']])
    e(f"""s_mul_i32 s{S_T1}, s{S_OFFO}, 7
    s_lshr_b32 s{S_T1}, s{S_T1}, 1
    s_lshl_b32 s{S_GW}, s{S_T1}, 14
    s_lshl_b32 s{S_GA}, s{S_T1}, 10""")
    if first: gw_advance(first)
def gw_advance(n):
    e(f"s_add_u32 s{S_GW}, s{S_GW}, {16384*n}\ns_cmp_lt_u32 s{S_GW}, {28*16384}\ns_cselect_b32 s{S_T0}, 0, {28*16384}\ns_sub_u32 s{S_GW}, s{S_GW}, s{S_T0}")

def g_stream():
    NREG = OPT['nreg']
    g = {'w2': v.alloc(2), 't': {}}
    vC = v.alloc(1); vOne = v.alloc(1)
    g_mark = v.mark()
    vWa = v.alloc(5); vWb = v.alloc(2); vCs = v.alloc(1); vSt = v.alloc(1); vN = v.alloc(1); vB1 = v.alloc(14, 2); cC = v.alloc(2, 2)
    X = v.alloc(128, 4); NF = 6; WF = v.alloc(4*NF, 4); aH = v.alloc(56, 4); aCS = aH + 48; vOnes = aH + 52
    ov = v.mark(); v.release(aH + 16)
    vXs = v.alloc(4); vDq = v.alloc(3); vDa = v.alloc(2); vDb = v.alloc(3); vP2 = v.alloc(2)
    dma_t = {}
    def nt(c, x): return " nt" if OPT['ntl'] and (c == 7 or (c == 6 and x)) else ""
    def x_ops(c):
        e(f"s_add_u32 m0, s{S_MX}, {L_X + 16384*(c%3)}\ns_add_u32 s{S_SX}, s{S_KO}, {128*c}\ns_and_b32 s{S_SX}, s{S_SX}, 1023")
        for j in range(4): dma_t[c] = e(f"buffer_load_dwordx4 v{vXs+j}, {sr(R_X,4)}, s{S_SX} offen offset:{1024*j}{nt(c,1)} lds")
    def q_ops(c):
        e(f"s_add_u32 m0, s{S_MW}, {12288*(c%3)}\ns_mul_i32 s{S_SW}, s{S_SX}, 1536")
        for j in range(3): dma_t[c] = e(f"buffer_load_dwordx4 v{vDq+j}, {sr(R_WA,4)}, s{S_SW} offen offset:{1024*j}{nt(c,0)} lds")
    def a_ops(c):
        e(f"s_add_u32 m0, s{S_MA}, {8192*c}\ns_mul_i32 s{S_SH}, s{S_SX}, 1792")
        for j in range(2): dma_t[c] = e(f"buffer_load_dwordx4 v{vDa+j}, {sr(R_W1,4)}, s{S_SH} offen offset:{1024*j}{nt(c,0)} lds")
    def b_ops(gb):
        e(f"""s_add_u32 m0, s{S_MW}, {(L_B[gb] - L_WQ) & 0xffffffff}
        s_lshl_b32 s{S_T0}, s{S_TG}, 6
        s_add_u32 s{S_T0}, s{S_T0}, s{S_KO}
        s_add_u32 s{S_T0}, s{S_T0}, {256*gb}
        s_and_b32 s{S_T0}, s{S_T0}, 1023
        s_mul_i32 s{S_SH}, s{S_T0}, 1792""")
        for j in range(3): dma_t['b'] = e(f"buffer_load_dwordx4 v{vDb+j}, {sr(R_W1,4)}, s{S_SH} offen offset:{1024*j} lds")
    def a_late(c):
        e(f"s_add_u32 s{S_SX}, s{S_KO}, {128*c}\ns_and_b32 s{S_SX}, s{S_SX}, 1023"); k = dma_t.get(c); a_ops(c); dma_t['a'] = dma_t[c]; dma_t[c] = k
    def chunk(c):
        x_ops(c); q_ops(c)
        if not OPT['alast']: a_ops(c)
    e(f"""s_lshl_b32 s{S_T0}, s{S_RB}, 7
    s_lshl_b32 s{S_T1}, s{S_TG}, 5
    s_add_u32 s{S_T0}, s{S_T0}, s{S_T1}
    v_lshrrev_b32 v{vT}, 3, v{vL}
    v_add_u32 v{vT}, s{S_T0}, v{vT}
    v_lshlrev_b32 v{vT}, 10, v{vT}
    v_lshrrev_b32 v{vT+1}, 4, v{vL}
    v_and_b32 v{vT+2}, 7, v{vL}
    v_xor_b32 v{vT+2}, v{vT+2}, v{vT+1}
    v_lshlrev_b32 v{vT+2}, 4, v{vT+2}
    v_add_u32 v{vXs}, v{vT}, v{vT+2}
    v_xor_b32 v{vT+2}, 64, v{vT+2}
    v_add_u32 v{vXs+1}, v{vT}, v{vT+2}
    v_add_u32 v{vXs+1}, 7168, v{vXs+1}
    v_add_u32 v{vXs+2}, {2*7168}, v{vXs}
    v_add_u32 v{vXs+3}, {2*7168}, v{vXs+1}
    s_lshl_b32 s{S_MX}, s{S_TG}, 12
    s_mul_i32 s{S_MW}, s{S_TG}, 3072
    s_add_u32 s{S_MW}, s{S_MW}, {L_WQ}
    s_lshl_b32 s{S_MA}, s{S_TG}, 11
    s_add_u32 s{S_MA}, s{S_MA}, {L_A}""")
    for j in range(3):
        e(f"""s_mul_i32 s{S_T0}, s{S_TG}, 192
        s_add_u32 s{S_T0}, s{S_T0}, {64*j}
        v_add_u32 v{vT}, s{S_T0}, v{vL}
        v_mul_u32_u24 v{vT+1}, 43691, v{vT}
        v_lshrrev_b32 v{vT+1}, 19, v{vT+1}
        v_mul_u32_u24 v{vT+2}, 12, v{vT+1}
        v_sub_u32 v{vT+2}, v{vT}, v{vT+2}""")
        kperm_code(vT+1, vT+3, vT+4)
        e(f"""v_lshrrev_b32 v{vT+4}, 1, v{vT+1}
        v_and_b32 v{vT+4}, 2, v{vT+4}
        v_xor_b32 v{vT+2}, v{vT+2}, v{vT+4}
        v_mul_u32_u24 v{vT+3}, 3072, v{vT+3}
        v_lshl_add_u32 v{vT+3}, v{vT+2}, 4, v{vT+3}
        v_lshrrev_b32 v{vT+4}, 3, v{vT+2}
        s_lshl_b32 s{S_T1}, s{S_CB}, 6
        s_sub_u32 s{S_T1}, 1920, s{S_T1}
        v_mad_u32_u24 v{vT+3}, v{vT+4}, s{S_T1}, v{vT+3}
        s_lshl_b32 s{S_T0}, s{S_CB}, 7
        s_sub_u32 s{S_T0}, s{S_T0}, {1024*j}
        v_add_u32 v{vDq+j}, s{S_T0}, v{vT+3}""")
    e("s_waitcnt lgkmcnt(0)")
    stamp("rt0", True); stamp("t0")
    srd(R_X, P_X, 2048*512*2); x_ops(0)
    srd(R_WA, P_WQKV, 512*1536*2); q_ops(0)
    t_c0 = dma_t[0]
    e(f"""s_and_b32 s{S_T2}, s{S_CB}, 3
    s_mul_i32 s{S_T3}, s{S_CB}, 224
    s_lshl_b32 s{S_T0}, s{S_T2}, 5
    s_add_u32 s{S_T4}, s{S_T3}, s{S_T0}
    v_lshrrev_b32 v{vT}, 3, v{vL}
    v_and_b32 v{vT+2}, 6, v{vT}
    v_and_b32 v{vT+5}, 7, v{vL}
    v_xor_b32 v{vT+2}, v{vT+2}, v{vT+5}""")
    for j in range(2):
        e(f"s_lshl_b32 s{S_T0}, s{S_TG}, 4\ns_add_u32 s{S_T0}, s{S_T0}, {8*j}\nv_add_u32 v{vT+1}, s{S_T0}, v{vT}")
        kperm_code(vT+1, vT+3, vT+4)
        e(f"""v_mul_u32_u24 v{vT+3}, 3584, v{vT+3}
        v_lshl_add_u32 v{vT+3}, v{vT+2}, 4, v{vT+3}
        s_sub_u32 s{S_T0}, s{S_T4}, {1024*j}
        v_add_u32 v{vDa+j}, s{S_T0}, v{vT+3}""")
    srd(R_W1, P_W1, 512*1792*2); a_ops(0)
    stamp("r0_issued")
    for j in range(3):
        e(f"""v_add_u32 v{vT}, {64*j}, v{vL}
        v_mul_u32_u24 v{vT+1}, 171, v{vT}
        v_lshrrev_b32 v{vT+1}, 10, v{vT+1}
        v_mul_u32_u24 v{vT+2}, 6, v{vT+1}
        v_sub_u32 v{vT+2}, v{vT}, v{vT+2}""")
        kperm_code(vT+1, vT+3, vT+4)
        e(f"""v_mul_u32_u24 v{vT+3}, 3584, v{vT+3}
        v_lshl_add_u32 v{vT+3}, v{vT+2}, 4, v{vT+3}
        v_lshrrev_b32 v{vT+2}, 1, v{vT+2}
        v_cmp_le_u32 vcc, s{S_T2}, v{vT+2}
        v_add_u32 v{vT+4}, 128, v{vT+3}
        v_cndmask_b32 v{vT+3}, v{vT+3}, v{vT+4}, vcc
        s_sub_u32 s{S_T0}, s{S_T3}, {1024*j}
        v_add_u32 v{vDb+j}, s{S_T0}, v{vT+3}""")
    if OPT['bpf']:
        e(f"""s_lshr_b32 s{S_T0}, s{S_TG}, 1
        s_lshl_b32 s{S_T0}, s{S_T0}, 6
        s_add_u32 s{S_T0}, s{S_T0}, s{S_KO}
        s_mul_i32 s{S_T0}, s{S_T0}, 1792
        s_bitcmp0_b32 s{S_TG}, 0
        s_cselect_b64 exec, -1, 0""")
        for j in range(3): e(f"buffer_load_dword v{vPF}, v{vDb+j}, {sr(R_W1,4)}, s{S_T0} offen offset:{1024*j}")
        e("s_mov_b64 exec, -1")
    srd(R_WS, P_WS, WS_SIZE)
    L1 = e.newlabel()
    e(f"""s_or_b32 s{S_T0}, s2, s{S_W}
    s_cmp_lg_u32 s{S_T0}, 0
    s_cbranch_scc1 {L1}
    s_memrealtime s[{S_EX}:{S_EX+1}]
    s_waitcnt lgkmcnt(0)
    s_or_b32 s{S_T0}, s{S_EX}, 1
    v_mov_b32 v{vT}, s{S_T0}""")
    opt_vm(f"global_store_dword v{vZ}, v{vT}, {sr(P_DBG,2)} sc1")
    e(f"{L1}:")
    vXr, vG = xread_setup()
    def late_setup():
        stale_read(G_SH, 1)
        e(f"v_lshrrev_b32 v{vT+2}, 2, v{vL}\nv_and_b32 v{vT+3}, 3, v{vL}\nv_lshlrev_b32 v{vT+3}, 3, v{vT+3}")
        b_addr(vWb)
        e(f"""v_lshl_add_u32 v{vT+4}, v{vT+2}, 7, v{vT+3}
        v_and_b32 v{vT+5}, 6, v{vT+2}
        v_lshl_add_u32 v{vT+4}, v{vT+5}, 4, v{vT+4}
        v_add_u32 v{vWa}, {L_A}, v{vT+4}
        v_xor_b32 v{vWa+1}, 32, v{vWa}
        v_xor_b32 v{vWa+2}, 64, v{vWa}
        v_xor_b32 v{vWa+3}, 96, v{vWa}
        s_lshl_b32 s{S_T0}, s{S_TG}, 5
        v_xor_b32 v{vWa+4}, s{S_T0}, v{vWa}
        v_lshlrev_b32 v{vT}, 3, v{vG}
        v_lshlrev_b32 v{vCs}, 4, v{vG}
        v_add_u32 v{vCs}, {L_CS}, v{vCs}
        v_mov_b32 v{vC}, {L_CNT}
        v_mov_b32 v{vOne}, 1
        s_lshl_b32 s{S_T2}, s{S_RB}, 2
        s_add_u32 s{S_T2}, s{S_T2}, s{S_TG}
        s_mul_i32 s{S_T2}, s{S_T2}, 144
        s_mul_i32 s{S_T1}, s{S_CB}, 7
        s_add_u32 s{S_T2}, s{S_T2}, s{S_T1}
        s_mul_i32 s{S_T3}, s{S_CB}, 224""")
        for j in range(7):
            e(f"s_and_b32 s{S_T4}, s{S_CB}, 3")
            if j < 4: e(f"s_add_u32 s{S_T4}, s{S_T4}, {j}")
            else: e(f"s_cmp_gt_u32 s{S_T4}, {j-4}\ns_cselect_b32 s{S_T4}, {j-4}, {j}")
            e(f"""s_lshl_b32 s{S_T0}, s{S_T4}, 5
            s_add_u32 s{S_T1}, s{S_T0}, s{S_T3}
            v_add_u32 v{vB1+2*j}, s{S_T1}, v{vT}
            s_add_u32 s{S_T4}, s{S_T4}, s{S_T2}
            s_lshl_b32 s{S_T4}, s{S_T4}, 10
            s_add_u32 s{S_SO+j}, s{S_T4}, {WS_ACT}""")
        e(f"""v_and_b32 v{vT}, 15, v{vL}
        s_lshl_b32 s{S_T0}, s{S_TG}, 9
        s_add_u32 s{S_T0}, s{S_T0}, {L_STATS}
        v_lshlrev_b32 v{vT}, 4, v{vT}
        v_add_u32 v{vSt}, s{S_T0}, v{vT}""")
        for i in range(4): e(f"v_mov_b32 v{vOnes+i}, 0x3f803f80")
        e(f"v_mov_b32 v{cC}, {f2u(GC0)}\nv_mov_b32 v{cC+1}, {f2u(GC1)}")
        srd(R_W2, P_W2, 1792*512*2); srd(R_WO, P_WO, 512*512*2)
        w2_setup(g['w2'], OPT['p1'] + OPT['p2'] + OPT['p3'])
        e(f"""s_add_u32 s{S_T0}, s{S_R4}, s2
        s_and_b32 s{S_T0}, s{S_T0}, 3
        s_lshl_b32 s{S_T1}, s{S_W}, 2
        s_add_u32 s{S_T0}, s{S_T0}, s{S_T1}
        s_lshl_b32 s{S_T2}, s{S_C4}, 7
        s_mul_i32 s{S_T1}, s{S_T0}, {112*1024}
        s_add_u32 s{S_T1}, s{S_T1}, s{S_T2}
        v_lshlrev_b32 v{vT}, 10, v{vL}
        v_add_u32 v{vP2}, s{S_T1}, v{vT}
        s_lshl_b32 s{S_T1}, s{S_T0}, 15
        s_add_u32 s{S_T1}, s{S_T1}, s{S_T2}
        v_add_u32 v{vP2+1}, s{S_T1}, v{vT}
        s_add_u32 s{S_PG}, s{S_R4}, s{S_C4}
        s_and_b32 s{S_PG}, s{S_PG}, {OPT['pfs']-1}""")
    late_setup()
    for j in range(7): e(f"global_load_dwordx2 {vr(vB1+2*j,2)}, v{vB1+2*j}, {sr(P_B1,2)}")
    stamp("setup_done")
    if OPT['npro']: chunk(1)
    e.wait(vm=t_c0)
    e("s_barrier")
    stamp("c0_landed")
    def stash(c):
        for kk in range(2):
            for f in range(2):
                e(f"ds_read_b128 {vr(X + 16*c + 8*kk + 4*f, 4)}, v{vXr+kk} offset:{L_X + 16384*(c%3) + 2048*f}")
    stash(0)
    if not OPT['npro']: chunk(1)
    chunk(2)

    def pf2(t):
        t -= OPT['pf0']
        if not 0 <= t < OPT['pfs']*OPT['pf2']: return
        u, gam = divmod(t, OPT['pfs'])
        e(f"s_cmp_eq_u32 s{S_PG}, {gam}\ns_cselect_b32 exec_lo, {'0xffff' if u == 3 else '-1'}, 0\ns_mov_b32 exec_hi, 0")
        if u < 4: e(f"s_mov_b32 s{S_T4}, {32768*u}\nbuffer_load_dword v{vPF}, v{vP2}, {sr(R_W2,4)}, s{S_T4} offen")
        else: e(f"buffer_load_dword v{vPF}, v{vP2+1}, {sr(R_WO,4)}, 0 offen")
        e("s_mov_b64 exec, -1")
    def g_dma(s):
        gam = RING[s % NRING]
        e(f"s_add_u32 m0, s{S_MG}, {8192*gam}")
        if s < 28: vv, R, so = g['w2'], R_W2, S_GW
        else:
            vv, R, so = g['wo'], R_WO, S_T4
            e(f"s_add_u32 s{S_T4}, s{S_OFFO}, {s-28}\ns_and_b32 s{S_T4}, s{S_T4}, 7\ns_lshl_b32 s{S_T4}, s{S_T4}, 14")
        e(f"buffer_load_dwordx4 v{vv}, {sr(R,4)}, s{so} offen lds")
        g['t'][s] = e(f"buffer_load_dwordx4 v{vv+1}, {sr(R,4)}, s{so} offen offset:1024 lds")
        if s < 27:
            e(f"s_add_u32 s{S_GW}, s{S_GW}, 16384\ns_cmp_lt_u32 s{S_GW}, {28*16384}\ns_cselect_b32 s{S_GW}, s{S_GW}, 0")
    for c in range(7):
        e.wait(vm=dma_t[c+1])
        if OPT['alast'] and c == 6: e.wait(vm=dma_t['a'])
        e.wait_all(vm=False)
        e("s_barrier")
        if OPT['fine'] or c in (0, 6): stamp(f"b{c}b")
        stash(c+1)
        pf2(2*c)
        if c + 3 < 8:
            chunk(c+3)
            if OPT['alast'] and c == 4:
                for k in range(1, 8): a_late(k)
        else: b_ops(2*(c-5)); b_ops(2*(c-5)+1)
        pf2(2*c+1)
        if c == 5: e(f"global_load_dword v{vN}, v{vZ}, {sr(P_DBG,2)} sc1")
    stamp("l1_end")
    assert v.mark() <= aCS
    v.release(ov)
    stt = X + 72; tm = X + 80; bb = X + 88; cs = X + 92; hp = cs
    jobs = [(j, ks) for j in [-1] + list(range(7)) for ks in range(16)]
    LA = 4; ft = {}; issued = [0]
    def half_read(m):
        n, h2 = divmod(m, 2); j, ks = jobs[n]; d = WF + 4*(n % NF)
        if j < 4: ft[n] = e(f"ds_read_b64_tr_b16 {vr(d+2*h2,2)}, v{vWa + (4 if j < 0 else j)} offset:{4096*ks + 2048*h2}")
        else: ft[n] = e(b_read(d+2*h2, vWb, ks, h2, j-4))
    def ahead(m):
        while issued[0] <= min(m, 2*len(jobs)-1): half_read(issued[0]); issued[0] += 1
    def Mph(j):
        for ks in range(16):
            n = 16*(j+1) + ks; d = vr(WF + 4*(n % NF), 4)
            ahead(2*(n + LA) - 1); e.wait(lg=ft[n])
            if j < 0: e(f"{MF16} {vr(aCS,4)}, {d}, {vr(vOnes,4)}, {'0' if ks == 0 else vr(aCS,4)}")
            else:
                for f in range(2):
                    acc = aH + 8*j + 4*f
                    e(f"{MF16} {vr(acc,4)}, {d}, {vr(X + 8*ks + 4*f, 4)}, {'0' if ks == 0 else vr(acc,4)}")
                    ahead(2*(n + LA) + f)
    hs = []; tcs = {}
    def cs_read(j): tcs[j] = e(f"ds_read_b128 {vr(cs+4*j,4)}, v{vCs} offset:{64*j}")
    def Gph(j, mid=()):
        A = aH + 8*j; C4 = cs + 4*j; mid = list(mid)
        e(f"""v_lshlrev_b32 v{bb}, 16, v{vB1+2*j}
        v_and_b32 v{bb+1}, 0xffff0000, v{vB1+2*j}
        v_lshlrev_b32 v{bb+2}, 16, v{vB1+2*j+1}
        v_and_b32 v{bb+3}, 0xffff0000, v{vB1+2*j+1}""")
        if mid: mid.pop(0)()
        e.wait(lg=tcs[j])
        P4 = range(4); I8 = range(8)
        S4 = lambda p: stt + 4*(p//2)
        S8 = lambda i: stt + 4*(i//4)
        if j < OPT['npk']:
            for p in P4: e(f"v_pk_fma_f32 {vr(tm+2*p,2)}, {vr(C4+2*(p%2),2)}, {vr(S4(p),2)}, {vr(bb+2*(p%2),2)} op_sel:[0,1,0] op_sel_hi:[1,1,1]")
            for p in P4: e(f"v_pk_fma_f32 {vr(A+2*p,2)}, {vr(A+2*p,2)}, {vr(S4(p),2)}, {vr(tm+2*p,2)} op_sel_hi:[1,0,1]")
            for p in P4: e(f"v_pk_mul_f32 {vr(tm+2*p,2)}, {vr(A+2*p,2)}, {vr(A+2*p,2)}")
            for p in P4: e(f"v_pk_fma_f32 {vr(tm+2*p,2)}, {vr(tm+2*p,2)}, {vr(cC,2)}, {vr(cC,2)} op_sel:[0,1,0] op_sel_hi:[1,1,0]")
            for p in P4: e(f"v_pk_mul_f32 {vr(tm+2*p,2)}, {vr(tm+2*p,2)}, {vr(A+2*p,2)}")
        else:
            for i in I8: e(f"v_fma_f32 v{tm+i}, v{C4+i%4}, v{S8(i)+1}, v{bb+i%4}")
            for i in I8: e(f"v_fma_f32 v{A+i}, v{A+i}, v{S8(i)}, v{tm+i}")
            for i in I8: e(f"v_mul_f32 v{tm+i}, v{A+i}, v{A+i}")
            for i in I8: e(f"v_fma_f32 v{tm+i}, v{tm+i}, v{cC+1}, v{cC}")
            for i in I8: e(f"v_mul_f32 v{tm+i}, v{tm+i}, v{A+i}")
        if mid: mid.pop(0)()
        for i in I8: e(f"v_exp_f32 v{tm+i}, v{tm+i}")
        if j < OPT['npk']:
            for p in P4: e(f"v_pk_fma_f32 {vr(tm+2*p,2)}, {vr(tm+2*p,2)}, {vr(S4(p)+2,2)}, {vr(S4(p)+2,2)} op_sel_hi:[1,0,0]")
        else:
            for i in I8: e(f"v_fma_f32 v{tm+i}, v{tm+i}, v{S8(i)+2}, v{S8(i)+2}")
        if mid: mid.pop(0)()
        for i in I8: e(f"v_rcp_f32 v{tm+i}, v{tm+i}")
        if j < OPT['npk']:
            for p in P4: e(f"v_pk_mul_f32 {vr(A+2*p,2)}, {vr(A+2*p,2)}, {vr(tm+2*p,2)}")
        else:
            for i in I8: e(f"v_mul_f32 v{A+i}, v{A+i}, v{tm+i}")
        P = C4
        for i in range(4): e(f"v_cvt_pk_bf16_f32 v{P+i}, v{A+2*i}, v{A+2*i+1}")
        e(f"v_permlane16_swap_b32 v{P}, v{P+2}\nv_permlane16_swap_b32 v{P+1}, v{P+3}")
        hs.append(e(f"buffer_store_dwordx4 {vr(P,4)}, v{vL16}, {sr(R_WS,4)}, s{S_SO+j} offen sc1"))
        for f in mid: f()
    Mph(-1); Mph(0)
    e(f"""s_lshl_b32 s{S_T0}, s{S_TG}, 6
    v_add_u32 v{vT}, s{S_T0}, v{vCs}
    s_mov_b32 exec_lo, 0x00010001
    s_mov_b32 exec_hi, 0x00010001
    ds_write_b128 v{vT}, {vr(aCS,4)}
    s_mov_b64 exec, -1""")
    assert OPT['p1'] <= 3 and OPT['p1'] + OPT['p2'] <= 10 and 1 <= OPT['e1'] <= 3
    for j in range(1, 7):
        if j == OPT['e1']:
            stamp("m1_end")
            e.wait(vm=dma_t['b'])
            get_nonce(vN)
            e.wait_all(vm=False)
            e("s_barrier")
            stamp("xchg_bar")
            if OPT['gprio']: e("s_setprio 2")
        if j == 6: e(f"ds_read_b32 v{vT}, v{vC} offset:{C_CSB}")
        Mph(j)
        if j == 3: lds_arrive(vC, vOne, C_AFREE); fstamp("m3_end")
    lds_arrive(vC, vOne, C_GDONE)
    lds_wait(vC, vT, 4, C_CSB, True)
    stamp("m6_end")
    e(f"ds_read_b128 {vr(stt,4)}, v{vSt}\nds_read_b128 {vr(stt+4,4)}, v{vSt} offset:256")
    for j in range(7): cs_read(j)
    for j in range(7): Gph(j)
    lds_arrive(vC, vOne, C_GELU)
    th = hs[-1]
    stamp("gelu_end")
    NPRE = OPT['p1'] + OPT['p2'] + OPT['p3']; NREG = min(NREG, NPRE)
    v.release(g_mark)
    g['wo'] = v.alloc(2); vR = v.alloc(6); vA = v.alloc(2); vOm = v.alloc(1); vB2 = v.alloc(8, 2)
    FR = v.alloc(max(8*NREG, 24), 4)
    acc = v.alloc(64, 4); fa = [v.alloc(8, 4), v.alloc(8, 4)]; ab = v.alloc(max(8*DACT, 48), 4)
    assert hp >= FR + 8*NREG
    rt = {}
    def wreg(s): return FR + 8*s if s < NREG else fa[s % 2]
    def tr_reads(s):
        gam = RING[s % NRING]; win = gam // 6; off = 8192*gam - 49152*win
        if s in g['t']: e.wait(vm=g['t'][s])
        for ch in range(2):
            for h2 in range(2):
                rt[s] = e(f"ds_read_b64_tr_b16 {vr(wreg(s)+4*ch+2*h2,2)}, v{vR+2*win+ch} offset:{off+512*h2}")
    srd(R_OUT, P_OUT, 2048*512*2)
    e(f"""v_and_b32 v{vT}, 1023, v{g['w2']}
    v_lshrrev_b32 v{vT+1}, 3, v{vL}
    v_and_b32 v{vT+1}, 3, v{vT+1}
    v_lshrrev_b32 v{vT+2}, 5, v{vL}
    v_lshl_add_u32 v{vT+1}, v{vT+2}, 3, v{vT+1}
    s_lshl_b32 s{S_T0}, s{S_W}, 7
    v_add_u32 v{vT+1}, s{S_T0}, v{vT+1}
    v_lshl_add_u32 v{g['wo']}, v{vT+1}, 10, v{vT}
    v_add_u32 v{g['wo']+1}, {4096-1024}, v{g['wo']}
    v_lshrrev_b32 v{vT}, 5, v{vL}
    v_lshlrev_b32 v{vT}, 10, v{vT}
    v_lshrrev_b32 v{vT+1}, 2, v{vL}
    v_and_b32 v{vT+1}, 3, v{vT+1}
    v_lshl_add_u32 v{vT}, v{vT+1}, 7, v{vT}
    v_and_b32 v{vT+1}, 2, v{vT+1}
    v_lshl_add_u32 v{vT}, v{vT+1}, 5, v{vT}
    v_and_b32 v{vT+1}, 16, v{vL}
    v_lshl_add_u32 v{vT}, v{vT+1}, 1, v{vT}
    v_and_b32 v{vT+1}, 3, v{vL}
    v_lshl_add_u32 v{vT}, v{vT+1}, 3, v{vT}
    s_and_b32 s{S_T0}, s{S_W}, 1
    s_lshl_b32 s{S_T0}, s{S_T0}, 6
    v_xor_b32 v{vT}, s{S_T0}, v{vT}
    v_add_u32 v{vR}, s{S_MG}, v{vT}
    v_xor_b32 v{vR+1}, 64, v{vR}
    v_add_u32 v{vR+2}, 49152, v{vR}
    v_add_u32 v{vR+3}, 49152, v{vR+1}
    v_add_u32 v{vR+4}, 98304, v{vR}
    v_add_u32 v{vR+5}, 98304, v{vR+1}""")
    e(f"""s_lshr_b32 s{S_T0}, s{S_R4}, 1
    s_lshl_b32 s{S_T0}, s{S_T0}, 2
    s_add_u32 s{S_T0}, s{S_T0}, s{S_W}
    s_lshl_b32 s{S_T0}, s{S_T0}, 10
    s_add_u32 s{S_T0}, s{S_T0}, {WS_FLG + 65536}
    s_add_u32 s{G_FB}, s{P_WS}, s{S_T0}
    s_addc_u32 s{G_FB+1}, s{P_WS+1}, 0
    s_mul_i32 s{S_T0}, s{S_R4}, 288
    s_mul_i32 s{S_T1}, s{S_W}, 28
    s_add_u32 s{S_T0}, s{S_T0}, s{S_T1}
    s_lshl_b32 s{S_T0}, s{S_T0}, 10
    s_add_u32 s{S_T0}, s{S_T0}, {WS_ACT}
    s_add_u32 s{S_T1}, s{S_T0}, {144*1024}
    s_cmp_ge_u32 s{S_W}, 2
    s_cselect_b32 s{S_T2}, s{S_T1}, s{S_T0}
    s_cselect_b32 s{S_T3}, s{S_T0}, s{S_T1}
    v_add_u32 v{vA}, s{S_T2}, v{vL16}
    v_add_u32 v{vA+1}, s{S_T3}, v{vL16}
    s_and_b32 s{S_T0}, s{S_W}, 1
    s_lshl_b32 s{S_T0}, s{S_T0}, 6
    s_lshl_b32 s{S_T1}, s{S_C4}, 7
    s_add_u32 s{S_T0}, s{S_T0}, s{S_T1}
    v_lshrrev_b32 v{vT+2}, 5, v{vL}
    v_lshlrev_b32 v{vT+2}, 3, v{vT+2}
    v_add_u32 v{vT+2}, s{S_T0}, v{vT+2}""")
    for gi in range(4): e(f"global_load_dwordx2 {vr(vB2+2*gi,2)}, v{vT+2}, {sr(P_B2,2)} offset:{16*gi}")
    lds_wait(vC, vT, 8, C_GDONE)
    e.wait(vm=th)
    stamp("pub_h")
    publish(G_SH, 1)
    if OPT['gprio']: e("s_setprio 0")
    NST = min(NRING + NREG, NPRE + OPT['npost'])
    for s in range(NPRE, min(NST, NRING)): g_dma(s)
    e(f"s_lshl_b32 s{S_T0}, s{S_TG}, 2\nv_add_u32 v{vT}, s{S_T0}, v{vC}")
    lds_wait(vT, vT+1, 1, C_RISS)
    for s in range(NREG): tr_reads(s)
    e.wait_all(vm=False)
    rest = list(range(NRING, NST))
    for s in rest[:-5]: g_dma(s)
    if OPT['hearly']: e(flag_read([256*i for i in range(4)], G_FD, G_FB))
    for s in rest[-5:]: g_dma(s)
    stamp("wpre")
    poll([256*i for i in range(4)], G_FD, G_FB, OPT['hearly'])
    stamp("h_seen")
    at = {}
    def act_load(s):
        sl = ab + 8*(s % DACT)
        if s == 28:
            e(f"""s_mul_i32 s{S_T0}, s{S_W}, {-20*1024}
            s_add_u32 s{S_T0}, s{S_T0}, {112*1024}
            v_add_u32 v{vA}, s{S_T0}, v{vA}
            v_add_u32 v{vA+1}, s{S_T0}, v{vA+1}""")
        if s >= 28:
            e(f"s_add_u32 s{S_GA}, s{S_OFFO}, {s-28}\ns_and_b32 s{S_GA}, s{S_GA}, 7\ns_lshl_b32 s{S_GA}, s{S_GA}, 10")
        e(f"buffer_load_dwordx4 {vr(sl,4)}, v{vA}, {sr(R_WS,4)}, s{S_GA} offen sc1")
        at[s] = e(f"buffer_load_dwordx4 {vr(sl+4,4)}, v{vA+1}, {sr(R_WS,4)}, s{S_GA} offen sc1")
        if s < 27:
            e(f"s_add_u32 s{S_GA}, s{S_GA}, 1024\ns_cmp_lt_u32 s{S_GA}, {28*1024}\ns_cselect_b32 s{S_GA}, s{S_GA}, 0")
    for s in range(DACT): act_load(s)
    if NREG == 0: tr_reads(0)
    tf = None; nxt = [NST]
    for s in range(36):
        if NREG <= s + 1 < 36: tr_reads(s+1)
        e.wait(vm=at[s], lg=rt[s])
        sl = ab + 8*(s % DACT)
        for ch in range(2):
            for tk in range(2):
                a = acc + 16*(2*tk + ch)
                e(f"{MF32} {vr(a,16)}, {vr(wreg(s)+4*ch,4)}, {vr(sl+4*tk,4)}, {'0' if s == 0 else vr(a,16)}")
        if s in (0, 4, 8, 12, 16, 24, 28, 32): stamp(f"g{s}")
        if s == 28 - DACT - 4:
            e(flag_read([65536 + 256*i for i in range(4)], G_FD, G_FB))
        if s + DACT == 28:
            stamp("pre_opoll")
            poll([65536 + 256*i for i in range(4)], G_FD, G_FB, True)
            stamp("o_seen")
            e(f"""s_lshr_b32 s{S_T0}, s{S_W}, 1
            s_lshl_b32 s{S_T0}, s{S_T0}, 7
            s_lshl_b32 s{S_T1}, s{S_R4}, 8
            s_add_u32 s{S_T0}, s{S_T0}, s{S_T1}
            s_lshl_b32 s{S_T1}, s{S_W}, 13
            s_add_u32 s{S_T0}, s{S_T0}, s{S_T1}
            s_add_u32 s{S_T0}, s{S_T0}, {WS_OMG}
            v_and_b32 v{vT}, 31, v{vL}
            v_lshlrev_b32 v{vT}, 2, v{vT}""")
            e(f"buffer_load_dword v{vOm}, v{vT}, {sr(R_WS,4)}, s{S_T0} offen sc1")
        if s + DACT < 36: act_load(s + DACT)
        while nxt[0] < 36 and nxt[0] <= s + OPT['lw'] and nxt[0] - NRING <= s:
            g_dma(nxt[0]); nxt[0] += 1
    stamp("g_loop_end")
    vW = vR; red = ab; bb = FR
    e(f"v_add_u32 v{vW}, s{S_MG}, v{vL16}")
    for j in range(1, 4): e(f"v_xor_b32 v{vW+j}, {2048*j}, v{vW}")
    for gi in range(4):
        e(f"""v_lshlrev_b32 v{bb+4*gi}, 16, v{vB2+2*gi}
        v_and_b32 v{bb+4*gi+1}, 0xffff0000, v{vB2+2*gi}
        v_lshlrev_b32 v{bb+4*gi+2}, 16, v{vB2+2*gi+1}
        v_and_b32 v{bb+4*gi+3}, 0xffff0000, v{vB2+2*gi+1}""")
    for j in (2, 1, 3):
        for gi in range(4):
            e(f"ds_write_b128 v{vW}, {vr(acc+16*j+4*gi,4)} offset:{8192*(2*j+gi//2)+1024*(gi%2)}")
    fin = acc
    for i in range(16): e(f"v_fma_f32 v{fin+i}, v{vOm}, v{bb+i}, v{fin+i}")
    e(f"""v_and_b32 v{vT}, 31, v{vL}
    v_lshrrev_b32 v{vT+1}, 5, v{vL}
    s_and_b32 s{S_T1}, s{S_W}, 1
    s_lshl_b32 s{S_T1}, s{S_T1}, 2
    v_add_u32 v{vT+1}, s{S_T1}, v{vT+1}
    v_and_b32 v{vT+2}, 7, v{vL}
    v_xor_b32 v{vT+1}, v{vT+1}, v{vT+2}
    v_lshlrev_b32 v{vT+1}, 4, v{vT+1}
    v_lshl_add_u32 v{vT+1}, v{vT}, 7, v{vT+1}
    s_lshr_b32 s{S_T0}, s{S_W}, 1
    s_lshl_b32 s{S_T0}, s{S_T0}, 12
    s_add_u32 s{S_T0}, s{S_T0}, {L_VSCR}
    v_add_u32 v{vT+1}, s{S_T0}, v{vT+1}
    v_xor_b32 v{vT+3}, 32, v{vT+1}
    v_lshrrev_b32 v{vT}, 3, v{vL}
    v_xor_b32 v{vT+4}, v{vT}, v{vT+2}
    v_lshlrev_b32 v{vT+4}, 4, v{vT+4}
    v_lshl_add_u32 v{vT+4}, v{vT}, 7, v{vT+4}
    s_lshl_b32 s{S_T0}, s{S_W}, 11
    s_add_u32 s{S_T0}, s{S_T0}, {L_VSCR}
    v_add_u32 v{vT+4}, s{S_T0}, v{vT+4}
    v_lshlrev_b32 v{vT}, 10, v{vT}
    v_lshl_add_u32 v{vT}, v{vT+2}, 4, v{vT}
    s_lshl_b32 s{S_T0}, s{S_W}, 4
    s_lshl_b32 s{S_T1}, s{S_R4}, 6
    s_add_u32 s{S_T0}, s{S_T0}, s{S_T1}
    s_lshl_b32 s{S_T0}, s{S_T0}, 10
    s_lshl_b32 s{S_T1}, s{S_C4}, 7
    s_add_u32 s{S_T0}, s{S_T0}, s{S_T1}
    s_add_u32 s{S_T1}, s{S_T0}, 8192""")
    e.wait_all(vm=False)
    e("s_barrier")
    stamp("red_bar")
    tks = []
    for j in range(1, 4):
        for gi in range(4):
            tks.append(e(f"ds_read_b128 {vr(red+16*(j-1)+4*gi,4)}, v{vW+j} offset:{8192*(2*j+gi//2)+1024*(gi%2)}"))
    for j in range(3):
        for gi in range(4):
            e.wait(lg=tks[4*j+gi])
            for i in (4*gi, 4*gi+2): e(f"v_pk_add_f32 {vr(fin+i,2)}, {vr(fin+i,2)}, {vr(red+16*j+i,2)}")
    P = FR + 16
    for i in range(8): e(f"v_cvt_pk_bf16_f32 v{P+i}, v{fin+2*i}, v{fin+2*i+1}")
    e(f"""v_permlane32_swap_b32 v{P}, v{P+2}
    v_permlane32_swap_b32 v{P+1}, v{P+3}
    v_permlane32_swap_b32 v{P+4}, v{P+6}
    v_permlane32_swap_b32 v{P+5}, v{P+7}
    ds_write_b128 v{vT+1}, {vr(P,4)}
    ds_write_b128 v{vT+3}, {vr(P+4,4)}""")
    e.wait_all(vm=False)
    e("s_barrier")
    t0 = e(f"ds_read_b128 {vr(P,4)}, v{vT+4}")
    t1 = e(f"ds_read_b128 {vr(P+4,4)}, v{vT+4} offset:1024")
    osc = ["", " sc1", " nt"][OPT['outsc']]
    e.wait(lg=t0)
    e(f"buffer_store_dwordx4 {vr(P,4)}, v{vT}, {sr(R_OUT,4)}, s{S_T0} offen{osc}")
    e.wait(lg=t1)
    e(f"buffer_store_dwordx4 {vr(P+4,4)}, v{vT}, {sr(R_OUT,4)}, s{S_T1} offen{osc}")
    stamp_flush()
    e("s_endpgm")

def a_stream():
    vw2 = v.alloc(2); vVo = v.alloc(1); vGa = v.alloc(1); vFl = v.alloc(1); vPM = v.alloc(8); a_mark = v.mark()
    S_SO, S_SC, S_KB, S_NV, S_HEAD, S_TQ = A_SO, A_SC, A_KB, A_NV, S_R4, S_C4
    Vv = 172
    e("s_waitcnt lgkmcnt(0)")
    stamp("rt0", True); stamp("t0")
    L1 = e.newlabel()
    e(f"s_cmp_lg_u32 s{S_W}, 4\ns_cbranch_scc1 {L1}\ns_mov_b32 m0, {L_GW}")
    opt_vm(f"global_load_lds_dwordx4 v{vL16}, {sr(P_GW,2)}")
    e(f"{L1}:")
    srd(R_WS, P_WS, WS_SIZE)
    w2_setup(vw2, 0)
    e(f"s_mov_b32 s0, s{S_GW}\ns_mov_b32 s1, s{S_MG}")
    e(f"""s_add_u32 s{S_T0}, s{S_R4}, s2
    s_and_b32 s{S_T0}, s{S_T0}, 3
    s_lshl_b32 s{S_T1}, s{S_TG}, 2
    s_add_u32 s{S_T0}, s{S_T0}, s{S_T1}
    s_lshl_b32 s{S_T2}, s{S_C4}, 7
    s_mul_i32 s{S_T1}, s{S_T0}, {112*1024}
    s_add_u32 s96, s{S_T1}, s{S_T2}""")
    L1 = e.newlabel()
    q = e.lgq
    e(f"""s_cmp_lg_u32 s{S_W}, 5
    s_cbranch_scc1 {L1}
    v_mov_b32 v{vT}, 0x3f803f80
    v_mov_b32 v{vT+1}, 0x3f803f80
    v_lshlrev_b32 v{vT+2}, 3, v{vL}
    v_add_u32 v{vT+2}, {L_ONES}, v{vT+2}
    ds_write_b64 v{vT+2}, v[{vT}:{vT+1}]
    ds_write_b64 v{vT+2}, v[{vT}:{vT+1}] offset:512
    v_lshlrev_b32 v{vT+4}, 2, v{vL}
    v_add_u32 v{vT+4}, {L_CNT}, v{vT+4}
    ds_write_b32 v{vT+4}, v{vZ}
    s_waitcnt lgkmcnt(0)
    {L1}:""")
    e.lgq = q
    vXr, vG = xread_setup()
    stale_read(A_SQ, 0); stale_read(A_SOo, 2)
    vWq = v.alloc(2); vGw = v.alloc(2); vSw = v.alloc(1); vOw = v.alloc(1); vN = v.alloc(1); vWb = v.alloc(2); vCw = v.alloc(1)
    b_addr(vWb)
    e(f"""s_min_u32 s{S_T0}, s{S_TG}, 2
    s_lshl_b32 s{S_T0}, s{S_T0}, 5
    v_add_u32 v{vWb}, s{S_T0}, v{vWb}
    v_add_u32 v{vWb+1}, s{S_T0}, v{vWb+1}
    s_lshl_b32 s{S_T0}, s{S_T0}, 1
    s_add_u32 s{S_T0}, s{S_T0}, {L_CS + 256}
    v_lshlrev_b32 v{vCw}, 4, v{vG}
    v_add_u32 v{vCw}, s{S_T0}, v{vCw}""")
    e(f"""v_mul_u32_u24 v{vT+4}, 192, v{vT+2}
    v_add_u32 v{vT+4}, v{vT+4}, v{vT+3}
    v_add_u32 v{vT+4}, {L_WQ}, v{vT+4}
    v_and_b32 v{vT+5}, 1, v{vG}
    v_lshlrev_b32 v{vT+5}, 5, v{vT+5}
    v_add_u32 v{vWq}, v{vT+4}, v{vT+5}
    v_sub_u32 v{vWq+1}, v{vT+4}, v{vT+5}
    v_and_b32 v{vT}, 1, v{vL}
    v_mul_u32_u24 v{vT}, {L_ONES-L_GW}, v{vT}
    v_lshlrev_b32 v{vT+1}, 4, v{vG}
    v_sub_u32 v{vT+1}, v{vT+1}, v{vT}
    v_add_u32 v{vGw}, {L_ONES}, v{vT+1}
    v_and_b32 v{vT}, 15, v{vL}
    s_lshl_b32 s{S_T0}, s{S_TG}, 5
    v_add_u32 v{vT+1}, s{S_T0}, v{vT}
    v_lshlrev_b32 v{vSw}, 4, v{vT+1}
    v_add_u32 v{vSw}, {L_STATS}, v{vSw}
    s_lshl_b32 s{S_T0}, s{S_RB}, 9
    s_add_u32 s{S_T0}, s{S_T0}, {WS_OMG}
    s_lshl_b32 s{S_T1}, s{S_CB}, 11
    s_add_u32 s{S_T0}, s{S_T0}, s{S_T1}
    s_and_b32 s{S_T1}, s{S_CB}, 3
    s_cselect_b32 s{S_T0}, {WS_SIZE}, s{S_T0}
    v_lshlrev_b32 v{vOw}, 2, v{vT+1}
    v_add_u32 v{vOw}, s{S_T0}, v{vOw}
    s_lshl_b32 s{S_T1}, s{S_RB}, 2
    s_add_u32 s{S_T1}, s{S_T1}, s{S_TG}
    s_lshl_b32 s{S_T0}, s{S_CB}, 8
    s_add_u32 s{S_T0}, s{S_T0}, s{S_T1}
    s_lshl_b32 s{S_SO}, s{S_T0}, 10
    s_lshl_b32 s{S_T0}, s{S_CB}, 7
    s_add_u32 s{S_T0}, s{S_T0}, s{S_T1}
    s_add_u32 s{S_T0}, s{S_T0}, 4096
    s_lshl_b32 s{S_SO+4}, s{S_T0}, 10
    s_add_u32 s{S_SO+5}, s{S_SO+4}, 65536
    s_cmp_lt_u32 s{S_CB}, 8
    s_cselect_b32 s{S_SC}, {QSCALE}, 1.0""")
    for j in range(1, 4): e(f"s_add_u32 s{S_SO+j}, s{S_SO}, {65536*j}")
    for r, m in ((S_C1, 0x22222222), (S_C2, 0x44444444), (S_C3, 0x88888888)):
        e(f"s_mov_b32 s{r}, {hex(m)}\ns_mov_b32 s{r+1}, {hex(m)}")
    aQ = v.alloc(48, 4); aGR = v.alloc(8, 4); aSM = v.alloc(8, 4)
    fm = v.mark()
    fX = [v.alloc(8, 4) for _ in range(2)]; fW = [v.alloc(24, 4) for _ in range(2)]; fG = [v.alloc(4, 4) for _ in range(2)]
    k_top = v.mark(); assert k_top <= Vv + 7
    e(f"""s_and_b32 s{S_T0}, s{S_TG}, 1
    s_lshl_b32 s{S_HEAD}, s{S_CB}, 1
    s_add_u32 s{S_HEAD}, s{S_HEAD}, s{S_T0}
    s_and_b32 s{S_T0}, s{S_TG}, 2
    s_lshl_b32 s{S_TQ}, s{S_RB}, 2
    s_add_u32 s{S_TQ}, s{S_TQ}, s{S_T0}""")
    for kind in range(3):
        if kind < 2: e(f"s_lshr_b32 s{S_T0}, s{S_CB}, 1\ns_lshl_b32 s{S_T0}, s{S_T0}, 8\ns_add_u32 s{S_T0}, s{S_T0}, {WS_FLG + 2048*kind}")
        else: e(f"s_lshl_b32 s{S_T0}, s{S_CB}, 8\ns_add_u32 s{S_T0}, s{S_T0}, {WS_FLG}")
        for d in range(1 if kind == 0 else 3):
            e(f"""s_sub_i32 s{S_T1}, s{S_RB}, {d}
            s_max_i32 s{S_T1}, s{S_T1}, 0
            s_lshl_b32 s{S_T1}, s{S_T1}, 12
            s_add_u32 s{A_FO[0 if kind == 0 else 1 + 3*(kind-1) + d]}, s{S_T1}, s{S_T0}""")
    e(f"""v_and_b32 v{vT}, 31, v{vL}
    s_and_b32 s{S_T0}, s{S_TG}, 2
    s_lshl_b32 s{S_T0}, s{S_T0}, 9
    s_add_u32 s{S_T0}, s{S_T0}, {L_STATS + 12}
    v_lshlrev_b32 v{vT+1}, 4, v{vT}
    v_add_u32 v{vGa}, s{S_T0}, v{vT+1}
    s_lshl_b32 s{S_T0}, s{S_TG}, 2
    s_add_u32 s{S_T0}, s{S_T0}, {L_CNT + C_RISS}
    v_mov_b32 v{vFl}, s{S_T0}
    v_lshrrev_b32 v{vT+2}, 5, v{vL}
    v_lshlrev_b32 v{vT+3}, 2, v{vT+2}
    v_sub_u32 v{vT+3}, v{vT}, v{vT+3}""")
    for r in range(16):
        e(f"v_cmp_le_i32 s[{S_MASK+2*r}:{S_MASK+2*r+1}], {8*(r//4) + r%4}, v{vT+3}")
    e(f"v_mov_b32 v{vT+4}, 0xffff\nv_mov_b32 v{vT+5}, 0xffff0000")
    for i in range(8):
        e(f"""v_cndmask_b32 v{vPM+i}, 0, v{vT+4}, s[{S_MASK+4*i}:{S_MASK+4*i+1}]
        v_cndmask_b32 v{vVo}, 0, v{vT+5}, s[{S_MASK+4*i+2}:{S_MASK+4*i+3}]
        v_or_b32 v{vPM+i}, v{vPM+i}, v{vVo}""")
    e(f"""v_and_b32 v{vVo}, 15, v{vL}
    v_lshl_add_u32 v{vVo}, v{vT+2}, 4, v{vVo}
    v_and_b32 v{vT+4}, 16, v{vL}
    v_lshl_add_u32 v{vVo}, v{vT+4}, 1, v{vVo}
    v_lshlrev_b32 v{vVo}, 4, v{vVo}
    s_lshl_b32 s{S_KB}, s{S_HEAD}, 6
    s_add_u32 s{S_KB}, s{S_KB}, s{S_TQ}
    s_lshl_b32 s{S_KB}, s{S_KB}, 10
    s_sub_i32 s{S_NV}, 8, s{S_TQ}
    s_max_i32 s{S_NV}, s{S_NV}, 0""")
    for i in range(10):
        e(f"s_cmp_gt_u32 s{S_NV}, {i}\ns_cselect_b32 s{S_T0}, 0, 0x3f803f80\nv_mov_b32 v{Vv+8*i+7}, s{S_T0}")
        for k in range(4, 7):
            if Vv+8*i+k >= k_top: e(f"v_mov_b32 v{Vv+8*i+k}, v{Vv+8*i+7}")
    def reads(ks):
        c, kk = divmod(ks, 2); s = c % 3; b = ks % 2
        R = [("x0", f"ds_read_b128 {vr(fX[b],4)}, v{vXr+kk} offset:{L_X+16384*s}"),
             ("x1", f"ds_read_b128 {vr(fX[b]+4,4)}, v{vXr+kk} offset:{L_X+16384*s+2048}")]
        pre = f"s_add_u32 s{S_KG}, s{S_KO}, {128*c}\ns_and_b32 s{S_KG}, s{S_KG}, 1023\nv_add_u32 v{vGw+1}, s{S_KG}, v{vGw}\n" if kk == 0 else ""
        R.append(("g", pre + f"ds_read_b128 {vr(fG[b],4)}, v{vGw+1} offset:{64*kk}"))
        for t in range(6):
            for h2 in range(2):
                R.append((f"w{t}", f"ds_read_b64_tr_b16 {vr(fW[b]+4*t+2*h2,2)}, v{vWq+(t&1)} offset:{12288*s+6144*kk+3072*h2+32*t}"))
        return R
    def mfmas(ks):
        b = ks % 2; c0 = (lambda r: "0") if ks == 0 else (lambda r: vr(r, 4))
        M = []
        for f in range(2): M.append(((f"x{f}",), f"{MF16} {vr(aGR+4*f,4)}, {vr(fX[b]+4*f,4)}, {vr(fX[b]+4*f,4)}, {c0(aGR+4*f)}"))
        for f in range(2): M.append((("g",), f"{MF16} {vr(aSM+4*f,4)}, {vr(fG[b],4)}, {vr(fX[b]+4*f,4)}, {c0(aSM+4*f)}"))
        for t in range(6):
            for f in range(2):
                acc = aQ + 8*t + 4*f
                opA, opB = vr(fW[b]+4*t,4), vr(fX[b]+4*f,4)
                if t >= 4: opA, opB = opB, opA
                M.append(((f"w{t}",), f"{MF16} {vr(acc,4)}, {opA}, {opB}, {c0(acc)}"))
        return M
    e("s_setprio 1")
    tN = []; tick = {}
    def block(ks):
        R = reads(ks+1) if ks < 15 else []
        if ks > 0: e.wait(lg=e.lgq)
        for i, (deps, tx) in enumerate(mfmas(ks)):
            e.wait(lg=max(tick[(ks, d)] for d in deps))
            e(tx)
            for _ in range(2 if i < 2 else 1):
                if R:
                    nm, rt = R.pop(0); tick[(ks+1, nm)] = e(rt)
        for nm, rt in R: tick[(ks+1, nm)] = e(rt)
    stamp("setup_done")
    e.wait_all()
    e("s_barrier")
    stamp("c0_landed")
    for nm, tx in reads(0): tick[(0, nm)] = e(tx)
    for c in range(8):
        block(2*c)
        if c < 7:
            e.wait_all(vm=False)
            e("s_barrier")
            if OPT['fine'] or c in (0, 6): stamp(f"b{c}b")
            if c == 4: tN.append(e(f"global_load_dword v{vN}, v{vZ}, {sr(P_DBG,2)} sc1"))
        block(2*c+1)
    stamp("kloop_end")
    v.release(fm)
    w = [v.alloc(8, 4) for _ in range(2)]
    seq = [
     "v_cndmask_b32 v{w4}, v{G0}, v{G1}, s[%d:%d]" % (S_C1, S_C1+1),
     "v_mul_f32 v{w6}, %d, v{S1}" % f2u(LOG2E),
     "v_cndmask_b32 v{w4}, v{w4}, v{G2}, s[%d:%d]" % (S_C2, S_C2+1),
     "v_mul_f32 v{w5}, %d, v{S0}" % f2u(1.0/512),
     "v_cndmask_b32 v{w4}, v{w4}, v{G3}, s[%d:%d]" % (S_C3, S_C3+1),
     "v_exp_f32 v{w2}, v{w6}",
     "v_mul_f32 v{w4}, %d, v{w4}" % f2u(1.0/512),
     "v_exp_f32 v{w3}, -v{w6}",
     "v_fma_f32 v{w4}, -v{w5}, v{w5}, v{w4}",
     "v_add_f32 v{w2}, 1.0, v{w2}",
     "v_max_f32 v{w4}, 0, v{w4}",
     "v_add_f32 v{w3}, 1.0, v{w3}",
     "v_add_f32 v{w4}, %d, v{w4}" % f2u(1e-5),
     "v_min_f32 v{w2}, %d, v{w2}" % f2u(1e30),
     "v_rsq_f32 v{w0}, v{w4}",
     "v_rcp_f32 v{w3}, v{w3}",
     "v_mul_f32 v{w1}, -v{w5}, v{w0}",
    ]
    for ln in seq:
        for f in range(2):
            d = {f"w{i}": w[f]+i for i in range(8)}
            d.update({f"G{i}": aGR+4*f+i for i in range(4)}); d.update(S0=aSM+4*f, S1=aSM+4*f+1)
            e(ln.format(**d))
    e(f"""s_mov_b32 exec_lo, 0x00f0000f
    s_mov_b32 exec_hi, 0xf0000f00
    ds_write_b128 v{vSw}, {vr(w[0],4)}
    ds_write_b128 v{vSw}, {vr(w[1],4)} offset:256
    v_rcp_f32 v{w[0]+7}, v{w[0]+2}
    v_rcp_f32 v{w[1]+7}, v{w[1]+2}""")
    e(f"buffer_store_dword v{w[0]+7}, v{vOw}, {sr(R_WS,4)}, 0 offen sc1")
    e(f"buffer_store_dword v{w[1]+7}, v{vOw}, {sr(R_WS,4)}, 0 offen offset:64 sc1")
    e("s_mov_b64 exec, -1")
    pk = v.alloc(24, 4)
    def pack(j):
        A = aQ + 8*j; P = pk + 4*j
        if j < 4:
            for i in range(8): e(f"v_mul_f32 v{A+i}, s{S_SC}, v{A+i}")
        for i in range(4): e(f"v_cvt_pk_bf16_f32 v{P+i}, v{A+2*i}, v{A+2*i+1}")
    def swap(j):
        P = pk + 4*j; n = 16 if j < 4 else 32
        e(f"v_permlane{n}_swap_b32 v{P}, v{P+2}\nv_permlane{n}_swap_b32 v{P+1}, v{P+3}")
    def store(j): return e(f"buffer_store_dwordx4 {vr(pk+4*j,4)}, v{vL16}, {sr(R_WS,4)}, s{S_SO+j} offen sc1")
    for j in range(6):
        pack(j)
        if j > 0: swap(j-1); store(j-1)
    swap(5); tq = store(5)
    stamp("qkv_issued")
    for i in range(4): e(f"v_mov_b32 v{aSM+i}, 0x3f803f80")
    e.wait(vm=tN[0])
    get_nonce(vN)
    e.wait_all(vm=False)
    e.wait(vm=tq)
    stamp("pub_qkv")
    publish(A_SQ, 0)
    e("s_setprio 3")
    e("s_barrier")
    ct = []
    for ks in range(16):
        if ks >= 6:
            e.wait(lg=ct[ks-6]); e(f"{MF16} {vr(aGR,4)}, {vr(aQ+4*((ks-6)%12),4)}, {vr(aSM,4)}, {'0' if ks == 6 else vr(aGR,4)}")
        e(b_read(aQ+4*(ks%12), vWb, ks, 0, 0)); ct.append(e(b_read(aQ+4*(ks%12)+2, vWb, ks, 1, 0)))
    for ks in range(10, 16):
        e.wait(lg=ct[ks]); e(f"{MF16} {vr(aGR,4)}, {vr(aQ+4*(ks%12),4)}, {vr(aSM,4)}, {vr(aGR,4)}")
    e(f"""v_mov_b32 v{vT+4}, {L_CNT}
    v_mov_b32 v{vT+5}, 1
    s_mov_b32 exec_lo, 0x00010001
    s_mov_b32 exec_hi, 0x00010001
    ds_write_b128 v{vCw}, {vr(aGR,4)}
    s_mov_b64 exec, -1""")
    lds_arrive(vT+4, vT+5, C_CSB)
    lds_arrive(vT+4, vT+5, C_GDONE)
    stamp("csb_end")
    v.release(a_mark)
    vFt = v.alloc(1); vGt = v.alloc(2); vM = v.alloc(2)
    K = v.alloc(40, 4); Q = v.alloc(8, 4)
    D = [v.alloc(16, 4) for _ in range(2)]; Mg = v.alloc(16, 4); C = v.alloc(16, 4); O = v.alloc(16, 4)
    Pb = [v.alloc(8, 4) for _ in range(2)]
    assert v.mark() <= Vv
    v.alloc(Vv + 80 - v.mark())
    e(f"ds_read_b32 v{vGt}, v{vGa}\nds_read_b32 v{vGt+1}, v{vGa} offset:512")
    for r in range(Vv+4, k_top): e(f"v_mov_b32 v{r}, v{Vv+7}")
    e("s_setprio 0")
    srd(R_W2, P_W2, 1792*512*2)
    tw = [None]
    def a_dma(s):
        e(f"s_add_u32 m0, s1, {8192*RING[s]}")
        e(f"buffer_load_dwordx4 v{vw2}, {sr(R_W2,4)}, s0 offen lds")
        tw[0] = e(f"buffer_load_dwordx4 v{vw2+1}, {sr(R_W2,4)}, s0 offen offset:1024 lds")
        e(f"s_add_u32 s0, s0, 16384\ns_cmp_lt_u32 s0, {28*16384}\ns_cselect_b32 s0, s0, 0")
    for s in range(OPT['p1']): a_dma(s)
    def a_pf(u):
        e(f"v_lshlrev_b32 v{vT}, 10, v{vL}")
        if u == 1: e(f"s_mov_b32 exec_hi, 0xffff\ns_add_u32 s96, s96, 65536")
        e(f"buffer_load_dword v{vPF}, v{vT}, {sr(R_W2,4)}, s96 offen\ns_mov_b64 exec, -1")
    def do_p2():
        if OPT['p2']: lds_wait(vT+4, vFt, 4, C_AFREE)
        for s in range(OPT['p1'], OPT['p1'] + OPT['p2']):
            if OPT['p2first'] and s == OPT['p1'] + OPT['p2'] - OPT['qearly']:
                e(f"s_cmp_lg_u32 s{S_W}, 4\ns_cbranch_scc1 L_a_ne")
                e(flag_read([f"s{r}" for r in A_FO], A_FD, P_WS))
                e("L_a_ne:")
            a_dma(s)
        if not OPT['qearly']: stamp("p2_iss")
    if OPT['pfa'] & 1: a_pf(0)
    if OPT['p2first']: do_p2()
    e(f"s_cmp_lg_u32 s{S_W}, 4\ns_cbranch_scc1 L_a_np")
    poll([f"s{r}" for r in A_FO], A_FD, P_WS, bool(OPT['p2first'] and OPT['qearly'] and OPT['p2']))
    e(f"ds_write_b32 v{vT+4}, v{vT+5} offset:{C_QKV}")
    e("L_a_np:")
    lds_wait(vT+4, vFt, 1, C_QKV)
    stamp("qkv_seen")
    e("s_setprio 1")
    def guard(i):
        if i >= 8: return lambda: None
        L = e.newlabel("L_sk")
        e.flush_haz()
        e(f"s_cmp_gt_u32 s{S_NV}, {i}\ns_cbranch_scc1 {L}")
        def close():
            e.flush_haz(); e(f"{L}:")
        return close
    kt = {}; vt = {}; qt = {}
    KV = ' sc1' if OPT['kvsc'] else ''
    def off(base, i):
        e(f"s_add_u32 s{S_T0}, s{S_KB}, {(base*64 - 8 + i)*1024}")
        if i < 8: e(f"s_cmp_gt_u32 s{S_NV}, {i}\ns_cselect_b32 s{S_T0}, {WS_SIZE}, s{S_T0}")
    def ldq(u): qt[u] = e(f"buffer_load_dwordx4 {vr(Q+4*u,4)}, v{vL16}, {sr(R_WS,4)}, s{S_KB} offen offset:{1024*u}{KV}")
    def ldk(i):
        off(32, i)
        kt[i] = e(f"buffer_load_dwordx4 {vr(K+4*i,4)}, v{vL16}, {sr(R_WS,4)}, s{S_T0} offen{KV}")
    def ldv(i):
        off(64, i)
        vt[i] = e(f"buffer_load_dwordx4 {vr(Vv+8*i,4)}, v{vVo}, {sr(R_WS,4)}, s{S_T0} offen{KV}")
    fixed = set()
    def vfix(i):
        if i in fixed: return
        fixed.add(i)
        while i not in vt: ld_more(1)
        e.wait(vm=vt[i])
        for k in range(4): e(f"v_permlane16_swap_b32 v{Vv+8*i+k}, v{Vv+8*i+4+k}")
    LD = [(ldq,0),(ldk,8),(ldk,0),(ldk,1),(ldk,2),(ldv,0),(ldv,8),(ldk,3),(ldv,1),(ldk,4),(ldv,2),(ldk,5),(ldv,3),(ldk,6),(ldv,4),(ldk,7),(ldv,5),(ldv,6),(ldq,1),(ldk,9),(ldv,7),(ldv,9)]
    def ld_more(n):
        for _ in range(n):
            if LD:
                f, i = LD.pop(0); f(i)
    def finalize(u, P):
        e(f"v_rcp_f32 v{vM}, v{O+8}\nv_mul_f32 v{vM}, v{vM}, v{vGt+u}")
        for r in range(8): e(f"v_mul_f32 v{O+r}, v{O+r}, v{vM}")
        for k in range(4): e(f"v_cvt_pk_bf16_f32 v{P+k}, v{O+2*k}, v{O+2*k+1}")
    def o_store(u, P):
        e(f"""s_add_u32 s{S_T0}, s{S_TQ}, {u}
        s_mul_i32 s{S_T0}, s{S_T0}, 144
        s_add_u32 s{S_T0}, s{S_T0}, s{S_HEAD}
        s_add_u32 s{S_T0}, s{S_T0}, 112
        s_lshl_b32 s{S_T0}, s{S_T0}, 10
        s_add_u32 s{S_T0}, s{S_T0}, {WS_ACT}""")
        e(f"buffer_store_dwordx4 {vr(P,4)}, v{vL16}, {sr(R_WS,4)}, s{S_T0} offen sc1")
    def merged_tail():
        for r in range(16):
            e(f"v_exp_f32 v{Mg+r}, v{Mg+r}")
            if r % 4 == 3: ld_more(1)
        for i in range(8): e(f"v_cvt_pk_bf16_f32 v{Mg+i}, v{Mg+2*i}, v{Mg+2*i+1}")
        for i in range(8): e(f"v_and_b32 v{Mg+8+i}, v{Mg+i}, v{vPM+i}")
        for i in range(8): e(f"v_xor_b32 v{Mg+i}, v{Mg+i}, v{Mg+8+i}")
    ld_more(OPT['nld0'] if OPT['fast'] else 99)
    assert not LD
    stamp("r1_iss")
    if not OPT['p2first']: do_p2()
    if OPT['p3']: lds_wait(vT+4, vFt, 8, C_GDONE)
    for s in range(OPT['p1'] + OPT['p2'], OPT['p1'] + OPT['p2'] + OPT['p3']): a_dma(s)
    t_w = tw[0]
    if OPT['pfa'] & 2: a_pf(0)
    if OPT['pfa'] & 4: a_pf(1)
    if t_w: e.wait(vm=t_w)
    e(f"ds_write_b32 v{vFl}, v{vT+5}")
    stamp("w_landed")
    if OPT['adelay']: lds_wait(vT+4, vFt, 4, C_GELU)
    stamp("att_go")
    e.wait(lg=e.lgq)
    if OPT['fast']:
        for u in range(2):
            q = vr(Q+4*u, 4); first = [True]
            def qk(i, dst):
                while i not in kt: ld_more(1)
                e.wait(vm=max(kt[i], qt[u]))
                e(f"{MF32} {vr(dst,16)}, {vr(K+4*i,4)}, {q}, 0")
            def pv1(i, P, sidx):
                vfix(i)
                e(f"{MF32} {vr(O,16)}, {vr(Vv+8*i+4*sidx,4)}, {vr(P+4*sidx,4)}, {'0' if first[0] else vr(O,16)}")
                first[0] = False
            far, diag = u, u + 8; mids = list(range(u+1, u+8))
            if u == 0:
                qk(diag, D[1]); qk(far, Mg)
            qk(mids[0], D[0])
            for r in range(16):
                e(f"v_cndmask_b32 v{Mg+r}, v{Mg+r}, v{D[1]+r}, s[{S_MASK+2*r}:{S_MASK+2*r+1}]")
            merged_tail()
            vfix(far); vfix(diag)
            fstamp(f"mg{u}")
            pend = [(far, Mg, 0), (far, Mg, 1), (diag, Mg+8, 0), (diag, Mg+8, 1)]
            for n, i in enumerate(mids):
                b = D[n % 2]; P = Pb[n % 2]; mf = []
                if n + 1 < 7: mf.append(lambda n=n: qk(mids[n+1], D[(n+1) % 2]))
                take = 3 if len(pend) > 2 else len(pend)
                for x in pend[:take]: mf.append(lambda x=x: pv1(*x))
                pend = pend[take:]
                if n == 6 and u == 0:
                    def nxt(i2, dst):
                        e.wait(vm=max(kt[i2], qt[1]))
                        e(f"{MF32} {vr(dst,16)}, {vr(K+4*i2,4)}, {vr(Q+4,4)}, 0")
                    mf += [lambda: nxt(9, D[1]), lambda: nxt(1, Mg)]
                slots = {4*k: f for k, f in enumerate(mf)}
                for r in range(16):
                    if r in slots: slots[r]()
                    e(f"v_exp_f32 v{b+r}, v{b+r}")
                    if r % 4 == 2: ld_more(1)
                vfix(i)
                for k in range(8):
                    e(f"v_cvt_pk_bf16_f32 v{P+k}, v{b+2*k}, v{b+2*k+1}")
                    if n == 6 and k == 5: pv1(i, P, 0)
                pend += [(i, P, 0), (i, P, 1)] if n < 6 else [(i, P, 1)]
            for x in pend: pv1(*x)
            vfix(9)
            assert not LD and len(fixed) == 10
            lo, hi = (2.0**-64, 2.0**64) if not OPT['forcefb'] else (2.0**60, 2.0**64)
            e(f"""v_cmp_gt_f32 vcc, {f2u(lo)}, v{O+8}
            s_mov_b64 s[60:61], vcc
            v_cmp_nge_f32 vcc, {f2u(hi)}, v{O+8}
            s_or_b64 vcc, vcc, s[60:61]
            s_cbranch_vccnz L_att_gen""")
            if u == 1: o_store(0, C)
            finalize(u, C + 4*u)
            if u == 1: o_store(1, C + 4)
            stamp(f"unit{u}")
    else:
        for i in range(10): vfix(i)
        e("s_branch L_att_gen")
    e("L_att_pub:")
    e.wait_all(lg=False)
    publish(A_SOo, 2)
    stamp_flush()
    e("s_endpgm")
    e("L_att_gen:")
    e("s_nop 15")
    e.wait_all()
    for u in range(2):
        q = vr(Q+4*u, 4); first = [True]
        def qk(i, dst, c): e(f"{MF32} {vr(dst,16)}, {vr(K+4*i,4)}, {q}, {c}")
        def pv(i, P):
            for s in range(2):
                e(f"{MF32} {vr(O,16)}, {vr(Vv+8*i+4*s,4)}, {vr(P+4*s,4)}, {'0' if first[0] else vr(O,16)}")
                first[0] = False
        far, diag = u, u + 8; mids = list(range(u+1, u+8))
        qk(diag, D[0], "0")
        for r in range(16): e(f"v_mov_b32 v{D[1]+r}, 0xff800000")
        cl = guard(far); qk(far, D[1], "0"); cl()
        for r in range(16):
            e(f"v_cndmask_b32 v{Mg+r}, v{D[1]+r}, v{D[0]+r}, s[{S_MASK+2*r}:{S_MASK+2*r+1}]")
        e(f"v_max_f32 v{vM}, v{Mg}, v{Mg+1}\nv_max_f32 v{vM+1}, v{Mg+2}, v{Mg+3}")
        for r in range(4, 16, 4):
            e(f"v_max3_f32 v{vM}, v{vM}, v{Mg+r}, v{Mg+r+1}\nv_max3_f32 v{vM+1}, v{vM+1}, v{Mg+r+2}, v{Mg+r+3}")
        for n, i in enumerate(mids):
            b = D[n % 2]
            cl = guard(i)
            qk(i, b, "0")
            for r in range(0, 16, 4):
                e(f"v_max3_f32 v{vM}, v{vM}, v{b+r}, v{b+r+1}\nv_max3_f32 v{vM+1}, v{vM+1}, v{b+r+2}, v{b+r+3}")
            cl()
        e(f"""v_max_f32 v{vM}, v{vM}, v{vM+1}
        v_mov_b32 v{vM+1}, v{vM}
        v_permlane32_swap_b32 v{vM}, v{vM+1}
        v_max_f32 v{vM}, v{vM}, v{vM+1}""")
        for r in range(16): e(f"v_sub_f32 v{C+r}, 0, v{vM}")
        for r in range(16): e(f"v_add_f32 v{Mg+r}, v{Mg+r}, v{C}")
        merged_tail()
        pv(diag, Mg+8)
        cl = guard(far); pv(far, Mg); cl()
        for n, i in enumerate(mids):
            b = D[n % 2]; P = Pb[n % 2]
            cl = guard(i)
            qk(i, b, vr(C, 16))
            for r in range(16): e(f"v_exp_f32 v{b+r}, v{b+r}")
            for k in range(8): e(f"v_cvt_pk_bf16_f32 v{P+k}, v{b+2*k}, v{b+2*k+1}")
            pv(i, P)
            cl()
        finalize(u, C); o_store(u, C)
    e("s_branch L_att_pub")

g_stream()
e.restore(common_state); v.release(common_mark)
e("L_streamA:")
cur_stream[0] = "A"
a_stream()
body = e.text() + "".join("\n".join((l if l.strip().endswith(":") else "    " + l.strip()).rstrip() if not l.strip().endswith(":") else l.strip() for l in t.split("\n") if l.strip()) + "\n" for t in tail) + "L_end:\n    s_endpgm\n"

hdr = open("gated_mix__sliding_block__mixer_channel_mlp__prompt.s.ref").read().split("; Override launch")[0]
txt = hdr + f"""; Generated by my own generator script (single persistent launch; hand-off flags in d_ws carry a per-launch nonce).
; @launch grid=(256,1,1) block=(512,1,1) lds=163840
.amdgcn_target "amdgcn-amd-amdhsa--gfx950"
.text
.globl {NAME}
.p2align 8
.type {NAME},@function
{NAME}:
""" + body + f""".section .rodata,"a"
.p2align 6
.amdhsa_kernel {NAME}
  .amdhsa_next_free_vgpr 256
  .amdhsa_next_free_sgpr 102
  .amdhsa_accum_offset 256
  .amdhsa_group_segment_fixed_size 0
  .amdhsa_kernarg_size 96
  .amdhsa_user_sgpr_count 2
  .amdhsa_user_sgpr_kernarg_segment_ptr 1
  .amdhsa_system_sgpr_workgroup_id_x 1
.end_amdhsa_kernel
"""
out = sys.argv[1]
open(out, "w").write(txt)
if STAMP:
    import json; json.dump(stamp_names, open(out + ".names.json", "w"))
print("vgpr high water", v.hw, "nops", e.nops, "lines", txt.count("\n"), file=sys.stderr)
```
